```python
import torch

def _softmax(x, axis=-1):
    return torch.softmax(x, dim=axis)

def _gelu(x):
    return torch.nn.functional.gelu(x, approximate='tanh')

def _silu(x):
    return torch.nn.functional.silu(x)

def _sigmoid(x):
    return torch.sigmoid(x)

def _layernorm(x, axis=-1, eps=1e-05):
    m = x.mean(dim=axis, keepdim=True)
    v = x.var(dim=axis, keepdim=True, unbiased=False)
    return (x - m) / torch.sqrt(v + eps)

def _scatter_add(tgt, idx, src, axis=0):
    return tgt.clone().index_add_(axis, idx, src)

def _segment_sum(src, seg, n):
    out = torch.zeros((n,) + src.shape[1:], dtype=src.dtype)
    return out.index_add_(0, seg, src)

def _pad(x, pw):
    flat = tuple((v for pair in reversed(pw) for v in pair))
    return torch.nn.functional.pad(x, flat)
kernel_name = 'adaLN_cond__ssm_conv_h3__mixer_channel_mlp__prompt'

def setup_inputs():

    _w = lambda a: (lambda t: t.to(torch.bfloat16) if t.is_floating_point() else t)(torch.as_tensor(a))

    def _A_setup():
        B, S, D = (1, 2048, 1024)
        ks = 4
        return {'q': _w((lambda *s: torch.randn(*s, dtype=torch.bfloat16) * 0.05)(B, S, D)), 'k': _w((lambda *s: torch.randn(*s, dtype=torch.bfloat16) * 0.4)(B, S, D)), 'v': _w((lambda *s: torch.randn(*s, dtype=torch.bfloat16) * 0.4)(B, S, D)), 'shift_k': _w((lambda *s: torch.randn(*s, dtype=torch.bfloat16) * 0.4)(D, ks) * 0.5), 'ssm_k': _w((lambda *s: torch.randn(*s, dtype=torch.bfloat16) * 0.4)(D, S) * (1.0 / S ** 0.5)), 'ssm_D': _w((lambda *s: torch.randn(*s, dtype=torch.bfloat16) * 0.4)(D))}
    _A_in = _A_setup()

    def _B_setup():
        B, S, D, F = (1, 2048, 1024, 3584)
        return {'x': _w((lambda *s: torch.randn(*s, dtype=torch.bfloat16) * 0.05)(B, S, D)), 'w1': _w((lambda *s: torch.randn(*s, dtype=torch.bfloat16) * 3.2)(D, F) * D ** (-0.5)), 'b1': _w((lambda *s: torch.randn(*s, dtype=torch.bfloat16) * 1.6)(F)), 'w2': _w((lambda *s: torch.randn(*s, dtype=torch.bfloat16) * 0.2)(F, D) * F ** (-0.5)), 'b2': _w((lambda *s: torch.randn(*s, dtype=torch.bfloat16) * 0.4)(D))}
    _B_in = _B_setup()
    return {'A_q': _A_in['q'], 'A_k': _A_in['k'], 'A_v': _A_in['v'], 'A_shift_k': _A_in['shift_k'], 'A_ssm_k': _A_in['ssm_k'], 'A_ssm_D': _A_in['ssm_D'], 'B_x': _B_in['x'], 'B_w1': _B_in['w1'], 'B_b1': _B_in['b1'], 'B_w2': _B_in['w2'], 'B_b2': _B_in['b2'], 'c': _w((lambda *s: torch.randn(*s, dtype=torch.bfloat16) * 0.2)(1, 1024) * 8.0), 'w_mod': _w((lambda *s: torch.randn(*s, dtype=torch.bfloat16) * 0.2)(1024, 6 * 1024) * 1024 ** (-0.5) * 8.0)}

def reference(A_q, A_k, A_v, A_shift_k, A_ssm_k, A_ssm_D, B_x, B_w1, B_b1, B_w2, B_b2, c, w_mod):

    def _A_ref(q, k, v, shift_k, ssm_k, ssm_D):
        B, S, D = q.shape
        ks = shift_k.shape[-1]
        k_pad = _pad(k, ((0, 0), (ks - 1, 0), (0, 0)))
        k_shift = torch.zeros_like(k)
        for t in range(ks):
            k_shift = k_shift + k_pad[:, t:t + S, :] * shift_k[:, ks - 1 - t][None, None, :]
        kv = k_shift * v
        L = 2 * S
        kv_pad = _pad(kv, ((0, 0), (0, S), (0, 0)))
        kf_pad = _pad(ssm_k, ((0, 0), (0, S)))
        kv_f = (lambda x, axes=(-2, -1): torch.fft.rfft2(x.float(), dim=axes))(kv_pad[:, None, :, :], axes=(1, 2))
        kf_f = (lambda x, axes=(-2, -1): torch.fft.rfft2(x.float(), dim=axes))(kf_pad[:, None, :], axes=(1, 2))
        kf_f = (lambda x, *d: x.permute(*d))(kf_f, 1, 2, 0)
        y_f = kv_f * kf_f[None, :, :, :]
        y = (lambda x, s, axes=(-2, -1): torch.fft.irfft2(x, s=s, dim=axes).to(torch.bfloat16))(y_f, (1, L), axes=(1, 2))[:, 0, :S, :]
        y = y + kv * ssm_D[None, None, :]
        return q * y

    def _B_ref(x, w1, b1, w2, b2):
        y = _layernorm(x, axis=-1)
        h = _gelu(torch.einsum('bsd,df->bsf', y, w1) + b1)
        return torch.einsum('bsf,fd->bsd', h, w2) + b2
    x = A_q
    mod = (_silu(c) @ w_mod).reshape(c.shape[0], 6, 1, -1)
    sa, ca, ga, sb, cb, gb = (mod[:, 0].clone(), mod[:, 1].clone(), mod[:, 2].clone(), mod[:, 3].clone(), mod[:, 4].clone(), mod[:, 5].clone())
    h = _layernorm(x, axis=-1) * (1 + ca) + sa
    x = x + ga * _A_ref(h, A_k, A_v, A_shift_k, A_ssm_k, A_ssm_D)
    h = _layernorm(x, axis=-1) * (1 + cb) + sb
    x = x + gb * _B_ref(h, B_w1, B_b1, B_w2, B_b2)
    return x
```

```python
import re

REG_RE = re.compile(r'^(-?)(?:abs\()?\|?([vas])(?:(\d+)|\[(\d+):(\d+)\])\|?\)?$')
TRANS = ("v_exp_f32", "v_log_f32", "v_rcp_f32", "v_rsq_f32", "v_sqrt_f32", "v_sin_f32", "v_cos_f32")

def regs_of(op):
    op = op.strip()
    if op in ("vcc", "vcc_lo", "vcc_hi"): return {("s", "vcc")}
    if op in ("exec", "exec_lo", "exec_hi"): return {("s", "exec")}
    if op == "m0": return {("s", "m0")}
    m = REG_RE.match(op)
    if not m: return set()
    k = m.group(2)
    if m.group(3) is not None:
        return {(k, int(m.group(3)))}
    return {(k, i) for i in range(int(m.group(4)), int(m.group(5)) + 1)}

def split_ops(rest):
    out, depth, cur = [], 0, ""
    for ch in rest:
        if ch in "[(": depth += 1
        if ch in "])": depth -= 1
        if ch == "," and depth == 0:
            out.append(cur.strip()); cur = ""
        else:
            cur += ch
    if cur.strip(): out.append(cur.strip())
    mods = ""
    if out:
        parts = out[-1].split(None, 1)
        out[-1] = parts[0]
        if len(parts) > 1: mods = parts[1]
    return out, mods

class Ins:
    def __init__(self, text):
        self.text = text
        t = text.split(";")[0].strip()
        p = t.split(None, 1)
        self.mn = p[0]
        ops, mods = split_ops(p[1]) if len(p) > 1 else ([], "")
        self.ops, self.mods = ops, mods
        mn = self.mn
        self.w, self.r = set(), set()
        self.kind = "other"
        self.srcC = set()
        self.storedata = set()
        R = [regs_of(o) for o in ops]
        if mn.startswith("v_mfma"):
            self.kind = "mfma"
            self.w = R[0]; self.r = R[1] | R[2] | R[3]; self.srcC = R[3]; self.srcAB = R[1] | R[2]
            self.passes = 4 if "16x16x32" in mn else (8 if "32x32x16" in mn else 16)
        elif mn.startswith("v_"):
            self.kind = "valu"
            if mn.startswith("v_cmp"):
                self.w = R[0]; self.r = set().union(*R[1:])
                if mn.startswith("v_cmpx"): self.w |= {("s", "exec")}
            elif "permlane" in mn and "swap" in mn:
                self.w = R[0] | R[1]; self.r = R[0] | R[1]
            elif mn.startswith(("v_add_co", "v_sub_co", "v_addc_co", "v_subb_co")):
                self.w = R[0] | R[1]; self.r = set().union(*R[2:])
            else:
                self.w = R[0]; self.r = set().union(*R[1:]) if len(R) > 1 else set()
                if mn.startswith(("v_fmac", "v_dot2c", "v_writelane", "v_pk_fmac")) or "dpp" in mn or "row_" in mods or "quad_perm" in mods or "UNUSED_PRESERVE" in mods:
                    self.r |= R[0]
                if mn.startswith("v_cndmask") and len(ops) == 3: self.r |= {("s", "vcc")}
            self.trans = mn.replace("_e32", "").replace("_e64", "") in TRANS
            self.dpp = ("dpp" in mn) or ("row_" in mods) or ("quad_perm" in mods) or ("wave_" in mods)
            self.permlane = "permlane" in mn
            self.rdlane = mn.startswith(("v_readlane", "v_readfirstlane"))
            self.opsel = ("sdwa" in mn and "dst_sel:DWORD" not in mods and "dst_sel" in mods)
            self.dot = mn.startswith("v_dot")
        elif mn.startswith("ds_"):
            self.kind = "ds"
            if mn.startswith(("ds_read", "ds_bpermute", "ds_permute", "ds_swizzle")) or "_rtn" in mn:
                self.w = R[0]; self.r = set().union(*R[1:])
            else:
                self.r = set().union(*R)
        elif mn.startswith(("buffer_", "global_")):
            self.kind = "vmem"
            self.lds = (" lds" in (" " + mods)) or "load_lds" in mn
            if mn in ("buffer_wbl2", "buffer_inv"):
                pass
            elif "load" in mn and not self.lds:
                self.w = R[0]; self.r = set().union(*R[1:])
                if "d16" in mn: self.r |= R[0]
            elif "atomic" in mn and "sc0" in mods:
                self.w = R[0]; self.r = set().union(*R)
            else:
                self.r = set().union(*R) if R else set()
                if "store" in mn and ("x4" in mn or "x3" in mn):
                    self.storedata = R[0] if mn.startswith("buffer_") else R[1]
            if self.lds: self.r |= {("s", "m0")}
        elif mn.startswith("s_"):
            self.kind = "salu"
            if mn.startswith(("s_cmp", "s_cbranch", "s_branch", "s_waitcnt", "s_barrier", "s_nop", "s_endpgm", "s_sleep", "s_setprio", "s_bitcmp")):
                self.r = set().union(*R) if R else set()
            else:
                self.w = R[0] if R else set(); self.r = set().union(*R[1:]) if len(R) > 1 else set()
                if "saveexec" in mn: self.w |= {("s", "exec")}
        self.states = 1
        if mn == "s_nop": self.states = int(ops[0], 0) + 1

def isv(rs): return {x for x in rs if x[0] in "va"}
def iss(rs): return {x for x in rs if x[0] == "s"}

def need(p, c):
    n = 0
    if p.kind == "valu":
        pw_v, pw_s = isv(p.w), iss(p.w)
        if c.kind == "mfma":
            if pw_v & c.r: n = max(n, 2)
            if ("s", "exec") in p.w: n = max(n, 4)
        if c.kind == "valu":
            if pw_v & c.r:
                if c.dpp or c.permlane: n = max(n, 2)
                if c.rdlane: n = max(n, 1)
                if p.trans and not c.trans: n = max(n, 1)
                if p.opsel: n = max(n, 1)
                if p.dot and (c.mn != p.mn or (pw_v & (c.r - regs_of(c.ops[0]) if c.mn.startswith("v_dot2c") else pw_v & (regs_of(c.ops[1]) | regs_of(c.ops[2]))))): n = max(n, 3)
            if p.dot and (pw_v & c.w) and c.mn != p.mn: n = max(n, 3)
            if pw_s & c.r:
                n = max(n, 2)
                if c.mn.startswith(("v_readlane", "v_writelane")): n = max(n, 4)
            if ("s", "exec") in p.w:
                if c.dpp: n = max(n, 5)
                if c.permlane or c.rdlane: n = max(n, 4)
        if c.kind == "vmem" and (pw_s & c.r): n = max(n, 5)
        if c.kind in ("vmem", "ds") and p.dot and (pw_v & c.r): n = max(n, 3)
        if c.kind == "salu" and (pw_s & c.r): n = max(n, 1)
    if p.kind == "mfma":
        ps = p.passes
        if c.kind == "mfma":
            if p.w & c.srcAB: n = max(n, {4: 8, 8: 12, 16: 20}[ps])
            if p.w & c.srcC and not (p.w == c.srcC and p.passes == c.passes): n = max(n, {4: 6, 8: 10, 16: 18}[ps])
        elif c.kind in ("valu", "vmem", "ds"):
            if p.w & (c.r | c.w): n = max(n, {4: 8, 8: 12, 16: 20}[ps])
            if c.kind == "valu" and (p.srcC & c.w): n = max(n, {4: 3, 8: 7, 16: 15}[ps])
    if p.kind == "salu" and ("s", "m0") in p.w and ("s", "m0") in c.r and c.kind in ("vmem", "ds"): n = max(n, 1)
    if p.kind == "vmem" and p.storedata:
        if p.storedata & c.w: n = max(n, 2 if c.kind == "valu" else 1)
    return n

class Asm:
    def __init__(self):
        self.lines = []
        self.hist = []
        self.nlabel = 0
        self.nops_inserted = 0
    def raw(self, s):
        self.lines.append(s)
    def label(self, name):
        self.lines.append(name + ":")
    def newlabel(self, base="L"):
        self.nlabel += 1
        return f"{base}_{self.nlabel}"
    def flush_hist(self):
        self.hist = []
    def __call__(self, text):
        for t in text.split("\n"):
            t = t.strip()
            if not t or t.startswith(";"):
                if t: self.lines.append("    " + t)
                continue
            if t.endswith(":"):
                self.lines.append(t); continue
            self.emit(t)
    def emit(self, t):
        ins = Ins(t)
        dist = 0; req = 0
        for p in reversed(self.hist):
            n = need(p, ins)
            if n > dist: req = max(req, n - dist)
            dist += p.states
            if dist >= 24: break
        while req > 0:
            k = min(req, 16)
            nop = Ins(f"s_nop {k-1}")
            self.lines.append(f"    s_nop {k-1}")
            self.hist.append(nop); self.nops_inserted += 1
            req -= k
        self.lines.append("    " + t)
        self.hist.append(ins)
        if len(self.hist) > 64: self.hist = self.hist[-40:]
    def text(self):
        return "\n".join(self.lines) + "\n"

def check_loop(body_lines):
    a = Asm()
    for _ in range(2):
        for l in body_lines:
            l = l.strip()
            if not l or l.startswith(";") or l.endswith(":") or l.startswith("."): continue
            a.emit(l)
    assert a.nops_inserted == 0, "hazard across loop back edge"

def vr(b, n=1): return f"v{b}" if n == 1 else f"v[{b}:{b+n-1}]"
def ar(b, n=1): return f"a{b}" if n == 1 else f"a[{b}:{b+n-1}]"
def sr(b, n=1): return f"s{b}" if n == 1 else f"s[{b}:{b+n-1}]"

class Alloc:
    def __init__(self, start, limit):
        self.n = start; self.limit = limit; self.hi = start
    def get(self, n=1, align=None):
        if align is None: align = 1 if n == 1 else (2 if n < 4 else 4)
        self.n = (self.n + align - 1) // align * align
        r = self.n; self.n += n
        assert self.n <= self.limit, f"register overflow {self.n}"
        self.hi = max(self.hi, self.n)
        return r
    def mark(self): return self.n
    def reset(self, m): self.n = m

def kernel_begin(A, name):
    A.raw(f".globl {name}")
    A.raw(".p2align 8")
    A.raw(f".type {name},@function")
    A.raw(f"{name}:")
    A.flush_hist()

def descriptor(name, vgpr, sgpr=96, accum=None):
    if accum is None: accum = (vgpr + 3) // 4 * 4
    return f""".amdhsa_kernel {name}
  .amdhsa_next_free_vgpr {vgpr}
  .amdhsa_next_free_sgpr {sgpr}
  .amdhsa_accum_offset {accum}
  .amdhsa_group_segment_fixed_size 0
  .amdhsa_kernarg_size 128
  .amdhsa_user_sgpr_count 2
  .amdhsa_user_sgpr_kernarg_segment_ptr 1
  .amdhsa_system_sgpr_workgroup_id_x 1
  .amdhsa_float_denorm_mode_32 3
  .amdhsa_float_denorm_mode_16_64 3
.end_amdhsa_kernel
"""
```

```python
import sys, math, struct
from asmgen import *

MB = 1 << 20
WS_KVR, WS_YB, WS_X1, WS_Y2F, WS_MOD, WS_HF = 0, 4*MB, 8*MB, 12*MB, 16*MB, 20*MB
KA = dict(q=0, k=8, v=16, shift=24, ssmk=32, ssmD=40, w1=56, b1=64, w2=72, b2=80, c=88, wmod=96, out=104, dbg=112, ws=120)

def f2u(x): return struct.unpack("<I", struct.pack("<f", x))[0]

def srd(A, d, b, nbytes, off=0):
    if off:
        A(f"s_add_u32 s{d}, s{b}, {off}")
        A(f"s_addc_u32 s{d+1}, s{b+1}, 0")
    else:
        A(f"s_mov_b32 s{d}, s{b}")
        A(f"s_mov_b32 s{d+1}, s{b+1}")
    A(f"s_mov_b32 s{d+2}, {nbytes}")
    A(f"s_mov_b32 s{d+3}, 0x20000")

def lo(A, d, s): A(f"v_lshlrev_b32 v{d}, 16, v{s}")
def hi(A, d, s): A(f"v_and_b32 v{d}, 0xffff0000, v{s}")

def k_prep(A):
    name = "prep_kernel"
    kernel_begin(A, name)
    A("s_cmp_ge_u32 s2, 256\ns_cbranch_scc1 prep_done")
    A(f"s_load_dwordx4 s[4:7], s[0:1], {KA['k']}")
    A(f"s_load_dwordx2 s[8:9], s[0:1], {KA['shift']}")
    A(f"s_load_dwordx2 s[10:11], s[0:1], {KA['ws']}")
    A("s_lshr_b32 s12, s2, 3\ns_and_b32 s12, s12, 7")
    A("s_and_b32 s13, s2, 7\ns_lshr_b32 s14, s2, 6\ns_lshl_b32 s14, s14, 3\ns_add_u32 s13, s13, s14")
    A("v_and_b32 v1, 31, v0\nv_lshrrev_b32 v2, 5, v0")
    A("s_lshl_b32 s14, s13, 17\ns_lshl_b32 s15, s12, 8\ns_add_u32 s14, s14, s15")
    A("v_lshlrev_b32 v3, 14, v2\nv_lshl_add_u32 v3, v1, 3, v3\nv_add_u32 v3, s14, v3")
    A("v_add_u32 v4, 4096, v3\nv_add_u32 v5, 8192, v3\nv_add_u32 v6, 12288, v3")
    A("v_subrev_u32 v7, 6144, v3")
    A("v_cmp_gt_u32 vcc, 6144, v3")
    A("v_mov_b32 v8, 0x80000000")
    A("v_cndmask_b32 v7, v7, v8, vcc")
    A("v_add_u32 v8, 4096, v7")
    A("s_lshl_b32 s15, s12, 10\nv_lshl_add_u32 v9, v1, 5, s15")
    A("s_waitcnt lgkmcnt(0)")
    srd(A, 16, 4, 4*MB); srd(A, 20, 6, 4*MB); srd(A, 24, 8, 8192); srd(A, 28, 10, 4*MB, WS_KVR)
    K, V, W = 10, 32, 48
    A(f"buffer_load_dwordx4 v[{W}:{W+3}], v9, s[24:27], 0 offen")
    A(f"buffer_load_dwordx4 v[{W+4}:{W+7}], v9, s[24:27], 0 offen offset:16")
    A(f"buffer_load_dwordx2 v[{K}:{K+1}], v7, s[16:19], 0 offen")
    A(f"buffer_load_dwordx2 v[{K+2}:{K+3}], v7, s[16:19], 0 offen offset:2048")
    A(f"buffer_load_dwordx2 v[{K+4}:{K+5}], v8, s[16:19], 0 offen")
    for i in range(8):
        A(f"buffer_load_dwordx2 v[{K+6+2*i}:{K+7+2*i}], v{3+i//2}, s[16:19], 0 offen offset:{(i%2)*2048}")
    for i in range(8):
        A(f"buffer_load_dwordx2 v[{V+2*i}:{V+1+2*i}], v{3+i//2}, s[20:23], 0 offen offset:{(i%2)*2048}")
    A("v_sub_u32 v56, 7, v2\nv_and_b32 v57, 7, v1\nv_xor_b32 v56, v56, v57\nv_lshlrev_b32 v56, 4, v56\nv_lshl_add_u32 v56, v1, 9, v56")
    A("v_lshrrev_b32 v57, 3, v0\nv_and_b32 v58, 7, v0")
    A("v_lshrrev_b32 v59, 2, v57\nv_and_b32 v59, 7, v59\nv_xor_b32 v59, v59, v58\nv_lshlrev_b32 v59, 4, v59\nv_lshl_add_u32 v59, v57, 7, v59")
    A("s_lshl_b32 s14, s12, 19\ns_lshl_b32 s15, s13, 7\ns_sub_u32 s14, s14, s15\ns_add_u32 s14, s14, 3968")
    A("v_lshlrev_b32 v60, 12, v57\nv_lshl_add_u32 v60, v58, 4, v60\nv_add_u32 v60, s14, v60")
    WF, KF, T, O = 64, 80, 92, 104
    A("s_waitcnt vmcnt(19)")
    for c in range(4):
        lo(A, WF+4*c+0, W+2*c); hi(A, WF+4*c+1, W+2*c); lo(A, WF+4*c+2, W+2*c+1); hi(A, WF+4*c+3, W+2*c+1)
    A("s_waitcnt vmcnt(0)")
    for c in range(4):
        un = lo if c % 2 == 0 else hi
        for j in range(11): un(A, KF+j, K+2*j+c//2)
        for i in range(8):
            A(f"v_mul_f32 v{T+i}, v{WF+4*c+3}, v{KF+i}")
        for j in (2, 1, 0):
            for i in range(8):
                A(f"v_fmac_f32 v{T+i}, v{WF+4*c+j}, v{KF+i+3-j}")
        for i in range(8):
            un(A, KF+i, V+2*i+c//2)
        for i in range(8):
            A(f"v_mul_f32 v{T+i}, v{T+i}, v{KF+i}")
        o = O + 4*c
        for e in range(4):
            A(f"v_cvt_pk_bf16_f32 v{o+e}, v{T+7-2*e}, v{T+6-2*e}")
        A(f"ds_write_b128 v56, v[{o}:{o+3}] offset:{c*128}")
    A("s_waitcnt lgkmcnt(0)\ns_barrier")
    for i in range(4):
        A(f"ds_read_b128 v[{64+4*i}:{67+4*i}], v59 offset:{i*4096}")
    A("s_mov_b32 s14, 0x20000\ns_mov_b32 s15, 0x40000\ns_mov_b32 s3, 0x60000")
    for i, so in enumerate(("0", "s14", "s15", "s3")):
        A(f"s_waitcnt lgkmcnt({3-i})")
        A(f"buffer_store_dwordx4 v[{64+4*i}:{67+4*i}], v60, s[28:31], {so} offen")
    A("prep_done:\ns_endpgm")
    return name, 120, 16384

PS = 4160
QOFF = 4 * PS
WSZ = QOFF + 4608
GV = 4 * WSZ
def k_conv(A):
    name = "conv_kernel"
    kernel_begin(A, name)
    A("s_cmp_ge_u32 s2, 256\ns_cbranch_scc1 conv_done")
    A(f"s_load_dwordx4 s[4:7], s[0:1], {KA['ssmk']}")
    A(f"s_load_dwordx4 s[8:11], s[0:1], {KA['c']}")
    A(f"s_load_dwordx2 s[12:13], s[0:1], {KA['ws']}")
    A("v_lshrrev_b32 v1, 6, v0\nv_and_b32 v2, 63, v0")
    A("v_readfirstlane_b32 s14, v1")
    A("v_mov_b32 v3, 0")
    A(f"v_mov_b32 v4, {GV + 1024}")
    A("ds_write_b32 v4, v3")
    A("s_waitcnt lgkmcnt(0)")
    srd(A, 16, 4, 4*MB); srd(A, 20, 6, 2048); srd(A, 24, 12, 4*MB, WS_KVR); srd(A, 28, 12, 4*MB, WS_YB)
    srd(A, 32, 8, 2048); srd(A, 36, 10, 12*MB); srd(A, 40, 12, 24576, WS_MOD)
    A("s_barrier")
    A("s_cmp_ge_u32 s14, 4\ns_cbranch_scc1 gemv_part")
    A("s_and_b32 s15, s2, 7\ns_lshl_b32 s15, s15, 5\ns_lshr_b32 s3, s2, 3\ns_add_u32 s15, s15, s3\ns_lshl_b32 s15, s15, 2\ns_add_u32 s15, s15, s14")
    A(f"s_mul_i32 s44, s14, {WSZ}")
    A("s_lshl_b32 s45, s15, 12")
    A("v_lshlrev_b32 v5, 4, v2")
    A("v_add_u32 v6, 4, v5")
    X, Y = 16, 32
    for i in range(4):
        A(f"buffer_load_dwordx4 v[{X+4*i}:{X+4*i+3}], v5, s[16:19], s45 offen offset:{i*1024}")
        A(f"buffer_load_dwordx2 v[{Y+2*i}:{Y+2*i+1}], v5, s[16:19], s45 offen offset:{i*1024+16}")
    A("v_lshrrev_b32 v7, 4, v2\nv_and_b32 v8, 15, v2")
    A("v_add_u32 v9, v7, v8\nv_subrev_u32 v9, 16, v9\nv_lshlrev_b32 v9, 1, v9")
    A("v_cmp_gt_i32 vcc, 0, v9\nv_mov_b32 v10, 0x80000000\nv_cndmask_b32 v9, v9, v10, vcc")
    A("buffer_load_ushort v11, v9, s[16:19], s45 offen")
    A("s_lshl_b32 s46, s15, 1\nv_mov_b32 v12, s46")
    A("buffer_load_ushort v12, v12, s[20:23], 0 offen")
    A(f"s_add_u32 m0, s44, {QOFF}")
    for i in range(4):
        A(f"buffer_load_dwordx4 v5, s[24:27], s45 offen offset:{i*1024} lds")
    A("s_add_u32 m0, s44, 32")
    for i in range(4):
        A(f"buffer_load_dwordx4 v5, s[16:19], s45 offen offset:{i*1024} lds")
    A(f"s_add_u32 m0, s44, {2*PS+32}")
    for i in range(4):
        A(f"buffer_load_dwordx4 v6, s[16:19], s45 offen offset:{i*1024} lds")
    A("v_mov_b32 v14, 0\nv_mov_b32 v15, 0")
    A(f"v_lshlrev_b32 v13, 3, v2\nv_add_u32 v13, s44, v13")
    A(f"ds_write_b64 v13, v[14:15] offset:{QOFF+4096}")
    A(f"v_mul_u32_u24 v40, {PS}, v7\nv_lshl_add_u32 v40, v8, 1, v40\nv_add_u32 v40, s44, v40")
    A("v_add_u32 v41, s44, v5")
    A(f"v_add_u32 v42, 1, v8\nv_and_b32 v43, 3, v42\nv_mul_u32_u24 v43, {PS}, v43\nv_lshrrev_b32 v42, 2, v42")
    A("v_lshl_add_u32 v43, v42, 3, v43\nv_lshl_add_u32 v43, v7, 4, v43\nv_add_u32 v43, s44, v43")
    vP = 43
    A(f"v_lshlrev_b32 v44, 5, v8\nv_sub_u32 v44, {QOFF+480}, v44\nv_lshl_add_u32 v44, v7, 4, v44\nv_add_u32 v44, s44, v44")
    vQ = 44
    A(f"v_lshlrev_b32 v45, 5, v8\nv_lshl_add_u32 v45, v7, 3, v45\nv_sub_u32 v45, {QOFF+504}, v45\nv_add_u32 v45, s44, v45")
    vE = 45
    A("v_lshrrev_b32 v46, 1, v7\nv_lshl_add_u32 v46, v8, 1, v46\nv_lshlrev_b32 v46, 14, v46\nv_and_b32 v47, 1, v7\nv_lshl_add_u32 v46, v47, 3, v46")
    A("s_lshl_b32 s46, s15, 4\nv_add_u32 v46, s46, v46")
    vS = 46
    C1, C3 = 48, 52
    for i in range(4):
        A(f"s_waitcnt vmcnt({20 - 2*i})")
        a = [X+4*i, X+4*i+1, X+4*i+2, X+4*i+3, Y+2*i, Y+2*i+1]
        c1 = C1 + 8*i; c3 = C3 + 8*i
        for j in range(4): A(f"v_alignbit_b32 v{c1+j}, v{a[j+1]}, v{a[j]}, 16")
        for j in range(4): A(f"v_alignbit_b32 v{c3+j}, v{a[j+2]}, v{a[j+1]}, 16")
        A(f"ds_write_b128 v41, v[{c1}:{c1+3}] offset:{PS+32+i*1024}")
        A(f"ds_write_b128 v41, v[{c3}:{c3+3}] offset:{3*PS+32+i*1024}")
    A("s_waitcnt vmcnt(13)")
    A("ds_write_b16 v40, v11")
    A("s_waitcnt vmcnt(0) lgkmcnt(0)")
    A("v_lshlrev_b32 v12, 16, v12")
    ACC = 80; FA = [112, 176]; FB = [144, 208]
    def reads(r, buf):
        L = []
        for i in range(8):
            L.append(f"ds_read_b128 v[{FB[buf]+4*i}:{FB[buf]+4*i+3}], v{vQ} offset:{64*r + 512*(7-i)}")
            L.append(f"ds_read_b64 v[{FA[buf]+4*i}:{FA[buf]+4*i+1}], v{vP} offset:{512*i + 64*r}")
            L.append(f"ds_read_b64 v[{FA[buf]+4*i+2}:{FA[buf]+4*i+3}], v{vP} offset:{512*i + 64*r + 8}")
        return L
    for l in reads(0, 0): A(l)
    A("s_waitcnt lgkmcnt(0)")
    for r in range(8):
        buf = r & 1
        nxt = reads(r+1, buf ^ 1) if r < 7 else [f"ds_read_b64 v[{FA[0]+2*q}:{FA[0]+2*q+1}], v{vE} offset:{512*(7-q)}" for q in range(8)]
        n = 0
        for i in range(8):
            for j in range(8 - i):
                q = i + j
                c = "0" if (r == 0 and i == 0) else f"v[{ACC+4*q}:{ACC+4*q+3}]"
                A(f"v_mfma_f32_16x16x32_bf16 v[{ACC+4*q}:{ACC+4*q+3}], v[{FA[buf]+4*i}:{FA[buf]+4*i+3}], v[{FB[buf]+4*j}:{FB[buf]+4*j+3}], {c}")
                if n < len(nxt): A(nxt[n]); n += 1
        A("s_waitcnt lgkmcnt(0)")
    T = 48
    for q in range(8):
        e = FA[0] + 2*q
        hi(A, T+0, e+1); lo(A, T+1, e+1); hi(A, T+2, e); lo(A, T+3, e)
        for r in range(4): A(f"v_fmac_f32 v{ACC+4*q+r}, v{T+r}, v12")
        o = 56 + 2*q
        A(f"v_cvt_pk_bf16_f32 v{o}, v{ACC+4*q}, v{ACC+4*q+1}")
        A(f"v_cvt_pk_bf16_f32 v{o+1}, v{ACC+4*q+2}, v{ACC+4*q+3}")
        A(f"s_mov_b32 s46, {q*32*16384}")
        A(f"buffer_store_dwordx2 v[{o}:{o+1}], v{vS}, s[28:31], s46 offen")
    A("s_endpgm")
    A.flush_hist()
    A("gemv_part:")
    A("s_cmp_ge_u32 s2, 96\ns_cbranch_scc1 conv_done")
    A("s_sub_u32 s14, s14, 4")
    A("v_lshrrev_b32 v3, 3, v2\nv_and_b32 v4, 7, v2")
    A("s_lshl_b32 s15, s14, 8\nv_lshl_add_u32 v5, v3, 5, s15")
    A("v_lshlrev_b32 v6, 1, v5")
    CR = 8
    for i in range(4):
        A(f"buffer_load_dwordx4 v[{CR+4*i}:{CR+4*i+3}], v6, s[32:35], 0 offen offset:{16*i}")
    A("s_movk_i32 s3, 12288\nv_mul_lo_u32 v7, v5, s3\nv_lshl_add_u32 v7, v4, 4, v7\ns_lshl_b32 s15, s2, 7\nv_add_u32 v7, s15, v7")
    WV = 96
    A("s_mov_b32 s15, 0")
    for i in range(32):
        A(f"buffer_load_dwordx4 v[{WV+4*i}:{WV+4*i+3}], v7, s[36:39], s15 offen")
        if i < 31: A("s_add_u32 s15, s15, 12288")
    S = 24
    SH = 56
    A("s_waitcnt vmcnt(32)")
    A(f"s_mov_b32 s3, {f2u(-1.4426950408889634):#x}")
    for i in range(32):
        (lo if i % 2 == 0 else hi)(A, SH+i, CR+i//2)
    for i in range(32): A(f"v_mul_f32 v{S+i}, s3, v{SH+i}")
    for i in range(32): A(f"v_exp_f32 v{S+i}, v{S+i}")
    for i in range(32): A(f"v_add_f32 v{S+i}, 1.0, v{S+i}")
    for i in range(32): A(f"v_rcp_f32 v{S+i}, v{S+i}")
    for i in range(32): A(f"v_mul_f32 v{S+i}, v{S+i}, v{SH+i}")
    A("v_mov_b32 v8, 0")
    for i in range(32): A(f"v_cvt_pk_bf16_f32 v{SH+i}, v8, v{S+i}")
    for i in range(32): A(f"v_lshrrev_b32 v{S+i}, 16, v{SH+i}")
    AC = 8
    for e in range(8): A(f"v_mov_b32 v{AC+e}, 0")
    for i in range(32):
        A(f"s_waitcnt vmcnt({31-i})")
        for e in range(8):
            A(f"v_dot2c_f32_bf16 v{AC+e}, v{WV+4*i+e//2}, v{(S if e % 2 == 0 else SH)+i}")
    for e in range(4):
        A(f"v_permlane32_swap_b32 v{AC+e}, v{AC+e+4}")
    for e in range(4):
        A(f"v_add_f32 v{AC+e}, v{AC+e}, v{AC+e+4}")
    for e in range(2):
        A(f"v_permlane16_swap_b32 v{AC+e}, v{AC+e+2}")
    for e in range(2):
        A(f"v_add_f32 v{AC+e}, v{AC+e}, v{AC+e+2}")
    for e in range(2):
        A(f"v_add_f32_dpp v{AC+e}, v{AC+e}, v{AC+e} row_ror:8 row_mask:0xf bank_mask:0xf")
    A("v_lshrrev_b32 v16, 4, v2\nv_lshlrev_b32 v16, 3, v16\nv_lshl_add_u32 v16, v4, 5, v16")
    A(f"s_lshl_b32 s15, s14, 8\ns_add_u32 s15, s15, {GV}\nv_add_u32 v16, s15, v16")
    A(f"ds_write_b64 v16, v[{AC}:{AC+1}]")
    A(f"v_mov_b32 v17, {GV+1024}\nv_mov_b32 v18, 1")
    A("s_waitcnt lgkmcnt(0)")
    A("s_mov_b64 exec, 1")
    A("ds_add_rtn_u32 v19, v17, v18")
    A("s_waitcnt lgkmcnt(0)")
    A("v_readfirstlane_b32 s15, v19")
    A("s_mov_b64 exec, -1")
    A("s_cmp_lg_u32 s15, 3\ns_cbranch_scc1 conv_done")
    A(f"v_lshlrev_b32 v16, 2, v2\nv_add_u32 v17, {GV}, v16")
    for i in range(4): A(f"ds_read_b32 v{20+i}, v17 offset:{256*i}")
    A("s_waitcnt lgkmcnt(0)")
    A("v_add_f32 v20, v20, v21\nv_add_f32 v22, v22, v23\nv_add_f32 v20, v20, v22")
    A("v_cvt_pk_bf16_f32 v20, v20, v20\nv_lshlrev_b32 v20, 16, v20")
    A("v_add_f32 v21, 1.0, v20\nv_cvt_pk_bf16_f32 v21, v21, v21\nv_lshlrev_b32 v21, 16, v21")
    A("s_lshr_b32 s15, s2, 4\ns_cmp_eq_u32 s15, 1\ns_cselect_b64 vcc, -1, 0\ns_cmp_eq_u32 s15, 4\ns_cselect_b64 vcc, -1, vcc")
    A("v_cndmask_b32 v20, v20, v21, vcc")
    A("s_lshl_b32 s15, s2, 8")
    A("buffer_store_dword v20, v16, s[40:43], s15 offen")
    A("conv_done:\ns_endpgm")
    return name, 240, GV + 1040

def reduce16(A, R, vW, vRd, SM, SR_, tmp, ldsoff):
    for e in range(8): A(f"v_permlane32_swap_b32 v{R+e}, v{R+e+8}")
    for e in range(8): A(f"v_add_f32 v{R+e}, v{R+e}, v{R+e+8}")
    for e in range(4): A(f"v_permlane16_swap_b32 v{R+e}, v{R+e+4}")
    for e in range(4): A(f"v_add_f32 v{R+e}, v{R+e}, v{R+e+4}")
    for sh in (8, 4, 2, 1):
        for e in range(4): A(f"v_add_f32_dpp v{R+e}, v{R+e}, v{R+e} row_ror:{sh} row_mask:0xf bank_mask:0xf")
    A(f"ds_write_b128 v{vW}, v[{R}:{R+3}] offset:{ldsoff}")
    A("s_waitcnt lgkmcnt(0)\ns_barrier")
    for w in range(4):
        A(f"ds_read2_b32 v[{tmp+2*w}:{tmp+2*w+1}], v{vRd} offset0:{ldsoff//4 + 16*w} offset1:{ldsoff//4 + 16*w + 8}")
    A("s_waitcnt lgkmcnt(0)")
    A(f"v_add_f32 v{tmp}, v{tmp}, v{tmp+2}\nv_add_f32 v{tmp+4}, v{tmp+4}, v{tmp+6}\nv_add_f32 v{tmp+1}, v{tmp+1}, v{tmp+3}\nv_add_f32 v{tmp+5}, v{tmp+5}, v{tmp+7}")
    A(f"v_add_f32 v{tmp}, v{tmp}, v{tmp+4}\nv_add_f32 v{tmp+1}, v{tmp+1}, v{tmp+5}")
    A(f"v_mul_f32 v{tmp}, {f2u(1/1024):#x}, v{tmp}")
    A(f"v_mul_f32 v{tmp+2}, v{tmp}, v{tmp}")
    A(f"v_mul_f32 v{tmp+1}, {f2u(1/1024):#x}, v{tmp+1}")
    A(f"v_sub_f32 v{tmp+1}, v{tmp+1}, v{tmp+2}")
    A(f"v_max_f32 v{tmp+1}, 0, v{tmp+1}")
    A(f"v_add_f32 v{tmp+1}, {f2u(1e-5):#x}, v{tmp+1}")
    A(f"v_rsq_f32 v{tmp+1}, v{tmp+1}")
    for i in range(8): A(f"v_readlane_b32 s{SM+i}, v{tmp}, {i}")
    for i in range(8): A(f"v_readlane_b32 s{SR_+i}, v{tmp+1}, {i}")

def stats(A, X, R):
    for i in range(8):
        A(f"v_add_f32 v{R+i}, v{X+4*i}, v{X+4*i+1}")
        A(f"v_mul_f32 v{R+8+i}, v{X+4*i}, v{X+4*i}")
    for c in (2, 3):
        for i in range(8): A(f"v_add_f32 v{R+i}, v{R+i}, v{X+4*i+c}")
    for c in (1, 2, 3):
        for i in range(8): A(f"v_fmac_f32 v{R+8+i}, v{X+4*i+c}, v{X+4*i+c}")

def k_ln(A):
    name = "ln_kernel"
    kernel_begin(A, name)
    A("s_cmp_ge_u32 s2, 256\ns_cbranch_scc1 ln_done")
    A(f"s_load_dwordx2 s[4:5], s[0:1], {KA['q']}")
    A(f"s_load_dwordx2 s[6:7], s[0:1], {KA['ws']}")
    A("s_mov_b32 s3, s2")
    A("s_lshl_b32 s8, s3, 14")
    A("v_lshlrev_b32 v1, 3, v0\nv_add_u32 v1, s8, v1\nv_add_u32 v2, 4096, v1\nv_add_u32 v3, 8192, v1\nv_add_u32 v4, 12288, v1")
    A("v_lshlrev_b32 v5, 6, v0\nv_add_u32 v5, s8, v5")
    A("v_lshlrev_b32 v6, 4, v0")
    A("s_waitcnt lgkmcnt(0)")
    srd(A, 12, 4, 4*MB); srd(A, 16, 6, 4*MB, WS_YB); srd(A, 20, 6, 24576, WS_MOD); srd(A, 24, 6, 4*MB, WS_X1); srd(A, 28, 6, 4*MB, WS_Y2F)
    Q, YR, M = 16, 32, 48
    for i in range(8):
        A(f"buffer_load_dwordx2 v[{Q+2*i}:{Q+2*i+1}], v{1+i//2}, s[12:15], 0 offen offset:{(i%2)*2048}")
    for c in range(4):
        A(f"buffer_load_dwordx4 v[{YR+4*c}:{YR+4*c+3}], v5, s[16:19], 0 offen offset:{16*c}")
    for j in range(5):
        A(f"s_mov_b32 s9, {j*4096}")
        A(f"buffer_load_dwordx4 v[{M+4*j}:{M+4*j+3}], v6, s[20:23], s9 offen")
    SA, CA, GA, SB, CB = M, M+4, M+8, M+12, M+16
    A("v_lshrrev_b32 v7, 4, v0\nv_lshlrev_b32 v7, 4, v7")
    A("v_and_b32 v8, 7, v0\nv_lshlrev_b32 v8, 2, v8")
    X, H, R, TMP = 72, 104, 136, 152
    SM, SRs = 32, 40
    A("s_waitcnt vmcnt(9)")
    for i in range(8):
        lo(A, X+4*i, Q+2*i); hi(A, X+4*i+1, Q+2*i); lo(A, X+4*i+2, Q+2*i+1); hi(A, X+4*i+3, Q+2*i+1)
    stats(A, X, R)
    reduce16(A, R, 7, 8, SM, SRs, TMP, 0)
    A("s_waitcnt vmcnt(0)")
    for i in range(8):
        for c in range(4): A(f"v_subrev_f32 v{H+4*i+c}, s{SM+i}, v{X+4*i+c}")
        for c in range(4): A(f"v_mul_f32 v{H+4*i+c}, v{H+4*i+c}, v{CA+c}")
        for c in range(4): A(f"v_fma_f32 v{H+4*i+c}, v{H+4*i+c}, s{SRs+i}, v{SA+c}")
        for c in range(4): (lo if i % 2 == 0 else hi)(A, TMP+c, YR+4*c+i//2)
        for c in range(4): A(f"v_mul_f32 v{H+4*i+c}, v{H+4*i+c}, v{TMP+c}")
        for c in range(4): A(f"v_fmac_f32 v{X+4*i+c}, v{H+4*i+c}, v{GA+c}")
        A(f"v_cvt_pk_bf16_f32 v{Q+2*i}, v{X+4*i}, v{X+4*i+1}")
        A(f"v_cvt_pk_bf16_f32 v{Q+2*i+1}, v{X+4*i+2}, v{X+4*i+3}")
        A(f"buffer_store_dwordx2 v[{Q+2*i}:{Q+2*i+1}], v{1+i//2}, s[24:27], 0 offen offset:{(i%2)*2048}")
        lo(A, X+4*i, Q+2*i); hi(A, X+4*i+1, Q+2*i); lo(A, X+4*i+2, Q+2*i+1); hi(A, X+4*i+3, Q+2*i+1)
    stats(A, X, R)
    reduce16(A, R, 7, 8, SM, SRs, TMP, 256)
    for i in range(8):
        for c in range(4): A(f"v_subrev_f32 v{H+4*i+c}, s{SM+i}, v{X+4*i+c}")
        for c in range(4): A(f"v_mul_f32 v{H+4*i+c}, v{H+4*i+c}, v{CB+c}")
        for c in range(4): A(f"v_fma_f32 v{H+4*i+c}, v{H+4*i+c}, s{SRs+i}, v{SB+c}")
    stats(A, H, R)
    reduce16(A, R, 7, 8, SM, SRs, TMP, 512)
    A("v_lshrrev_b32 v9, 3, v0\nv_and_b32 v10, 3, v0\nv_lshl_add_u32 v9, v9, 2, v10")
    A("v_and_b32 v10, 7, v9\nv_lshlrev_b32 v10, 4, v10\nv_lshl_add_u32 v9, v9, 7, v10")
    A("v_and_b32 v10, 4, v0\nv_lshl_add_u32 v9, v10, 1, v9")
    for i in range(8):
        for c in range(4): A(f"v_subrev_f32 v{H+4*i+c}, s{SM+i}, v{H+4*i+c}")
        for c in range(4): A(f"v_mul_f32 v{H+4*i+c}, s{SRs+i}, v{H+4*i+c}")
        A(f"v_cvt_pk_bf16_f32 v{YR+2*i}, v{H+4*i}, v{H+4*i+1}")
        A(f"v_cvt_pk_bf16_f32 v{YR+2*i+1}, v{H+4*i+2}, v{H+4*i+3}")
        A(f"v_xor_b32 v10, {i*16}, v9")
        A(f"ds_write_b64 v10, v[{YR+2*i}:{YR+2*i+1}] offset:1024")
    A("v_lshrrev_b32 v11, 3, v0\nv_and_b32 v12, 7, v0\nv_and_b32 v13, 7, v11\nv_xor_b32 v13, v13, v12\nv_lshlrev_b32 v13, 4, v13\nv_lshl_add_u32 v13, v11, 7, v13")
    A("s_lshr_b32 s8, s3, 1\ns_lshl_b32 s8, s8, 15\ns_and_b32 s9, s3, 1\ns_lshl_b32 s9, s9, 7\ns_add_u32 s8, s8, s9")
    A("v_lshlrev_b32 v14, 8, v11\nv_lshl_add_u32 v14, v12, 4, v14\nv_add_u32 v14, s8, v14")
    A("s_waitcnt lgkmcnt(0)\ns_barrier")
    for i in range(4): A(f"ds_read_b128 v[{X+4*i}:{X+4*i+3}], v13 offset:{1024+i*4096}")
    for i in range(4):
        A(f"s_mov_b32 s9, {i*8192}")
        A(f"s_waitcnt lgkmcnt({3-i})")
        A(f"buffer_store_dwordx4 v[{X+4*i}:{X+4*i+3}], v14, s[28:31], s9 offen")
    A("ln_done:\ns_endpgm")
    return name, 160, 1024 + 16384

def k_gemm(A, which):
    g1 = which == 1
    name = f"gemm{which}_kernel"
    P = f"g{which}"
    KS = 2 if g1 else 4
    NST = 16 if g1 else 28
    NKB = 32 if g1 else 112
    RS = 7168 if g1 else 2048
    NU = 3 if g1 else 1
    ACT_SZ = 8 * KS * 1024
    U_SZ = 4 * KS * 1024
    H_OFF = ACT_SZ + NU * U_SZ
    STAGE = H_OFF + (2 * KS * 1024 if g1 else 0)
    NT = 7 if g1 else 2
    NI = 2 * KS + NU * KS + (1 if g1 else 0)
    kernel_begin(A, name)
    A(f"s_cmp_ge_u32 s2, 256\ns_cbranch_scc1 {P}_done")
    A(f"s_load_dwordx4 s[4:7], s[0:1], {KA['w1'] if g1 else KA['w2']}")
    A(f"s_load_dwordx2 s[8:9], s[0:1], {KA['ws']}")
    A(f"s_load_dwordx2 s[10:11], s[0:1], {KA['out']}")
    A("v_lshrrev_b32 v1, 6, v0\nv_and_b32 v2, 63, v0")
    A("v_readfirstlane_b32 s14, v1")
    A("s_and_b32 s12, s2, 7\ns_lshr_b32 s13, s2, 3")
    if g1:
        A("s_and_b32 s44, s12, 1\ns_lshl_b32 s44, s44, 3\ns_and_b32 s3, s13, 7\ns_add_u32 s44, s44, s3")
        A("s_lshr_b32 s45, s12, 1\ns_lshl_b32 s45, s45, 2\ns_lshr_b32 s3, s13, 3\ns_add_u32 s45, s45, s3")
    else:
        A("s_and_b32 s44, s12, 3\ns_lshl_b32 s44, s44, 2\ns_and_b32 s3, s13, 3\ns_add_u32 s44, s44, s3")
        A("s_lshr_b32 s45, s12, 2\ns_lshl_b32 s45, s45, 3\ns_lshr_b32 s3, s13, 2\ns_add_u32 s45, s45, s3")
    MI, NJ = 44, 45
    if g1:
        A("s_mul_i32 s46, s45, 448\ns_and_b32 s3, s45, 1\ns_cmp_eq_u32 s3, 0")
        A("s_cselect_b32 s47, 384, 0\ns_cselect_b32 s3, 0, 64\ns_add_u32 s47, s47, s46\ns_add_u32 s46, s46, s3")
    else:
        A("s_lshl_b32 s46, s45, 7")
    A("s_waitcnt lgkmcnt(0)")
    srd(A, 16, 4, 1024*7168)
    srd(A, 20, 6, 7168 if g1 else 2048)
    if g1:
        srd(A, 24, 8, 4*MB, WS_Y2F); srd(A, 28, 8, 2048*7168, WS_HF)
    else:
        srd(A, 24, 8, 2048*7168, WS_HF); srd(A, 28, 10, 4*MB)
        srd(A, 32, 8, 4*MB, WS_X1); srd(A, 36, 8, 24576, WS_MOD)
    A(f"s_cmp_lt_u32 s14, 4\ns_cbranch_scc1 {P}_cons")
    A("s_sub_u32 s14, s14, 4")
    A(f"s_lshl_b32 s3, s44, 3\ns_lshl_b32 s15, s14, 1\ns_add_u32 s3, s3, s15\ns_mul_i32 s3, s3, {NKB*1024}")
    A(f"v_lshlrev_b32 v4, 4, v2\nv_add_u32 v4, s3, v4\nv_add_u32 v5, {NKB*1024}, v4")
    A("v_lshrrev_b32 v6, 3, v2\nv_lshrrev_b32 v7, 1, v6\nv_lshlrev_b32 v7, 1, v7\nv_and_b32 v8, 7, v2\nv_xor_b32 v7, v7, v8\nv_lshlrev_b32 v7, 4, v7")
    A(f"s_movk_i32 s3, {RS}\nv_mul_lo_u32 v6, v6, s3\nv_add_u32 v6, v6, v7")
    A(f"s_mul_i32 s3, s14, {KS*8*RS}\ns_add_u32 s3, s3, s46\nv_add_u32 v6, s3, v6")
    VW = 10
    for u in range(NU):
        for rgi in range(KS):
            A(f"v_add_u32 v{VW+u*KS+rgi}, {u*128 + rgi*8*RS - rgi*1024}, v6")
    if g1:
        VH = VW + NU*KS
        A("v_lshrrev_b32 v6, 2, v2\nv_lshrrev_b32 v7, 2, v6\nv_and_b32 v7, 1, v7\nv_lshlrev_b32 v7, 1, v7\nv_and_b32 v8, 3, v2\nv_xor_b32 v7, v7, v8\nv_lshlrev_b32 v7, 4, v7")
        A(f"s_movk_i32 s3, {RS}\nv_mul_lo_u32 v6, v6, s3\nv_add_u32 v6, v6, v7")
        A(f"s_mul_i32 s3, s14, {16*RS}\ns_add_u32 s3, s3, s47\nv_add_u32 v{VH}, s3, v6")
    A(f"s_mul_i32 s52, s14, {2*KS*1024}")
    A(f"s_mul_i32 s53, s14, {KS*1024}\ns_add_u32 s53, s53, {ACT_SZ}")
    A(f"s_lshl_b32 s54, s14, 10\ns_add_u32 s54, s54, {H_OFF}")
    A("s_mov_b32 s48, 0\ns_mov_b32 s49, 0\ns_mov_b32 s50, 0")
    def issue():
        for u in range(NU):
            A(f"s_add_u32 s55, s50, s53\ns_add_u32 m0, s55, {u*U_SZ}")
            for rgi in range(KS):
                A(f"buffer_load_dwordx4 v{VW+u*KS+rgi}, s[16:19], s49 offen offset:{rgi*1024} lds")
        if g1:
            A("s_add_u32 m0, s50, s54")
            A(f"buffer_load_dwordx4 v{VH}, s[16:19], s49 offen lds")
        for h in range(2):
            A(f"s_add_u32 s55, s50, s52\ns_add_u32 m0, s55, {h*KS*1024}")
            for ks in range(KS):
                A(f"buffer_load_dwordx4 v{4+h}, s[24:27], s48 offen offset:{ks*1024} lds")
        A(f"s_add_u32 s48, s48, {KS*1024}\ns_add_u32 s49, s49, {KS*32*RS}")
        A(f"s_add_u32 s50, s50, {STAGE}\ns_cmp_eq_u32 s50, {3*STAGE}\ns_cselect_b32 s50, 0, s50")
    for _ in range(3): issue()
    A(f"s_waitcnt vmcnt({2*NI})\ns_barrier")
    A(f"s_mov_b32 s51, {NST-3}")
    A(f"{P}_ploop:")
    A(f"s_waitcnt vmcnt({NI})\ns_barrier")
    issue()
    A(f"s_sub_u32 s51, s51, 1\ns_cmp_lg_u32 s51, 0\ns_cbranch_scc1 {P}_ploop")
    A(f"s_waitcnt vmcnt({NI})\ns_barrier")
    A(f"s_waitcnt vmcnt(0)\ns_barrier")
    A("s_barrier")
    A("s_endpgm")
    A.flush_hist()
    A(f"{P}_cons:")
    A("s_and_b32 s15, s14, 1\ns_lshr_b32 s14, s14, 1")
    WM, WN = 15, 14
    A("v_lshrrev_b32 v3, 4, v2\nv_and_b32 v4, 15, v2")
    vA = 5
    A(f"s_mul_i32 s3, s15, {4*KS*1024}\nv_lshlrev_b32 v5, 4, v2\nv_add_u32 v5, s3, v5")
    A("v_lshrrev_b32 v6, 2, v2\nv_and_b32 v6, 7, v6\nv_lshrrev_b32 v7, 1, v6\nv_lshlrev_b32 v7, 5, v7\nv_lshl_add_u32 v7, v6, 7, v7")
    A("v_and_b32 v8, 3, v2\nv_lshl_add_u32 v7, v8, 3, v7\nv_lshrrev_b32 v9, 5, v2\nv_lshl_add_u32 v7, v9, 10, v7")
    VT = 10
    if g1:
        A(f"s_mul_i32 s3, s14, {2*U_SZ}\ns_add_u32 s3, s3, {ACT_SZ}")
        for cb in range(4):
            A(f"v_xor_b32 v{VT+cb}, {cb*32}, v7\nv_add_u32 v{VT+cb}, s3, v{VT+cb}")
        A("s_lshl_b32 s3, s14, 6")
        for e in range(2):
            A(f"v_xor_b32 v{VT+4+e}, s3, v7\nv_xor_b32 v{VT+4+e}, {e*32}, v{VT+4+e}\nv_add_u32 v{VT+4+e}, {ACT_SZ+U_SZ}, v{VT+4+e}")
        A("v_lshrrev_b32 v6, 2, v2\nv_and_b32 v9, 1, v3\nv_xor_b32 v9, s14, v9\nv_lshlrev_b32 v9, 5, v9\nv_lshl_add_u32 v9, v6, 6, v9\nv_lshl_add_u32 v9, v8, 3, v9")
        A(f"v_add_u32 v{VT+6}, {H_OFF}, v9")
        A("s_lshl_b32 s3, s14, 8\ns_add_u32 s56, s46, s3")
        for cb in range(1, 4): A(f"s_add_u32 s{56+cb}, s56, {cb*32}")
        A("s_lshl_b32 s3, s14, 6\ns_add_u32 s60, s46, s3\ns_add_u32 s60, s60, 128\ns_add_u32 s61, s60, 32")
        A("s_lshl_b32 s3, s14, 5\ns_add_u32 s62, s47, s3")
    else:
        A("s_lshl_b32 s3, s14, 6")
        for e in range(2):
            A(f"v_xor_b32 v{VT+e}, s3, v7\nv_xor_b32 v{VT+e}, {e*32}, v{VT+e}\nv_add_u32 v{VT+e}, {ACT_SZ}, v{VT+e}")
        A("s_add_u32 s56, s46, s3\ns_add_u32 s57, s56, 32")
    ACC = 20
    FA = [ACC + 16*NT, ACC + 16*NT + 16]
    FW = [FA[1] + 16, FA[1] + 16 + 4*NT]
    TOP = FW[1] + 4*NT
    A("v_lshlrev_b32 v6, 3, v3")
    BT = FA[1]
    for t in range(NT):
        A(f"buffer_load_dwordx2 v[{FW[1]+2*t}:{FW[1]+2*t+1}], v6, s[20:23], s{56+t} offen")
    if not g1:
        XR = TOP; GB = TOP + 16; TOP = GB + 8
        A("s_lshl_b32 s3, s44, 18\ns_lshl_b32 s58, s15, 17\ns_add_u32 s3, s3, s58")
        A("v_lshlrev_b32 v17, 11, v4\nv_add_u32 v17, v17, v6\nv_add_u32 v17, s3, v17")
        for i in range(4):
            for t in range(2):
                A(f"s_add_u32 s58, s{56+t}, {i*32768}")
                A(f"buffer_load_dwordx2 v[{XR+4*i+2*t}:{XR+4*i+2*t+1}], v17, s[32:35], s58 offen")
        A("v_lshlrev_b32 v18, 4, v3")
        for t in range(2):
            A(f"s_lshl_b32 s58, s{56+t}, 1\ns_add_u32 s58, s58, {5*4096}")
            A(f"buffer_load_dwordx4 v[{GB+4*t}:{GB+4*t+3}], v18, s[36:39], s58 offen")
        A("s_waitcnt vmcnt(10)")
    else:
        A("s_waitcnt vmcnt(0)")
    for t in range(NT):
        a = ACC + 4*t
        lo(A, a, FW[1]+2*t); hi(A, a+1, FW[1]+2*t); lo(A, a+2, FW[1]+2*t+1); hi(A, a+3, FW[1]+2*t+1)
    for i in range(1, 4):
        for t in range(NT):
            for r in range(4): A(f"v_mov_b32 v{ACC+4*(i*NT+t)+r}, v{ACC+4*t+r}")
    def reads(ks, buf):
        L = []
        aa = [f"ds_read_b128 v[{FA[buf]+4*i}:{FA[buf]+4*i+3}], v{vA} offset:{(i*KS+ks)*1024}" for i in range(4)]
        ww = []
        for t in range(NT):
            half = g1 and t == 6
            o0 = ks*2048 if half else ks*4096
            d = 1024 if half else 2048
            ww.append(f"ds_read_b64_tr_b16 v[{FW[buf]+4*t}:{FW[buf]+4*t+1}], v{VT+t} offset:{o0}")
            ww.append(f"ds_read_b64_tr_b16 v[{FW[buf]+4*t+2}:{FW[buf]+4*t+3}], v{VT+t} offset:{o0+d}")
        return aa + ww
    A("s_barrier")
    for l in reads(0, 0): A(l)
    A(f"s_mov_b32 s51, {NST}\ns_mov_b32 s50, 0\ns_mov_b32 s53, {STAGE}")
    A("s_waitcnt lgkmcnt(0)")
    start = len(A.lines)
    A(f"{P}_cloop:")
    for ks in range(KS):
        buf = ks & 1
        extra = []
        if ks == KS - 1:
            A(f"s_add_u32 s50, s50, 1\ns_cmp_eq_u32 s50, 3\ns_cselect_b32 s50, 0, s50\ns_cselect_b32 s52, {-2*STAGE & 0xffffffff}, s53")
            A("s_barrier")
            extra = [f"v_add_u32 v{vA}, s52, v{vA}"] + [f"v_add_u32 v{VT+t}, s52, v{VT+t}" for t in range(NT)]
            rd = reads(0, buf ^ 1)
        else:
            rd = reads(ks + 1, buf ^ 1)
        mf = [f"v_mfma_f32_16x16x32_bf16 v[{ACC+4*(i*NT+t)}:{ACC+4*(i*NT+t)+3}], v[{FW[buf]+4*t}:{FW[buf]+4*t+3}], v[{FA[buf]+4*i}:{FA[buf]+4*i+3}], v[{ACC+4*(i*NT+t)}:{ACC+4*(i*NT+t)+3}]"
              for i in range(4) for t in range(NT)]
        fill = extra + rd
        per = 1 if g1 else 2
        n = 0
        for mi, m in enumerate(mf):
            A(m)
            k = per + (1 if (n < len(extra)) else 0)
            for _ in range(k):
                if n < len(fill): A(fill[n]); n += 1
        while n < len(fill): A(fill[n]); n += 1
        if ks == KS - 1:
            A("s_sub_u32 s51, s51, 1\ns_cmp_lg_u32 s51, 0")
        A("s_waitcnt lgkmcnt(0)")
    A(f"s_cbranch_scc1 {P}_cloop")
    check_loop(A.lines[start:])
    if g1:
        c0 = -2.0 * 1.4426950408889634 * math.sqrt(2.0 / math.pi)
        A(f"s_mov_b32 s52, {f2u(c0):#x}\ns_mov_b32 s53, {f2u(c0*0.044715):#x}")
        A(f"v_mov_b32 v6, s52")
        A(f"s_lshl_b32 s3, s44, 3\ns_lshl_b32 s54, s15, 2\ns_add_u32 s3, s3, s54\ns_mul_i32 s3, s3, {112*1024}")
        A("v_lshlrev_b32 v7, 4, v2\nv_add_u32 v7, s3, v7")
        A("s_lshl_b32 s3, s14, 3\nv_add_u32 v8, s3, v7")
        A("s_lshl_b32 s56, s56, 4\ns_lshl_b32 s58, s58, 4\ns_lshl_b32 s60, s60, 4\ns_lshl_b32 s62, s47, 4")
        T = FA[0]; O = FW[0]
        for i in range(4):
            for pr in range(4):
                tiles = [2*pr, 2*pr+1] if pr < 3 else [6]
                n = 4*len(tiles)
                a = ACC + 4*(i*NT + tiles[0])
                o = O + 4*((i*4+pr) % 4)
                for e in range(n): A(f"v_mul_f32 v{T+e}, v{a+e}, v{a+e}")
                for e in range(n): A(f"v_fma_f32 v{T+e}, v{T+e}, s53, v6")
                for e in range(n): A(f"v_mul_f32 v{T+e}, v{T+e}, v{a+e}")
                for e in range(n): A(f"v_exp_f32 v{T+e}, v{T+e}")
                for e in range(n): A(f"v_add_f32 v{T+e}, 1.0, v{T+e}")
                for e in range(n): A(f"v_rcp_f32 v{T+e}, v{T+e}")
                for e in range(n): A(f"v_mul_f32 v{T+e}, v{T+e}, v{a+e}")
                for e in range(n//2): A(f"v_cvt_pk_bf16_f32 v{o+e}, v{T+2*e}, v{T+2*e+1}")
                A(f"s_add_u32 s3, s{56+2*pr}, {i*112*1024}")
                if pr < 3:
                    A(f"buffer_store_dwordx4 v[{o}:{o+3}], v7, s[28:31], s3 offen")
                else:
                    A(f"buffer_store_dwordx2 v[{o}:{o+1}], v8, s[28:31], s3 offen")
    else:
        T = FA[0]
        A("s_waitcnt vmcnt(0)")
        for i in range(4):
            for t in range(2):
                a = ACC + 4*(i*NT+t); x = XR + 4*i + 2*t
                lo(A, T, x); hi(A, T+1, x); lo(A, T+2, x+1); hi(A, T+3, x+1)
                for r in range(4): A(f"v_fmac_f32 v{T+r}, v{a+r}, v{GB+4*t+r}")
                A(f"v_cvt_pk_bf16_f32 v{x}, v{T}, v{T+1}\nv_cvt_pk_bf16_f32 v{x+1}, v{T+2}, v{T+3}")
                A(f"s_add_u32 s58, s{56+t}, {i*32768}")
                A(f"buffer_store_dwordx2 v[{x}:{x+1}], v17, s[28:31], s58 offen")
    A(f"{P}_done:\ns_endpgm")
    return name, TOP, 3 * STAGE

def build(order=("prep", "conv", "ln", "gemm1", "gemm2")):
    A = Asm()
    ks = {}
    ks["prep"] = k_prep(A) + (256,)
    ks["conv"] = k_conv(A) + (512,)
    ks["ln"] = k_ln(A) + (256,)
    ks["gemm1"] = k_gemm(A, 1) + (512,)
    ks["gemm2"] = k_gemm(A, 2) + (512,)
    head = ["; generated by dev/gen1.py"]
    for o in order:
        n, vg, lds, blk = ks[o]
        head.append(f"; @launch kernel={n} grid=(256,1,1) block=({blk},1,1) lds={lds}")
    head.append('.amdgcn_target "amdgcn-amd-amdhsa--gfx950"')
    head.append(".text")
    tail = ['.section .rodata,"a"']
    for o in ks:
        n, vg, lds, blk = ks[o]
        tail.append(".p2align 6")
        tail.append(descriptor(n, vg))
    return "\n".join(head) + "\n" + A.text() + "\n".join(tail)

if __name__ == "__main__":
    out = sys.argv[1] if len(sys.argv) > 1 else "adaLN_cond__ssm_conv_h3__mixer_channel_mlp__prompt.s"
    open(out, "w").write(build())
```

```python
import sys, math, struct
from asmgen import *

MB = 1 << 20
NAME = "adaLN_cond__ssm_conv_h3__mixer_channel_mlp__prompt_kernel"
F_E, F_S2C, F_S2R, F_GVC, F_GVR, F_MOD = 0, 0x1000, 0x3000, 0x5000, 0x7000, 0x10000
F_S3, F_S4A, F_S4B, F_S5, F_S1 = 0x20000, 0x40000, 0x60000, 0x80000, 0xA0000
WS_KVR, WS_YB, WS_X1, WS_Y2F, WS_HF, WS_PART, WS_ST = 1*MB, 5*MB, 9*MB, 13*MB, 17*MB, 32*MB, 48*MB
P = dict(q=4, k=6, v=8, shift=10, ssmk=12, ssmD=14, w1=18, b1=20, w2=22, b2=24, c=26, wmod=28, out=30, ws=34)
WS = "s[36:39]"
SA_, SB_, SC_ = 40, 44, 48
sWAVE, sN, sCT, sTT, sC0 = 52, 53, 54, 55, 56
sPF, sDUMMY = 16, 32
PS = 4160; WSZ = 4 * PS; L_Q = 4 * WSZ; L_GW = 102400; L_GS = L_GW + 49152
L_KT = 86016; L_VT = L_KT + 17408; L_TB = L_VT + 16384
L_YS = 86016; L_MOD = 135168; L_ST = 155648; LDS_TOTAL = 156672
L_CNT = L_ST + 192
G1_W, G1_WSLOT, G1_A = 0, 28672, 86016
QR = 240
STAMPS = False
OPT = {}
def opt(k, d=0): return OPT.get(k, d)
def asc(): return '' if opt('nosc1') else 'sc1'

def f2u(x): return struct.unpack("<I", struct.pack("<f", x))[0]
def srd(A, d, name, nbytes):
    b = P[name]
    A(f"s_mov_b32 s{d}, s{b}\ns_mov_b32 s{d+1}, s{b+1}\ns_mov_b32 s{d+2}, {nbytes}\ns_mov_b32 s{d+3}, 0x20000")
    return f"s[{d}:{d+3}]"
def lo(A, d, s): A(f"v_lshlrev_b32 v{d}, 16, v{s}")
def hi(A, d, s): A(f"v_and_b32 v{d}, 0xffff0000, v{s}")

NSLOT = 15
XS = {}
def xstamp(A, name):
    if STAMPS and name in XS: A(f"s_memrealtime s[{72+2*XS[name]}:{73+2*XS[name]}]")
    if STAMPS and "c:" + name in XS: A(f"s_memtime s[{72+2*XS['c:'+name]}:{73+2*XS['c:'+name]}]")
def stamp(A, slot):
    xstamp(A, str(slot))
    if STAMPS and (slot == 0 or not XS):
        if slot == 0:
            for i in range(1, NSLOT): A(f"s_mov_b32 s{72+2*i}, 0")
        A(f"s_memrealtime s[{72+2*slot}:{73+2*slot}]")
def stamp_flush(A):
    if not STAMPS: return
    A("s_waitcnt lgkmcnt(0)")
    A(f"s_lshl_b32 s3, s2, 9\ns_lshl_b32 s57, s{sWAVE}, 6\ns_add_u32 s3, s3, s57\ns_add_u32 s3, s3, {WS_ST}")
    A("s_mov_b64 exec, 1\nv_mov_b32 v1, 0")
    for i in range(NSLOT):
        A(f"v_mov_b32 v2, s{72+2*i}")
        A(f"buffer_store_dword v2, v1, {WS}, s3 offen offset:{4*i}")
    A("s_waitcnt vmcnt(0)")

def flag_set(A, soff, vt, vl16):
    for i in range(4): A(f"v_mov_b32 v{vt+i}, s{sN}")
    A("s_mov_b64 exec, 0xff")
    A(f"buffer_store_dwordx4 v[{vt}:{vt+3}], v{vl16}, {WS}, {soff} offen sc1")
    A("s_mov_b64 exec, -1")
def poll(A, vaddr, soff, vt, sleep=0):
    l = A.newlabel("poll"); d = A.newlabel("pdone")
    A("s_mov_b32 s57, 0")
    A(f"{l}:")
    A(f"buffer_load_dword v{vt}, v{vaddr}, {WS}, {soff} offen sc1")
    A("s_waitcnt vmcnt(0)")
    A(f"v_cmp_ne_u32 vcc, s{sN}, v{vt}")
    A("s_nop 1")
    A(f"s_cbranch_vccz {d}")
    if sleep: A(f"s_sleep {sleep}")
    A(f"s_add_u32 s57, s57, 1\ns_cmp_lt_u32 s57, 0x40000\ns_cbranch_scc1 {l}")
    A(f"{d}:")
def arrive(A, cbase, rbase, lcnt, vt, vl16, nw=4):
    d = A.newlabel("arr")
    A(f"v_mov_b32 v{vt}, 1\nv_mov_b32 v{vt+1}, {lcnt}\ns_mov_b64 exec, 1")
    A(f"ds_add_rtn_u32 v{vt+2}, v{vt+1}, v{vt}")
    A(f"s_lshl_b32 s57, s{sCT}, 7\ns_add_u32 s58, s57, {cbase}\ns_add_u32 s59, s57, {rbase}")
    A(f"s_waitcnt lgkmcnt(0)\nv_readfirstlane_b32 s57, v{vt+2}")
    A(f"s_cmp_lg_u32 s57, {nw-1}\ns_cbranch_scc1 {d}")
    A(f"buffer_atomic_add v{vt}, v{vl16}, {WS}, s58 offen sc0 sc1")
    A("s_waitcnt vmcnt(0)")
    A(f"v_readfirstlane_b32 s57, v{vt}")
    A(f"s_sub_u32 s57, s57, s{sC0}\ns_cmp_lg_u32 s57, 15\ns_cbranch_scc1 {d}")
    A("s_mov_b64 exec, -1")
    flag_set(A, "s59", vt, vl16)
    A(f"{d}:")
    A("s_mov_b64 exec, -1")

def stats4(A, X, R):
    for i in range(4):
        A(f"v_add_f32 v{R+i}, v{X+4*i}, v{X+4*i+1}")
        A(f"v_mul_f32 v{R+4+i}, v{X+4*i}, v{X+4*i}")
    for c in (2, 3):
        for i in range(4): A(f"v_add_f32 v{R+i}, v{R+i}, v{X+4*i+c}")
    for c in (1, 2, 3):
        for i in range(4): A(f"v_fmac_f32 v{R+4+i}, v{X+4*i+c}, v{X+4*i+c}")
DPPM = "row_mask:0xf bank_mask:0xf"
def red_part1(A, R, vW, off):
    for e in range(4): A(f"v_permlane32_swap_b32 v{R+e}, v{R+e+4}")
    for e in range(4): A(f"v_add_f32 v{R+e}, v{R+e}, v{R+e+4}")
    for e in range(2): A(f"v_permlane16_swap_b32 v{R+e}, v{R+e+2}")
    for e in range(2): A(f"v_add_f32 v{R+e}, v{R+e}, v{R+e+2}")
    for m in ("row_ror:8", "quad_perm:[1,0,3,2]", "quad_perm:[2,3,0,1]"):
        for e in range(2): A(f"v_add_f32_dpp v{R+e}, v{R+e}, v{R+e} {m} {DPPM}")
    A("s_mov_b32 exec_lo, 0x00110011\ns_mov_b32 exec_hi, 0x00110011")
    A(f"ds_add_f32 v{vW}, v{R} offset:{off}\nds_add_f32 v{vW}, v{R+1} offset:{off+4}")
    A("s_mov_b64 exec, -1")
def red_part2(A, vRd, off, tmp):
    A(f"ds_read2_b32 v[{tmp}:{tmp+1}], v{vRd} offset0:{off//4} offset1:{off//4 + 4}")
    A("s_waitcnt lgkmcnt(0)")
    A(f"v_mul_f32 v{tmp}, {f2u(1/1024):#x}, v{tmp}")
    A(f"v_mul_f32 v{tmp+2}, v{tmp}, v{tmp}")
    A(f"v_mul_f32 v{tmp+1}, {f2u(1/1024):#x}, v{tmp+1}")
    A(f"v_sub_f32 v{tmp+1}, v{tmp+1}, v{tmp+2}")
    A(f"v_max_f32 v{tmp+1}, 0, v{tmp+1}")
    A(f"v_add_f32 v{tmp+1}, {f2u(1e-5):#x}, v{tmp+1}")
    A(f"v_rsq_f32 v{tmp+1}, v{tmp+1}")
def qp(i): return f"quad_perm:[{i},{i},{i},{i}] {DPPM}"
def normalize(A, D, X, st, G=None, S=None):
    for i in range(4):
        for c in range(4): A(f"v_subrev_f32_dpp v{D+4*i+c}, v{st}, v{X+4*i+c} {qp(i)}")
    for i in range(4):
        for c in range(4): A(f"v_mul_f32_dpp v{D+4*i+c}, v{st+1}, v{D+4*i+c} {qp(i)}")
    if G is not None:
        for i in range(4):
            for c in range(0, 4, 2): A(f"v_pk_fma_f32 v[{D+4*i+c}:{D+4*i+c+1}], v[{D+4*i+c}:{D+4*i+c+1}], v[{G+c}:{G+c+1}], v[{S+c}:{S+c+1}]")
LX = 16
LR = 32
vSTW, vSTR, vCG, vHF = 4, 5, 6, 7
def ln_ids(A, cg, hf):
    A(f"v_lshrrev_b32 v{cg}, 3, v0\nv_and_b32 v{hf}, 3, v0\nv_lshl_add_u32 v{cg}, v{cg}, 2, v{hf}\nv_bfe_u32 v{hf}, v0, 2, 1")
def q_addr(A, vt):
    srd(A, SC_, "q", 4*MB)
    ln_ids(A, vt, vt+1)
    A(f"v_lshlrev_b32 v{vt}, 3, v{vt}\nv_lshl_add_u32 v{vt}, v{vt+1}, 13, v{vt}")
    A(f"s_lshl_b32 s3, s2, 14\nv_add_u32 v{vt}, s3, v{vt}\nv_add_u32 v{vt+1}, 4096, v{vt}")
def q_issue(A, vt):
    for i in range(4):
        A(f"buffer_load_dwordx2 v[{QR+2*i}:{QR+2*i+1}], v{vt+i//2}, s[{SC_}:{SC_+3}], 0 offen offset:{(i%2)*2048} nt")
def ln0_part1(A):
    ln_ids(A, vCG, vHF)
    A(f"v_lshrrev_b32 v{vSTW}, 4, v2\nv_lshlrev_b32 v{vSTW}, 3, v{vSTW}\nv_lshl_add_u32 v{vSTW}, v{vHF}, 5, v{vSTW}\nv_add_u32 v{vSTW}, {L_ST}, v{vSTW}")
    A(f"v_and_b32 v{vSTR}, 3, v0\nv_lshlrev_b32 v{vSTR}, 2, v{vSTR}\nv_lshl_add_u32 v{vSTR}, v{vHF}, 5, v{vSTR}\nv_add_u32 v{vSTR}, {L_ST}, v{vSTR}")
    for i in range(4):
        lo(A, LX+4*i, QR+2*i); hi(A, LX+4*i+1, QR+2*i); lo(A, LX+4*i+2, QR+2*i+1); hi(A, LX+4*i+3, QR+2*i+1)
    stats4(A, LX, LR)
    red_part1(A, LR, vSTW, 0)
def sprefetch(A, n, adv):
    for k in range(n): A(f"s_load_dword s{sDUMMY}, s[{sPF}:{sPF+1}], {k*64}")
    A(f"s_add_u32 s{sPF}, s{sPF}, {adv}\ns_addc_u32 s{sPF+1}, s{sPF+1}, 0")

def tile_ids(A, which):
    A("s_and_b32 s57, s2, 7\ns_lshr_b32 s58, s2, 3")
    if which == 1:
        A("s_and_b32 s60, s57, 1\ns_lshl_b32 s60, s60, 3\ns_and_b32 s3, s58, 7\ns_add_u32 s60, s60, s3")
        A("s_lshr_b32 s61, s57, 1\ns_lshl_b32 s61, s61, 2\ns_lshr_b32 s3, s58, 3\ns_add_u32 s61, s61, s3")
        A("s_mul_i32 s62, s61, 448\ns_and_b32 s3, s61, 1\ns_cmp_eq_u32 s3, 0")
        A("s_cselect_b32 s63, 384, 0\ns_cselect_b32 s3, 0, 64\ns_add_u32 s63, s63, s62\ns_add_u32 s62, s62, s3")
    else:
        A("s_lshr_b32 s60, s57, 1\ns_lshl_b32 s60, s60, 2\ns_and_b32 s3, s58, 3\ns_add_u32 s60, s60, s3")
        A("s_and_b32 s61, s57, 1\ns_lshr_b32 s62, s58, 2\ns_lshl_b32 s62, s62, 8\ns_lshl_b32 s3, s61, 7\ns_add_u32 s62, s62, s3\ns_xor_b32 s63, s62, 128")

G1_NST = 16
G1_ASLOT, G1_USZ, G1_HOFF = 16384, 8192, 24576
PVA, PVW = 200, 204
def unit_lane_off(A, t, rs):
    A(f"v_lshrrev_b32 v{t}, 3, v2\nv_lshrrev_b32 v{t+1}, 1, v{t}\nv_lshlrev_b32 v{t+1}, 1, v{t+1}\nv_and_b32 v{t+2}, 7, v2\nv_xor_b32 v{t+1}, v{t+1}, v{t+2}\nv_lshlrev_b32 v{t+1}, 4, v{t+1}")
    A(f"s_movk_i32 s3, {rs}\nv_mul_lo_u32 v{t}, v{t}, s3\nv_add_u32 v{t}, v{t}, v{t+1}")
def g1_prod_setup(A):
    RS = 7168
    A(f"s_sub_u32 s64, s{sWAVE}, 4")
    A(f"s_lshl_b32 s3, s60, 3\ns_lshl_b32 s57, s64, 1\ns_add_u32 s3, s3, s57\ns_lshl_b32 s3, s3, 15\ns_add_u32 s3, s3, {WS_Y2F}")
    A(f"v_lshlrev_b32 v{PVA}, 4, v2\nv_add_u32 v{PVA}, s3, v{PVA}\nv_add_u32 v{PVA+1}, {32*1024}, v{PVA}")
    t = 212
    unit_lane_off(A, t, RS)
    A(f"s_mul_i32 s3, s64, {16*RS}\ns_add_u32 s3, s3, s62\nv_add_u32 v{t}, s3, v{t}")
    for u in range(3):
        for rgi in range(2):
            A(f"v_add_u32 v{PVW+u*2+rgi}, {u*128 + rgi*8*RS - rgi*1024}, v{t}")
    A(f"v_lshrrev_b32 v{t}, 2, v2\nv_bfe_u32 v{t+1}, v2, 4, 1\nv_and_b32 v{t+2}, 3, v2\nv_xor_b32 v{t+1}, v{t+1}, v{t+2}\nv_lshlrev_b32 v{t+1}, 4, v{t+1}")
    A(f"s_movk_i32 s3, {RS}\nv_mul_lo_u32 v{t}, v{t}, s3\nv_add_u32 v{t}, v{t}, v{t+1}")
    A(f"s_mul_i32 s3, s64, {16*RS}\ns_add_u32 s3, s3, s63\nv_add_u32 v{PVW+6}, s3, v{t}")
    A("s_mov_b32 s65, 0\ns_mov_b32 s66, 0")
    A(f"s_lshl_b32 s67, s64, 12\ns_add_u32 s67, s67, {G1_A}")
    A(f"s_lshl_b32 s68, s64, 11")
    A(f"s_lshl_b32 s69, s64, 10\ns_sub_u32 s69, {G1_HOFF}, s69")
    A(f"s_add_u32 s70, s67, {3*G1_ASLOT}\ns_add_u32 s71, s68, {3*G1_WSLOT}")
    srd(A, SA_, "w1", 1024*7168)
def g1_issue_w(A):
    for u in range(3):
        A(f"s_add_u32 m0, s68, {u*G1_USZ}")
        for rgi in range(2):
            A(f"buffer_load_dwordx4 v{PVW+u*2+rgi}, s[{SA_}:{SA_+3}], s66 offen offset:{rgi*1024} lds")
    A("s_add_u32 m0, s68, s69")
    A(f"buffer_load_dwordx4 v{PVW+6}, s[{SA_}:{SA_+3}], s66 offen lds")
    A(f"s_add_u32 s66, s66, {64*7168}")
    A(f"s_add_u32 s68, s68, {G1_WSLOT}\ns_cmp_eq_u32 s68, s71\ns_cselect_b32 s3, {3*G1_WSLOT}, 0\ns_sub_u32 s68, s68, s3")
def g1_issue_a(A):
    for h in range(2):
        A(f"s_add_u32 m0, s67, {h*2048}")
        for ks in range(2):
            A(f"buffer_load_dwordx4 v{PVA+h}, {WS}, s65 offen offset:{ks*1024} {asc()} lds")
    A("s_add_u32 s65, s65, 2048")
    A(f"s_add_u32 s67, s67, {G1_ASLOT}\ns_cmp_eq_u32 s67, s70\ns_cselect_b32 s3, {3*G1_ASLOT}, 0\ns_sub_u32 s67, s67, s3")
def g1_prod_main(A):
    NI = 11
    g1_issue_a(A); g1_issue_a(A); g1_issue_w(A); g1_issue_a(A)
    s2_ = srd(A, SB_, "w2", 3584*2048)
    A("s_mul_i32 s48, s2, 224\ns_mul_i32 s57, s64, 56\ns_add_u32 s48, s48, s57\ns_lshl_b32 s48, s48, 7")
    A("v_min_u32 v50, 55, v2\nv_lshlrev_b32 v50, 7, v50")
    A(f"s_lshr_b32 s49, s2, 3\ns_and_b32 s49, s49, 7\ns_add_u32 s49, s49, {opt('w2at', 3)}")
    A(f"s_waitcnt vmcnt({4+NI})\ns_barrier")
    A("s_mov_b32 s59, 0")
    l = A.newlabel("ploop"); l2 = A.newlabel("pnp")
    A(f"{l}:")
    A(f"s_waitcnt vmcnt({NI})\ns_barrier")
    g1_issue_w(A); g1_issue_a(A)
    if not opt("nopf2"):
        A(f"s_cmp_lg_u32 s59, s49\ns_cbranch_scc1 {l2}")
        A(f"buffer_load_dword v51, v50, {s2_}, s48 offen")
        A(f"{l2}:")
    A(f"s_add_u32 s59, s59, 1\ns_cmp_lg_u32 s59, 13\ns_cbranch_scc1 {l}")
    A(f"s_waitcnt vmcnt({NI})\ns_barrier")
    A(f"s_waitcnt vmcnt(0)\ns_barrier")
    A("s_barrier")

def tr_base(A):
    A("v_lshrrev_b32 v3, 4, v2\nv_and_b32 v4, 15, v2")
    A("v_lshrrev_b32 v6, 2, v2\nv_and_b32 v6, 7, v6\nv_lshrrev_b32 v7, 1, v6\nv_lshlrev_b32 v7, 5, v7\nv_lshl_add_u32 v7, v6, 7, v7")
    A("v_and_b32 v8, 3, v2\nv_lshl_add_u32 v7, v8, 3, v7\nv_lshrrev_b32 v9, 5, v2\nv_lshl_add_u32 v7, v9, 10, v7")
def interleave(A, mf, fill, per):
    n = 0
    for m in mf:
        A(m)
        for _ in range(per(n)):
            if n < len(fill): A(fill[n]); n += 1
    while n < len(fill): A(fill[n]); n += 1

def sched(A, mf, slots):
    for n, m in enumerate(mf):
        A(m)
        for l in slots.get(n, []): A(l)
def align8(A):
    A.raw(".p2align 3")

def g1_consumer(A, st0):
    NT = 7
    tile_ids(A, 1)
    A(f"s_and_b32 s64, s{sWAVE}, 1\ns_lshr_b32 s65, s{sWAVE}, 1")
    tr_base(A)
    vA, VT, TC = 5, 10, 44
    A(f"s_lshl_b32 s3, s64, 13\ns_add_u32 s3, s3, {G1_A}\nv_lshlrev_b32 v5, 4, v2\nv_add_u32 v5, s3, v5")
    A(f"s_lshl_b32 s3, s65, 14")
    for cb in range(4):
        A(f"v_xor_b32 v{VT+cb}, {cb*32}, v7\nv_add_u32 v{VT+cb}, s3, v{VT+cb}")
    A("s_lshl_b32 s3, s65, 6")
    for e in range(2):
        A(f"v_xor_b32 v{VT+4+e}, s3, v7\nv_xor_b32 v{VT+4+e}, {e*32}, v{VT+4+e}\nv_add_u32 v{VT+4+e}, {G1_USZ}, v{VT+4+e}")
    A("v_and_b32 v9, 2, v8\nv_or_b32 v9, s65, v9\nv_and_b32 v6, 1, v3\nv_xor_b32 v9, v9, v6\nv_lshlrev_b32 v9, 4, v9")
    A(f"v_lshrrev_b32 v6, 2, v2\nv_lshl_add_u32 v9, v6, 6, v9\nv_and_b32 v6, 1, v8\nv_lshl_add_u32 v9, v6, 3, v9\nv_add_u32 v{VT+6}, {G1_HOFF}, v9")
    A(f"s_lshl_b32 s3, s65, 8\ns_add_u32 s{TC}, s62, s3")
    for cb in range(1, 4): A(f"s_add_u32 s{TC+cb}, s{TC}, {cb*32}")
    A(f"s_lshl_b32 s3, s65, 6\ns_add_u32 s{TC+4}, s62, s3\ns_add_u32 s{TC+4}, s{TC+4}, 128\ns_add_u32 s{TC+5}, s{TC+4}, 32")
    A(f"s_lshl_b32 s3, s65, 4\ns_add_u32 s{TC+6}, s63, s3")
    ACC = 20
    FA = [ACC + 16*NT, ACC + 16*NT + 16]
    FW = [FA[1] + 16, FA[1] + 16 + 4*NT]
    sb = srd(A, SA_, "b1", 7168)
    A("v_lshlrev_b32 v6, 3, v3\nv_and_b32 v9, 1, v3\nv_lshlrev_b32 v9, 3, v9\nv_lshrrev_b32 v17, 1, v3\nv_lshl_add_u32 v9, v17, 5, v9")
    for t in range(NT):
        A(f"buffer_load_dwordx2 v[{FW[1]+2*t}:{FW[1]+2*t+1}], v{6 if t < 6 else 9}, {sb}, s{TC+t} offen")
    A("s_waitcnt vmcnt(0)")
    for t in range(NT):
        a = ACC + 4*t
        lo(A, a, FW[1]+2*t); hi(A, a+1, FW[1]+2*t); lo(A, a+2, FW[1]+2*t+1); hi(A, a+3, FW[1]+2*t+1)
    for i in range(1, 4):
        for t in range(NT):
            for r in range(4): A(f"v_mov_b32 v{ACC+4*(i*NT+t)+r}, v{ACC+4*t+r}")
    def reads(ks, buf):
        aa = [f"ds_read_b128 v[{FA[buf]+4*i}:{FA[buf]+4*i+3}], v{vA} offset:{(i*2+ks)*1024}" for i in range(4)]
        ww = []
        for t in range(NT):
            o0, d = (ks*2048, 1024) if t == 6 else (ks*4096, 2048)
            ww.append(f"ds_read_b64_tr_b16 v[{FW[buf]+4*t}:{FW[buf]+4*t+1}], v{VT+t} offset:{o0}")
            ww.append(f"ds_read_b64_tr_b16 v[{FW[buf]+4*t+2}:{FW[buf]+4*t+3}], v{VT+t} offset:{o0+d}")
        return aa + ww
    A(f"s_mov_b32 s59, {G1_NST-1}\ns_mov_b32 s58, 1\ns_mov_b32 s66, {G1_ASLOT}\ns_mov_b32 s67, {G1_WSLOT}")
    A(f"s_mov_b32 s70, {-2*G1_ASLOT & 0xffffffff}\ns_mov_b32 s71, {-2*G1_WSLOT & 0xffffffff}\ns_mov_b32 s68, s66\ns_mov_b32 s69, s67")
    A("s_barrier")
    stamp(A, st0)
    for l in reads(0, 0): A(l)
    A("s_waitcnt lgkmcnt(0)")
    align8(A)
    start = len(A.lines)
    lp = A.newlabel("cloop")
    A(f"{lp}:")
    for ks in range(2):
        rd = reads(ks ^ 1, ks ^ 1)
        mf = [f"v_mfma_f32_16x16x32_bf16 v[{ACC+4*(i*NT+t)}:{ACC+4*(i*NT+t)+3}], v[{FW[ks]+4*t}:{FW[ks]+4*t+3}], v[{FA[ks]+4*i}:{FA[ks]+4*i+3}], v[{ACC+4*(i*NT+t)}:{ACC+4*(i*NT+t)+3}]"
              for i in range(4) for t in range(NT)]
        sl = {n: [rd[n]] for n in range(18)}
        if ks == 0:
            ad = [f"v_add_u32 v{vA}, s68, v{vA}"] + [f"v_add_u32 v{VT+t}, s69, v{VT+t}" for t in range(NT)]
            for n in range(4): sl[18+n] = ad[2*n:2*n+2]
            sl[25] = ["s_waitcnt lgkmcnt(0)", "s_barrier"]
        else:
            sl[18] = ["s_add_u32 s58, s58, 1", "s_cmp_eq_u32 s58, 3"]
            sl[19] = ["s_cselect_b32 s58, 0, s58", "s_cselect_b32 s68, s70, s66"]
            sl[20] = ["s_cselect_b32 s69, s71, s67", "s_sub_u32 s59, s59, 1"]
            sl[26] = ["s_waitcnt lgkmcnt(0)", "s_nop 0"]
        sched(A, mf, sl)
    A(f"s_cbranch_scc0 {lp}")
    check_loop(A.lines[start:])
    stamp(A, st0 + 1)
    c0 = -2.0 * 1.4426950408889634 * math.sqrt(2.0 / math.pi)
    A(f"v_mov_b32 v12, {f2u(c0*0.044715):#x}\nv_mov_b32 v13, v12\nv_mov_b32 v14, {f2u(c0):#x}\nv_mov_b32 v15, v14")
    A(f"s_lshl_b32 s3, s60, 3\ns_lshl_b32 s57, s64, 2\ns_add_u32 s3, s3, s57\ns_mul_i32 s3, s3, {112*1024}\ns_add_u32 s3, s3, {WS_HF}")
    A("v_lshlrev_b32 v9, 4, v2\nv_add_u32 v7, s3, v9")
    A(f"v_lshrrev_b32 v8, 5, v2\nv_mul_u32_u24 v8, {112*1024 - 512}, v8\nv_add_u32 v8, v8, v7\ns_lshl_b32 s3, s65, 9\nv_add_u32 v8, s3, v8")
    A(f"s_lshl_b32 s{TC}, s{TC}, 4\ns_lshl_b32 s{TC+2}, s{TC+2}, 4\ns_lshl_b32 s{TC+4}, s{TC+4}, 4\ns_lshl_b32 s{TC+6}, s63, 4")
    A(f"s_lshl_b32 s66, s60, 4\ns_add_u32 s66, s66, s61\ns_lshl_b32 s66, s66, 2\ns_add_u32 s66, s66, s{sWAVE}\ns_lshl_b32 s66, s66, 7")
    A(f"s_add_u32 s67, s66, {F_S4B}\ns_add_u32 s66, s66, {F_S4A}")
    T = FA[0]; O = FW[0]
    def gelu8(srcs, o):
        pr = lambda r: f"v[{r}:{r+1}]"
        for e, a in enumerate(srcs): A(f"v_pk_mul_f32 {pr(T+2*e)}, {pr(a)}, {pr(a)}")
        for e, a in enumerate(srcs): A(f"v_pk_fma_f32 {pr(T+2*e)}, {pr(T+2*e)}, v[12:13], v[14:15]")
        for e, a in enumerate(srcs): A(f"v_pk_mul_f32 {pr(T+2*e)}, {pr(T+2*e)}, {pr(a)}")
        for e in range(8): A(f"v_exp_f32 v{T+e}, v{T+e}")
        for e in range(4): A(f"v_pk_add_f32 {pr(T+2*e)}, {pr(T+2*e)}, 1.0 op_sel_hi:[1,0]")
        for e in range(8): A(f"v_rcp_f32 v{T+e}, v{T+e}")
        for e, a in enumerate(srcs): A(f"v_pk_mul_f32 {pr(T+2*e)}, {pr(T+2*e)}, {pr(a)}")
        for e in range(4): A(f"v_cvt_pk_bf16_f32 v{o+e}, v{T+2*e}, v{T+2*e+1}")
    cnt = 0
    for pr_ in (2, 0, 1):
        for i in range(4):
            a = ACC + 4*(i*NT + 2*pr_)
            o = O + 4*(cnt % 4); cnt += 1
            gelu8([a, a+2, a+4, a+6], o)
            A(f"s_add_u32 s3, s{TC+2*pr_}, {i*112*1024}")
            A(f"buffer_store_dwordx4 v[{o}:{o+3}], v7, {WS}, s3 offen sc1")
            xstamp(A, f"ge{cnt}")
            if cnt == EARLY_AT:
                A(f"s_waitcnt vmcnt({EARLY_AT-4})")
                flag_set(A, "s66", 16, 9)
                A(f"v_mov_b32 v10, {L_CNT+12}\nv_mov_b32 v11, 1\nds_write_b32 v10, v11")
                xstamp(A, "gef")
    for i in (0, 2):
        a = ACC + 4*(i*NT + 6); b = ACC + 4*((i+1)*NT + 6)
        o = O + 4*(cnt % 4); cnt += 1
        gelu8([a, a+2, b, b+2], o)
        A(f"v_permlane32_swap_b32 v{o}, v{o+2}\nv_permlane32_swap_b32 v{o+1}, v{o+3}")
        A(f"s_add_u32 s3, s{TC+6}, {i*112*1024}")
        A(f"buffer_store_dwordx4 v[{o}:{o+3}], v8, {WS}, s3 offen sc1")
    stamp(A, st0 + 2)
EARLY_AT = 8

G2_SLOT = 32768
def g2_unit(s):
    if s < 8: return 7*(s >> 1) + (5 if s & 1 else 1), True
    if s < 24: return 7*((s-8) >> 2) + 2*((s-8) & 3), True
    return 7*(s-24) + 3, False
def g2_producer(A):
    tile_ids(A, 2)
    A(f"s_lshl_b32 s3, s60, 3\ns_lshl_b32 s57, s64, 1\ns_add_u32 s3, s3, s57\ns_mul_i32 s3, s3, {112*1024}\ns_add_u32 s3, s3, {WS_HF}")
    A(f"v_lshlrev_b32 v{PVA}, 4, v2\nv_add_u32 v{PVA}, s3, v{PVA}\nv_add_u32 v{PVA+1}, {112*1024}, v{PVA}")
    t = 212
    unit_lane_off(A, t, 2048)
    A(f"s_lshl_b32 s3, s64, 15\nv_add_u32 v{t}, s3, v{t}")
    A(f"v_add_u32 v{PVW}, s62, v{t}\nv_add_u32 v{PVW+1}, {16384-1024}, v{PVW}\nv_add_u32 v{PVW+2}, s63, v{t}\nv_add_u32 v{PVW+3}, {16384-1024}, v{PVW+2}")
    A(f"s_mul_i32 s65, s61, {28*2048}\ns_mul_i32 s66, s61, {28*131072}")
    A(f"s_lshl_b32 s67, s64, 12\ns_lshl_b32 s68, s64, 11\ns_add_u32 s68, s68, 16384")
    sw = srd(A, SA_, "w2", 3584*2048)
    def iw(s):
        u, p1 = g2_unit(s)
        A(f"s_add_u32 s69, s66, {u*131072}" if p1 else f"s_mov_b32 s69, {u*131072}")
        for un in range(2 if p1 else 1):
            A(f"s_add_u32 m0, s68, {(s & 3)*G2_SLOT + un*8192}")
            for rgi in range(2):
                A(f"buffer_load_dwordx4 v{PVW+2*un+rgi}, {sw}, s69 offen offset:{rgi*1024} lds")
        return 4 if p1 else 2
    def ia(s):
        u, p1 = g2_unit(s)
        A(f"s_add_u32 s70, s65, {u*2048}" if p1 else f"s_mov_b32 s70, {u*2048}")
        for h in range(2):
            A(f"s_add_u32 m0, s67, {(s & 3)*G2_SLOT + h*2048}")
            for ks in range(2):
                A(f"buffer_load_dwordx4 v{PVA+h}, {WS}, s70 offen offset:{ks*1024} {asc()} lds")
        return 4
    for s in range(4): iw(s)
    A(f"v_and_b32 v46, 15, v2\nv_lshlrev_b32 v46, 8, v46\nv_and_b32 v47, 31, v2\nv_lshlrev_b32 v47, 8, v47")
    A(f"s_lshl_b32 s71, s60, 13\ns_lshr_b32 s3, s64, 1\ns_lshl_b32 s3, s3, 7\ns_add_u32 s71, s71, s3\ns_lshl_b32 s3, s61, 12\ns_add_u32 s3, s3, s71\ns_add_u32 s3, s3, {F_S4A}\ns_add_u32 s71, s71, {F_S4B}")
    stamp(A, 11)
    l = A.newlabel("wef")
    A(f"v_mov_b32 v48, {L_CNT+12}")
    A(f"{l}:")
    A(f"s_sleep 2\nds_read_b32 v49, v48\ns_waitcnt lgkmcnt(0)\nv_readfirstlane_b32 s57, v49\ns_cmp_eq_u32 s57, 0\ns_cbranch_scc1 {l}")
    poll(A, 46, "s3", 48, 1)
    stamp(A, 12)
    q = []
    for s in range(4): q.append([s, ia(s)])
    def wait_for(stage):
        n = sum(c for st, c in q if st > stage)
        A(f"s_waitcnt vmcnt({n})")
    wait_for(0); A("s_barrier")
    for s in range(32):
        if s + 1 < 32: wait_for(s + 1)
        A("s_barrier")
        n = s + 4
        if n == 7:
            A(f"buffer_load_dword v48, v47, {WS}, s71 offen sc1"); q.append([6.5, 1])
        if n == 8:
            wait_for(6.5)
            d = A.newlabel("s4ok")
            A(f"v_cmp_ne_u32 vcc, s{sN}, v48\ns_nop 1\ns_cbranch_vccz {d}")
            poll(A, 47, "s71", 48)
            A(f"{d}:")
        if n < 32:
            c = iw(n) + ia(n); q.append([n, c])


def g2_consumer(A, st0):
    ACC, FA, FW, XR, GB, PR, vPL = 20, [84, 100], [116, 132], 148, 164, 172, 204
    tile_ids(A, 2)
    tr_base(A)
    vA, VT, TC = 5, 10, 44
    A(f"s_lshl_b32 s3, s64, 13\nv_lshlrev_b32 v9, 4, v2\nv_add_u32 v5, s3, v9")
    A("s_lshl_b32 s3, s65, 6")
    for e in range(2):
        A(f"v_xor_b32 v{VT+e}, s3, v7\nv_xor_b32 v{VT+e}, {e*32}, v{VT+e}\nv_add_u32 v{VT+e}, 16384, v{VT+e}")
    A(f"s_add_u32 s{TC}, s62, s3\ns_add_u32 s{TC+1}, s{TC}, 32")
    sb = srd(A, SA_, "b2", 2048)
    A("v_lshlrev_b32 v6, 3, v3\nv_lshlrev_b32 v18, 4, v3")
    for t in range(2): A(f"buffer_load_dwordx2 v[{FW[1]+2*t}:{FW[1]+2*t+1}], v6, {sb}, s{TC+t} offen")
    for t in range(2):
        A(f"s_lshl_b32 s3, s{TC+t}, 1\ns_add_u32 s3, s3, {F_MOD + 5*4096}")
        A(f"buffer_load_dwordx4 v[{GB+4*t}:{GB+4*t+3}], v18, {WS}, s3 offen sc1")
    A(f"s_xor_b32 s3, s2, 1\ns_lshl_b32 s3, s3, 2\ns_add_u32 s3, s3, s{sWAVE}\ns_lshl_b32 s46, s3, 13\ns_add_u32 s46, s46, {WS_PART}\ns_lshl_b32 s47, s3, 7\ns_add_u32 s47, s47, {F_S5}")
    A(f"s_lshl_b32 s3, s2, 2\ns_add_u32 s3, s3, s{sWAVE}\ns_lshl_b32 s48, s3, 13\ns_add_u32 s48, s48, {WS_PART}\ns_lshl_b32 s49, s3, 7\ns_add_u32 s49, s49, {F_S5}")
    A("v_mov_b32 v19, 0")
    A("s_waitcnt vmcnt(0)")
    flag_set(A, "s67", 12, 9)
    xstamp(A, "s4b")
    for t in range(2):
        a = ACC + 4*t
        lo(A, a, FW[1]+2*t); hi(A, a+1, FW[1]+2*t); lo(A, a+2, FW[1]+2*t+1); hi(A, a+3, FW[1]+2*t+1)
    for i in range(4):
        for t in range(4):
            if i == 0 and t < 2: continue
            for r in range(4): A(f"v_mov_b32 v{ACC+4*(i*4+t)+r}, " + (f"v{ACC+4*t+r}" if t < 2 else "0"))
    for e in range(8): A(f"v_cvt_pk_bf16_f32 v{GB+e}, v{GB+e}, v{GB+e}\nv_lshlrev_b32 v{GB+e}, 16, v{GB+e}")
    def reads(ks, buf, nt):
        aa = [f"ds_read_b128 v[{FA[buf]+4*i}:{FA[buf]+4*i+3}], v{vA} offset:{(i*2+ks)*1024}" for i in range(4)]
        ww = []
        for t in range(nt):
            o0 = ks*4096 + (t >> 1)*8192
            ww.append(f"ds_read_b64_tr_b16 v[{FW[buf]+4*t}:{FW[buf]+4*t+1}], v{VT+(t&1)} offset:{o0}")
            ww.append(f"ds_read_b64_tr_b16 v[{FW[buf]+4*t+2}:{FW[buf]+4*t+3}], v{VT+(t&1)} offset:{o0+2048}")
        return aa + ww
    def stage_body(nt):
        for ks in range(2):
            rd = reads(ks ^ 1, ks ^ 1, nt)
            mf = [f"v_mfma_f32_16x16x32_bf16 v[{ACC+4*(i*4+t)}:{ACC+4*(i*4+t)+3}], v[{FW[ks]+4*t}:{FW[ks]+4*t+3}], v[{FA[ks]+4*i}:{FA[ks]+4*i+3}], v[{ACC+4*(i*4+t)}:{ACC+4*(i*4+t)+3}]"
                  for i in range(4) for t in range(nt)]
            ad = [f"v_add_u32 v{vA}, s68, v{vA}", f"v_add_u32 v{VT}, s68, v{VT}", f"v_add_u32 v{VT+1}, s68, v{VT+1}", "s_nop 0"]
            sa = ["s_add_u32 s58, s58, 1", "s_and_b32 s58, s58, 3", "s_cselect_b32 s68, s66, s70", "s_sub_u32 s59, s59, 1"]
            ex = ad if ks == 0 else sa
            if nt == 4:
                sl = {0: rd[0:2], 1: rd[2:4], 2: rd[4:6], 3: rd[6:8], 4: rd[8:9], 5: rd[9:10], 6: rd[10:11], 7: rd[11:12], 8: ex[0:2], 9: ex[2:4]}
                sl[14] = ["s_waitcnt lgkmcnt(0)", "s_barrier" if ks == 0 else "s_nop 0"]
            else:
                sl = {0: rd[0:3], 1: rd[3:6], 2: rd[6:8], 3: ex[0:2], 4: ex[2:4]}
                sl[7] = ["s_waitcnt lgkmcnt(0)", "s_barrier"] if ks == 0 else ["s_waitcnt lgkmcnt(0)"]
            sched(A, mf, sl)
    A(f"s_mov_b32 s59, 23\ns_mov_b32 s58, 1\ns_mov_b32 s66, {G2_SLOT}\ns_mov_b32 s68, s66\ns_mov_b32 s70, {-3*G2_SLOT & 0xffffffff}")
    A(f"s_lshl_b32 s3, s60, 18\ns_lshl_b32 s57, s64, 17\ns_add_u32 s3, s3, s57")
    A("v_lshlrev_b32 v17, 11, v4\nv_add_u32 v17, v17, v6\nv_add_u32 v17, s3, v17")
    A("v_lshrrev_b32 v16, 1, v4\nv_lshlrev_b32 v16, 12, v16\nv_add_u32 v16, v16, v18\nv_and_b32 v15, 1, v4\nv_lshl_add_u32 v16, v15, 3, v16\nv_add_u32 v16, s3, v16")
    A("s_barrier")
    stamp(A, st0)
    for l in reads(0, 0, 4): A(l)
    for i in range(4):
        for t in range(2):
            A(f"s_lshl_b32 s57, s{TC+t}, 1\ns_add_u32 s57, s57, {WS_X1 + i*32768}")
            A(f"buffer_load_dwordx2 v[{XR+4*i+2*t}:{XR+4*i+2*t+1}], v16, {WS}, s57 offen sc1")
    A("s_waitcnt lgkmcnt(0)")
    align8(A)
    start = len(A.lines)
    lp = A.newlabel("c2a")
    A(f"{lp}:")
    stage_body(4)
    A(f"s_cbranch_scc0 {lp}")
    check_loop(A.lines[start:])
    xstamp(A, "g2p1")
    for i in range(4):
        for t in range(2):
            a = ACC + 4*(i*4+2+t); j = i*2 + t
            A(f"buffer_store_dwordx4 v[{a}:{a+3}], v9, {WS}, s46 offen offset:{(j & 3)*1024} sc1")
            if j == 3: A("s_add_u32 s46, s46, 4096")
    xstamp(A, "g2st")
    A("s_mov_b32 s59, 7")
    start = len(A.lines)
    lp = A.newlabel("c2b"); l1 = A.newlabel("c2x"); l2 = A.newlabel("c2y"); l3 = A.newlabel("c2z")
    A(f"{lp}:")
    A(f"s_cmp_lg_u32 s59, 5\ns_cbranch_scc1 {l1}")
    A("s_waitcnt vmcnt(0)")
    flag_set(A, "s47", 12, 9)
    A(f"{l1}:")
    A(f"s_cmp_lg_u32 s59, 3\ns_cbranch_scc1 {l2}")
    A(f"buffer_load_dword v{vPL}, v19, {WS}, s49 offen sc1")
    A(f"{l2}:")
    A(f"s_cmp_lg_u32 s59, 1\ns_cbranch_scc1 {l3}")
    d = A.newlabel("s5ok")
    A(f"s_waitcnt vmcnt(0)\nv_cmp_ne_u32 vcc, s{sN}, v{vPL}\ns_nop 1\ns_cbranch_vccz {d}")
    poll(A, 19, "s49", vPL)
    A(f"{d}:")
    for j in range(8):
        A(f"buffer_load_dwordx4 v[{PR+4*j}:{PR+4*j+3}], v9, {WS}, s48 offen offset:{(j & 3)*1024} sc1")
        if j == 3: A("s_add_u32 s48, s48, 4096")
    A(f"{l3}:")
    stage_body(2)
    A(f"s_cbranch_scc0 {lp}")
    check_loop(A.lines[start:])
    stamp(A, st0 + 1)
    so = srd(A, SA_, "out", 4*MB)
    T = FA[0]
    A("s_waitcnt vmcnt(0)")
    for i in range(4):
        for t in range(2):
            a = ACC + 4*(i*4+t); x = XR + 4*i + 2*t; p = PR + 4*(i*2+t)
            lo(A, T, x); hi(A, T+1, x); lo(A, T+2, x+1); hi(A, T+3, x+1)
            for r in range(4): A(f"v_add_f32 v{a+r}, v{a+r}, v{p+r}")
            for r in range(4): A(f"v_fmac_f32 v{T+r}, v{a+r}, v{GB+4*t+r}")
            A(f"v_cvt_pk_bf16_f32 v{x}, v{T}, v{T+1}\nv_cvt_pk_bf16_f32 v{x+1}, v{T+2}, v{T+3}")
            A(f"s_add_u32 s3, s{TC+t}, {i*32768}")
            A(f"buffer_store_dwordx2 v[{x}:{x+1}], v17, {so}, s3 offen")

def kernel(A):
    kernel_begin(A, NAME)
    A("s_cmp_ge_u32 s2, 256\ns_cbranch_scc1 L_exit")
    A("s_load_dwordx16 s[4:19], s[0:1], 0\ns_load_dwordx16 s[20:35], s[0:1], 64")
    stamp(A, 0)
    A("v_lshrrev_b32 v1, 6, v0\nv_and_b32 v2, 63, v0")
    A(f"v_readfirstlane_b32 s{sWAVE}, v1")
    A(f"s_lshr_b32 s{sCT}, s2, 4\ns_and_b32 s{sTT}, s2, 15")
    A("v_lshrrev_b32 v3, 3, v2\nv_bfe_u32 v4, v2, 4, 1\nv_and_b32 v5, 7, v2\nv_xor_b32 v4, v4, v5\nv_lshlrev_b32 v4, 4, v4\nv_lshl_add_u32 v4, v3, 11, v4")
    A(f"s_lshl_b32 s3, s{sTT}, 18\ns_lshl_b32 s57, s{sCT}, 7\ns_add_u32 s3, s3, s57")
    A(f"s_lshl_b32 s57, s{sWAVE}, 15\ns_add_u32 s57, s57, s3")
    A(f"s_and_b32 s58, s{sWAVE}, 1\ns_lshl_b32 s58, s58, 6")
    A("v_xor_b32 v5, s58, v4\nv_add_u32 v5, s57, v5")
    A("v_xor_b32 v6, 32, v5")
    A("v_add_u32 v16, 15360, v6")
    A("v_xor_b32 v17, 64, v5\nv_add_u32 v17, 15360, v17")
    A(f"s_sub_u32 s3, s3, 16384\ns_cmp_eq_u32 s{sTT}, 0\ns_cselect_b32 s3, 0x80000000, s3\nv_add_u32 v7, s3, v4")
    A(f"s_lshl_b32 s59, s{sCT}, 7")
    A(f"s_cmp_lt_u32 s{sWAVE}, 4\ns_movk_i32 s58, {F_GVC}\ns_cselect_b32 s58, {F_S2C}, s58\ns_add_u32 s59, s59, s58")
    A("v_and_b32 v8, 15, v2\nv_lshrrev_b32 v9, 4, v2\nv_lshlrev_b32 v11, 4, v2")
    vL16 = 11
    A("v_and_b32 v10, 1, v9\nv_and_b32 v14, 3, v2\nv_lshl_add_u32 v10, v10, 2, v14\nv_lshlrev_b32 v10, 3, v10")
    A(f"v_lshlrev_b32 v14, 2, v2\nv_add_u32 v14, {L_ST}, v14\nv_mov_b32 v15, 0\nds_write_b32 v14, v15")
    A(f"s_lshl_b32 s60, s2, 2\ns_add_u32 s60, s60, s{sWAVE}\ns_and_b32 s60, s60, 1023")
    A("s_lshl_b32 s63, s60, 1\ns_and_b32 s63, s63, 0x7fc")
    A("s_waitcnt lgkmcnt(0)")
    sk = srd(A, SA_, "k", 4*MB); sv = srd(A, SB_, "v", 4*MB)
    A(f"s_cmp_lg_u32 s{sWAVE}, 0\ns_cbranch_scc1 L_nohalo")
    A(f"s_mov_b32 m0, {L_KT}")
    A(f"buffer_load_dwordx4 v7, {sk}, 0 offen nt lds")
    A("L_nohalo:")
    A(f"s_lshl_b32 s3, s{sWAVE}, 11\ns_add_u32 m0, s3, {L_KT+1024}")
    A(f"buffer_load_dwordx4 v6, {sk}, 0 offen nt lds\nbuffer_load_dwordx4 v17, {sk}, 0 offen offset:1024 nt lds")
    A(f"s_add_u32 m0, s3, {L_VT}")
    A(f"buffer_load_dwordx4 v5, {sv}, 0 offen nt lds\nbuffer_load_dwordx4 v16, {sv}, 0 offen offset:1024 nt lds")
    A(f"s_load_dword s{sN}, s[34:35], {F_E}\ns_load_dword s{sC0}, s[34:35], s59\ns_load_dword s33, s[{P['ssmD']}:{P['ssmD']+1}], s63")
    A(f"s_mov_b32 s36, s34\ns_mov_b32 s37, s35\ns_mov_b32 s38, {64*MB}\ns_mov_b32 s39, 0x20000")
    ss = srd(A, SC_, "shift", 8192)
    A(f"s_lshl_b32 s3, s{sWAVE}, 6\ns_lshl_b32 s57, s{sCT}, 9\ns_add_u32 s3, s3, s57")
    A(f"buffer_load_dwordx2 v[12:13], v10, {ss}, s3 offen")
    A(f"s_mul_i32 s61, s{sWAVE}, {WSZ}\ns_lshl_b32 s62, s60, 12")
    sp = srd(A, SA_, "ssmk", 4*MB); sc = srd(A, SB_, "c", 2048)
    A("s_getpc_b64 s[64:65]")
    A("L_pc:")
    A(f"s_lshr_b32 s3, s2, 3\ns_and_b32 s3, s3, 31\ns_lshl_b32 s3, s3, 10\nv_and_b32 v14, 7, v2\nv_lshlrev_b32 v14, 7, v14\nv_add_u32 v14, s3, v14\nv_min_u32 v14, L_end-L_pc-4, v14")
    A(f"v_lshlrev_b32 v15, 2, v2\ns_and_b32 s3, s{sTT}, 7\ns_lshl_b32 s3, s3, 8")
    xstamp(A, "iss")
    A("s_barrier")
    A(f"s_cmp_ge_u32 s{sWAVE}, 4\ns_cbranch_scc1 L_b0")
    A("s_add_u32 m0, s61, 32")
    for i in range(4): A(f"buffer_load_dwordx4 v{vL16}, {sp}, s62 offen offset:{i*1024} nt lds")
    A("s_waitcnt vmcnt(4)")
    A("s_branch L_c0")
    A("L_b0:")
    A(f"buffer_load_dword v220, v15, {sc}, s3 offen")
    A("global_load_dword v221, v14, s[64:65]")
    A("s_waitcnt vmcnt(2)")
    A("L_c0:")
    A.flush_hist()
    xstamp(A, "kv")
    A("v_bfe_u32 v16, v2, 2, 2\nv_and_b32 v17, 3, v2\nv_lshrrev_b32 v18, 1, v16")
    A(f"v_xor_b32 v18, s{sWAVE}, v18")
    A("v_lshrrev_b32 v19, 1, v9\nv_lshl_add_u32 v20, v19, 3, v17\nv_lshlrev_b32 v20, 10, v20\nv_lshl_add_u32 v20, v16, 7, v20")
    A(f"v_and_b32 v21, 1, v9\nv_lshl_add_u32 v20, v21, 3, v20\nv_add_u32 v20, {L_KT}, v20")
    A("v_lshlrev_b32 v22, 1, v17\nv_xor_b32 v22, v22, v18\nv_lshl_add_u32 v22, v22, 4, v20")
    A("v_add_u32 v23, 1, v17\nv_and_b32 v23, 3, v23\nv_lshlrev_b32 v23, 1, v23\nv_xor_b32 v23, v23, v18\nv_lshl_add_u32 v23, v23, 4, v20")
    A("v_lshl_add_u32 v24, v19, 3, v16\nv_sub_u32 v24, 11, v24\nv_lshlrev_b32 v24, 6, v24\nv_lshl_add_u32 v24, v17, 4, v24\nv_lshl_add_u32 v24, v21, 14, v24")
    A(f"s_lshl_b32 s3, s{sCT}, 18\ns_lshl_b32 s57, s{sWAVE}, 15\ns_add_u32 s3, s3, s57\ns_lshl_b32 s57, s{sTT}, 10\ns_sub_u32 s3, s3, s57\ns_add_u32 s58, s3, {WS_KVR + 240*64}")
    WF = 26
    lo(A, WF, 12); hi(A, WF+1, 12); lo(A, WF+2, 13); hi(A, WF+3, 13)
    A("s_waitcnt lgkmcnt(0)")
    A(f"s_mul_i32 s{sN}, s{sN}, 0x9E3779B1\ns_add_u32 s{sN}, s{sN}, 0x7F4A7C15")
    A(f"s_lshl_b32 s59, s2, 3\ns_add_u32 s59, s59, s{sWAVE}\ns_lshl_b32 s59, s59, 7\ns_add_u32 s59, s59, {F_S1}")
    stamp(A, 1)
    A("s_barrier")
    KP, VP, KF, T, O = 32, 44, 52, 64, 72
    for e in range(2):
        A(f"ds_read_b64_tr_b16 v[{KP+6*e}:{KP+6*e+1}], v22 offset:{e*4096 + 512}")
        A(f"ds_read_b64_tr_b16 v[{KP+6*e+2}:{KP+6*e+3}], v23 offset:{e*4096 + 1024}")
        A(f"ds_read_b64_tr_b16 v[{KP+6*e+4}:{KP+6*e+5}], v23 offset:{e*4096 + 1536}")
        A(f"ds_read_b64_tr_b16 v[{VP+4*e}:{VP+4*e+1}], v22 offset:{17408 + e*4096}")
        A(f"ds_read_b64_tr_b16 v[{VP+4*e+2}:{VP+4*e+3}], v22 offset:{17408 + e*4096 + 512}")
    for e in range(2):
        A(f"s_waitcnt lgkmcnt({7 - 5*e})")
        for j in range(11):
            (hi if j % 2 == 0 else lo)(A, KF+j, KP + 6*e + (j+1)//2)
        for i in range(8): A(f"v_mul_f32 v{T+i}, v{WF+3}, v{KF+i}")
        for j in (2, 1, 0):
            for i in range(8): A(f"v_fmac_f32 v{T+i}, v{WF+j}, v{KF+i+3-j}")
        A(f"s_waitcnt lgkmcnt({5 - 5*e})")
        for i in range(8): (lo if i % 2 == 0 else hi)(A, KF+i, VP + 4*e + i//2)
        for i in range(8): A(f"v_mul_f32 v{T+i}, v{T+i}, v{KF+i}")
        for x in range(4): A(f"v_cvt_pk_bf16_f32 v{O+4*e+x}, v{T+7-2*x}, v{T+6-2*x}")
        A(f"buffer_store_dwordx4 v[{O+4*e}:{O+4*e+3}], v24, {WS}, s58 offen offset:{256*(1-e)} sc1")
    xstamp(A, "kst")
    A(f"s_and_b32 s3, s{sTT}, 7\ns_or_b32 s3, s3, s{sWAVE}\ns_cmp_lg_u32 s3, 0\ns_cbranch_scc1 L_nozero")
    A(f"s_lshr_b32 s3, s2, 3\ns_mul_i32 s3, s3, 768\ns_add_u32 s3, s3, {F_MOD}")
    A("v_mov_b32 v48, 0\nv_mov_b32 v49, 0\nv_mov_b32 v50, 0\nv_mov_b32 v51, 0")
    A("s_mov_b32 exec_lo, -1\ns_mov_b32 exec_hi, 0xffff")
    A(f"buffer_store_dwordx4 v[48:51], v{vL16}, {WS}, s3 offen sc1")
    A("s_mov_b64 exec, -1")
    A("L_nozero:")
    A.flush_hist()
    A("s_waitcnt vmcnt(0)")
    flag_set(A, "s59", 52, vL16)
    stamp(A, 2)
    A(f"s_cmp_ge_u32 s{sWAVE}, 4\ns_cbranch_scc1 L_b1")
    X, Y = 192, 208
    A(f"v_add_u32 v41, s61, v{vL16}")
    for i in range(4):
        A(f"ds_read_b128 v[{X+4*i}:{X+4*i+3}], v41 offset:{32+i*1024}")
        A(f"ds_read_b64 v[{Y+2*i}:{Y+2*i+1}], v41 offset:{48+i*1024}")
    A("v_add_u32 v42, v9, v8\nv_lshlrev_b32 v40, 1, v42\nv_add_u32 v40, s61, v40\nds_read_u16 v216, v40")
    A(f"v_cmp_lt_u32 vcc, 15, v42\nv_mul_u32_u24 v40, {PS}, v9\nv_lshl_add_u32 v40, v8, 1, v40\nv_add_u32 v40, s61, v40")
    A(f"v_mov_b32 v14, 0\nv_mov_b32 v15, 0\nv_lshlrev_b32 v13, 3, v0\nv_add_u32 v13, {L_Q+16384}, v13")
    for i in range(4):
        a = [X+4*i, X+4*i+1, X+4*i+2, X+4*i+3, Y+2*i, Y+2*i+1]
        c1 = 112 + 12*i; c2 = c1 + 4; c3 = c1 + 8
        if i == 0: A("s_waitcnt lgkmcnt(0)")
        for j in range(4): A(f"v_alignbit_b32 v{c1+j}, v{a[j+1]}, v{a[j]}, 16")
        A(f"ds_write_b128 v41, v[{c1}:{c1+3}] offset:{PS+32+i*1024}")
        for j in range(4): A(f"v_mov_b32 v{c2+j}, v{a[j+1]}")
        A(f"ds_write_b128 v41, v[{c2}:{c2+3}] offset:{2*PS+32+i*1024}")
        for j in range(4): A(f"v_alignbit_b32 v{c3+j}, v{a[j+2]}, v{a[j+1]}, 16")
        A(f"ds_write_b128 v41, v[{c3}:{c3+3}] offset:{3*PS+32+i*1024}")
    A("v_cndmask_b32 v216, 0, v216, vcc\nds_write_b16 v40, v216")
    A("ds_write_b64 v13, v[14:15]")
    A("s_and_b32 s3, s60, 1\ns_lshl_b32 s57, s33, 16\ns_and_b32 s33, s33, 0xffff0000\ns_cmp_eq_u32 s3, 0\ns_cselect_b32 s33, s57, s33")
    A(f"v_add_u32 v42, 1, v8\nv_and_b32 v43, 3, v42\nv_mul_u32_u24 v43, {PS}, v43\nv_lshrrev_b32 v42, 2, v42")
    A("v_lshl_add_u32 v43, v42, 3, v43\nv_lshl_add_u32 v43, v9, 4, v43\nv_add_u32 v43, s61, v43")
    vP, vQ, vE, vS = 43, [44, 45], 47, 46
    A("v_lshlrev_b32 v48, 1, v8\nv_sub_u32 v48, 30, v48\nv_add_u32 v48, v48, v9\nv_lshrrev_b32 v49, 2, v48")
    for rho in range(2):
        A(f"v_add_u32 v50, {rho}, v49\nv_and_b32 v50, 3, v50\nv_xor_b32 v50, s{sWAVE}, v50\nv_lshlrev_b32 v50, 4, v50\nv_lshl_add_u32 v50, v48, 6, v50\nv_add_u32 v{vQ[rho]}, {L_Q}, v50")
    A("v_lshrrev_b32 v48, 1, v9\nv_lshl_add_u32 v48, v8, 1, v48\nv_sub_u32 v48, 31, v48\nv_bfe_u32 v49, v48, 2, 2")
    A(f"v_xor_b32 v49, s{sWAVE}, v49\nv_lshlrev_b32 v49, 4, v49\nv_lshl_add_u32 v49, v48, 6, v49\nv_and_b32 v50, 1, v9\nv_lshlrev_b32 v50, 3, v50\nv_sub_u32 v49, v49, v50\nv_add_u32 v{vE}, {L_Q+8}, v49")
    A(f"s_lshr_b32 s3, s{sWAVE}, 1\nv_lshl_add_u32 v46, v9, 1, s3\nv_and_b32 v48, 7, v8\nv_xor_b32 v46, v46, v48\nv_lshlrev_b32 v46, 4, v46")
    A(f"v_lshl_add_u32 v46, v8, 7, v46\ns_and_b32 s3, s{sWAVE}, 1\ns_lshl_b32 s3, s3, 3\ns_add_u32 s3, s3, {L_YS}\nv_add_u32 v46, s3, v46")
    ACC = 80; FA = [112, 176]; FB = [144, 208]; KE = 64
    def reads(r, buf):
        La, Lb = [], []
        for i in range(8):
            Lb.append(f"ds_read_b128 v[{FB[buf]+4*i}:{FB[buf]+4*i+3}], v{vQ[r & 1]} offset:{256*r + 2048*(7-i)}")
            La.append(f"ds_read_b64 v[{FA[buf]+4*i}:{FA[buf]+4*i+1}], v{vP} offset:{512*i + 64*r}")
            La.append(f"ds_read_b64 v[{FA[buf]+4*i+2}:{FA[buf]+4*i+3}], v{vP} offset:{512*i + 64*r + 8}")
        return La, Lb
    La, Lb = reads(0, 0)
    A("s_waitcnt lgkmcnt(0)")
    for l in La: A(l)
    for e in range(32): A(f"v_mov_b32 v{ACC+e}, 0")
    q_addr(A, 48)
    A("s_mov_b32 s59, 3")
    stamp(A, 3)
    A("s_waitcnt lgkmcnt(0)\ns_barrier")
    for l in Lb: A(l)
    for q in range(8): A(f"ds_read_b64 v[{KE+2*q}:{KE+2*q+1}], v{vE} offset:{2048*(7-q)}")
    q_issue(A, 48)
    A("s_waitcnt lgkmcnt(8)")
    stamp(A, 4)
    align8(A)
    start = len(A.lines)
    A("L_conv:")
    for r in range(2):
        if r == 0:
            La, Lb = reads(1, 1)
            tail = [[f"v_xor_b32 v{vQ[0]}, 32, v{vQ[0]}", f"v_xor_b32 v{vQ[1]}, 32, v{vQ[1]}"],
                    [f"v_add_u32 v{vQ[0]}, 512, v{vQ[0]}"], [f"v_add_u32 v{vQ[1]}, 512, v{vQ[1]}"], [f"v_add_u32 v{vP}, 128, v{vP}"]]
        else:
            La, Lb = reads(0, 0)
            tail = [["s_sub_u32 s59, s59, 1", "s_nop 0"]]
        nxt = [[x] for x in Lb + La] + tail
        mf = [f"v_mfma_f32_16x16x32_bf16 v[{ACC+4*(i+j)}:{ACC+4*(i+j)+3}], v[{FA[r]+4*i}:{FA[r]+4*i+3}], v[{FB[r]+4*j}:{FB[r]+4*j+3}], v[{ACC+4*(i+j)}:{ACC+4*(i+j)+3}]"
              for i in range(8) for j in range(8 - i)]
        sl = {n: x for n, x in enumerate(nxt)}
        sl[34] = ["s_waitcnt lgkmcnt(0)", "s_nop 0"]
        sched(A, mf, sl)
    A("s_cbranch_scc0 L_conv")
    check_loop(A.lines[start:])
    stamp(A, 5)
    T = 48
    for q in range(8):
        e = KE + 2*q
        hi(A, T+0, e+1); lo(A, T+1, e+1); hi(A, T+2, e); lo(A, T+3, e)
        for r in range(4): A(f"v_fmac_f32 v{ACC+4*q+r}, s33, v{T+r}")
        A(f"v_cvt_pk_bf16_f32 v{e}, v{ACC+4*q}, v{ACC+4*q+1}\nv_cvt_pk_bf16_f32 v{e+1}, v{ACC+4*q+2}, v{ACC+4*q+3}")
        A(f"ds_write_b64 v{vS}, v[{e}:{e+1}] offset:{q*2048}")
    A(f"v_mov_b32 v52, {L_CNT}\nv_mov_b32 v53, 1\ns_waitcnt lgkmcnt(0)\ns_mov_b64 exec, 1\nds_add_u32 v52, v53\ns_mov_b64 exec, -1")
    A(f"v_lshrrev_b32 v48, 3, v2\nv_and_b32 v49, 7, v2\nv_xor_b32 v50, v48, v49\nv_lshlrev_b32 v50, 4, v50\nv_lshl_add_u32 v50, v48, 7, v50")
    A(f"s_lshl_b32 s3, s{sWAVE}, 12\ns_add_u32 s3, s3, {L_YS}\nv_add_u32 v50, s3, v50")
    A("v_lshrrev_b32 v51, 2, v49\nv_lshl_add_u32 v51, v48, 1, v51\nv_lshlrev_b32 v51, 14, v51\nv_and_b32 v49, 3, v49\nv_lshl_add_u32 v51, v49, 4, v51")
    A(f"s_lshl_b32 s3, s{sWAVE}, 20\ns_lshl_b32 s57, s2, 6\ns_add_u32 s3, s3, s57\ns_add_u32 s3, s3, {WS_YB}")
    A("L_rv:")
    A("ds_read_b32 v53, v52\ns_waitcnt lgkmcnt(0)\nv_readfirstlane_b32 s57, v53\ns_cmp_lt_u32 s57, 4\ns_cbranch_scc1 L_rv")
    for i in range(4): A(f"ds_read_b128 v[{64+4*i}:{67+4*i}], v50 offset:{i*1024}")
    for i in range(4):
        A(f"s_waitcnt lgkmcnt({3-i})")
        A(f"buffer_store_dwordx4 v[{64+4*i}:{67+4*i}], v51, {WS}, s3 offen sc1")
        if i < 3: A(f"s_add_u32 s3, s3, {8*2*16384}")
    xstamp(A, "ys")
    A("s_waitcnt vmcnt(4)")
    ln0_part1(A)
    A("s_waitcnt vmcnt(0)")
    xstamp(A, "yd")
    arrive(A, F_S2C, F_S2R, L_CNT+4, 52, vL16)
    stamp(A, 6)
    A(f"s_cmp_lg_u32 s{sWAVE}, 0\ns_cbranch_scc1 L_ln")
    A(f"v_lshlrev_b32 v47, 7, v8\ns_movk_i32 s3, {F_S2R}")
    poll(A, 47, "s3", 48)
    xstamp(A, "s2p")
    A("s_branch L_ln")
    A.flush_hist()
    A("L_b1:")
    A(f"s_cmp_lg_u32 s{sWAVE}, 7\ns_cbranch_scc1 L_b1g")
    A(f"s_lshr_b32 s3, s{sTT}, 1\ns_lshl_b32 s3, s3, 7\nv_and_b32 v47, 1, v9\nv_subrev_u32 v47, 1, v47\nv_and_b32 v47, s3, v47\nv_lshl_add_u32 v47, v8, 10, v47")
    A("v_and_b32 v46, 3, v2\nv_xor_b32 v46, v46, v9\nv_lshlrev_b32 v46, 4, v46\nv_lshrrev_b32 v45, 2, v2\nv_lshl_add_u32 v46, v45, 6, v46")
    A(f"s_lshl_b32 s3, s{sCT}, 14\ns_add_u32 s3, s3, {F_S1}\ns_lshl_b32 s58, s2, 14\ns_add_u32 s58, s58, {WS_KVR}")
    poll(A, 47, "s3", 48)
    xstamp(A, "s1p")
    for w in range(4):
        A(f"s_mov_b32 m0, {L_Q + w*4096}")
        for i in range(4): A(f"buffer_load_dwordx4 v46, {WS}, s58 offen offset:{i*1024} sc1 lds")
        if w < 3: A("s_add_u32 s58, s58, 4096")
    tile_ids(A, 1)
    g1_prod_setup(A)
    q_addr(A, 48)
    A("s_lshr_b32 s58, s2, 3\ns_lshl_b32 s58, s58, 1\ns_and_b32 s57, s2, 1\ns_add_u32 s58, s58, s57\ns_mul_i32 s58, s58, 7168")
    A(f"s_lshr_b32 s57, s61, 2\ns_mul_i32 s57, s57, 1792\ns_add_u32 s58, s58, s57\ns_add_u32 s{sPF}, s{P['w1']}, s58\ns_addc_u32 s{sPF+1}, s{P['w1']+1}, 0")
    A("s_waitcnt vmcnt(0)\ns_barrier")
    A("s_sleep 8")
    q_issue(A, 48)
    if opt("pf0", 4):
        A(f"s_mov_b32 s59, {opt('pf0', 4)}")
        A("L_pf0:")
        sprefetch(A, 28, 64*7168)
        A("s_sub_u32 s59, s59, 1\ns_cmp_lg_u32 s59, 0\ns_cbranch_scc1 L_pf0")
    xstamp(A, "bp")
    A("s_waitcnt vmcnt(0)")
    ln0_part1(A)
    A("s_branch L_b1m")
    A.flush_hist()
    A("L_b1g:")
    tile_ids(A, 1)
    g1_prod_setup(A)
    A(f"s_mov_b32 s3, {f2u(-1.4426950408889634):#x}")
    lo(A, 16, 220); hi(A, 17, 220)
    for i in range(2): A(f"v_mul_f32 v{18+i}, s3, v{16+i}")
    for i in range(2): A(f"v_exp_f32 v{18+i}, v{18+i}")
    for i in range(2): A(f"v_add_f32 v{18+i}, 1.0, v{18+i}")
    for i in range(2): A(f"v_rcp_f32 v{18+i}, v{18+i}")
    for i in range(2): A(f"v_mul_f32 v{18+i}, v{18+i}, v{16+i}")
    A("v_cvt_pk_bf16_f32 v18, v18, v19")
    A(f"s_lshl_b32 s58, s64, 9\ns_add_u32 s58, s58, {L_GS}\nv_lshlrev_b32 v20, 2, v2\nv_add_u32 v21, s58, v20\nds_write_b32 v21, v18")
    A("v_lshlrev_b32 v22, 3, v9\nv_add_u32 v22, s58, v22")
    SF, GA, GW = 64, 80, 96
    for kb in range(4):
        A(f"ds_read_b64 v[{SF+4*kb}:{SF+4*kb+1}], v22 offset:{kb*64}\nds_read_b64 v[{SF+4*kb+2}:{SF+4*kb+3}], v22 offset:{kb*64+32}")
    unit_lane_off(A, 24, 12288)
    for k in range(1, 4): A(f"v_add_u32 v{24+k}, {k*(8*12288 - 1024)}, v24")
    A(f"s_and_b32 s3, s{sTT}, 7\ns_mul_i32 s3, s3, {128*12288}\ns_lshr_b32 s57, s2, 3\ns_mul_i32 s57, s57, 384\ns_add_u32 s3, s3, s57\ns_lshl_b32 s57, s64, 7\ns_add_u32 s48, s3, s57")
    A(f"s_lshl_b32 s49, s64, 14\ns_add_u32 s49, s49, {L_GW}")
    A("v_lshrrev_b32 v28, 2, v2\nv_and_b32 v28, 7, v28\nv_lshrrev_b32 v29, 1, v28\nv_lshlrev_b32 v29, 5, v29\nv_lshl_add_u32 v29, v28, 7, v29")
    A("v_and_b32 v28, 3, v2\nv_lshl_add_u32 v29, v28, 3, v29\nv_lshrrev_b32 v28, 5, v2\nv_lshl_add_u32 v29, v28, 10, v29\nv_add_u32 v29, s49, v29")
    for cb in range(4): A(f"v_xor_b32 v{56+cb}, {cb*32}, v29")
    A("v_lshlrev_b32 v23, 4, v9\nv_add_u32 v23, s58, v23")
    sw = srd(A, SB_, "wmod", 12*MB)
    A("s_mov_b32 s58, s48\ns_mov_b32 s59, s49")
    q_addr(A, 48)
    A("s_waitcnt lgkmcnt(0)\ns_barrier")
    A("s_sleep 2")
    for kb in range(4):
        A(f"s_add_u32 m0, s59, {kb*4096}")
        for k in range(4): A(f"buffer_load_dwordx4 v{24+k}, {sw}, s58 offen offset:{k*1024} nt lds")
        if kb < 3: A(f"s_add_u32 s58, s58, {32*12288}")
    q_issue(A, 48)
    xstamp(A, "bi")
    A("s_setprio 3")
    for kb in range(4):
        A(f"s_waitcnt vmcnt({16 - 4*kb})")
        for cb in range(4):
            A(f"ds_read_b64_tr_b16 v[{GW+4*cb}:{GW+4*cb+1}], v{56+cb} offset:{kb*4096}\nds_read_b64_tr_b16 v[{GW+4*cb+2}:{GW+4*cb+3}], v{56+cb} offset:{kb*4096+2048}")
        A("s_waitcnt lgkmcnt(0)")
        for cb in range(4):
            c = "0" if kb == 0 else f"v[{GA+4*cb}:{GA+4*cb+3}]"
            A(f"v_mfma_f32_16x16x32_bf16 v[{GA+4*cb}:{GA+4*cb+3}], v[{GW+4*cb}:{GW+4*cb+3}], v[{SF+4*kb}:{SF+4*kb+3}], {c}")
    xstamp(A, "bw")
    A("s_mov_b32 exec_lo, 0x00010001\ns_mov_b32 exec_hi, 0x00010001")
    for cb in range(4): A(f"ds_write_b128 v23, v[{GA+4*cb}:{GA+4*cb+3}] offset:{256 + cb*64}")
    A("s_mov_b64 exec, -1")
    A("ds_read_b32 v30, v21 offset:256")
    A(f"s_lshr_b32 s3, s2, 3\ns_mul_i32 s3, s3, 768\ns_lshl_b32 s57, s64, 8\ns_add_u32 s3, s3, s57\ns_add_u32 s3, s3, {F_MOD}")
    A("s_waitcnt lgkmcnt(0)")
    A(f"buffer_atomic_add_f32 v30, v20, {WS}, s3 offen sc1")
    xstamp(A, "ba")
    A("s_waitcnt vmcnt(1)")
    ln0_part1(A)
    A("s_waitcnt vmcnt(0)")
    xstamp(A, "bd")
    arrive(A, F_GVC, F_GVR, L_CNT+8, 52, vL16, 3)
    A("s_setprio 0")
    A("L_b1m:")
    A.flush_hist()
    stamp(A, 3)
    A(f"v_lshlrev_b32 v47, 7, v8\ns_movk_i32 s3, {F_GVR}")
    poll(A, 47, "s3", 48, 4)
    stamp(A, 4)
    A("v_and_b32 v48, 255, v0\nv_lshlrev_b32 v48, 4, v48")
    M = 64
    for j in range(5):
        A(f"s_mov_b32 s3, {F_MOD + j*4096}")
        A(f"buffer_load_dwordx4 v[{M+4*j}:{M+4*j+3}], v48, {WS}, s3 offen sc1")
    A(f"v_add_u32 v48, {L_MOD}, v48")
    A("s_waitcnt vmcnt(0)")
    for e in range(20): A(f"v_cvt_pk_bf16_f32 v{M+e}, v{M+e}, v{M+e}")
    for e in range(20): A(f"v_lshlrev_b32 v{M+e}, 16, v{M+e}")
    for j in (1, 4):
        for e in range(4): A(f"v_add_f32 v{M+4*j+e}, 1.0, v{M+4*j+e}")
        for e in range(4): A(f"v_cvt_pk_bf16_f32 v{M+4*j+e}, v{M+4*j+e}, v{M+4*j+e}")
        for e in range(4): A(f"v_lshlrev_b32 v{M+4*j+e}, 16, v{M+4*j+e}")
    for j in (0, 1):
        for e in range(4): A(f"v_mul_f32 v{M+4*j+e}, v{M+4*j+e}, v{M+8+e}")
    for n, j in enumerate((0, 1, 3, 4)): A(f"ds_write_b128 v48, v[{M+4*j}:{M+4*j+3}] offset:{n*4096}")
    A(f"s_mul_i32 s3, s64, 3\ns_add_u32 s3, s3, {opt('pf0', 4)}\nv_min_u32 v222, 2, v9\nv_add_u32 v222, s3, v222\nv_lshlrev_b32 v222, 6, v222")
    A("s_lshr_b32 s3, s2, 3\ns_lshl_b32 s3, s3, 1\ns_and_b32 s57, s2, 1\ns_add_u32 s3, s3, s57\nv_add_u32 v222, s3, v222\ns_movk_i32 s3, 7168\nv_mul_lo_u32 v222, v222, s3")
    A("v_min_u32 v223, 13, v8\nv_lshl_add_u32 v222, v223, 7, v222\ns_lshr_b32 s57, s61, 2\ns_mul_i32 s57, s57, 1792\nv_add_u32 v222, s57, v222")
    stamp(A, 6)
    A("L_ln:")
    A.flush_hist()
    A("s_nop 4")
    A(f"v_lshlrev_b32 v12, 6, v{vCG}\nv_lshl_add_u32 v12, v{vHF}, 5, v12")
    A(f"v_lshlrev_b32 v15, 4, v{vCG}\nv_lshl_add_u32 v13, v{vHF}, 13, v15\nv_add_u32 v14, 4096, v13\nv_add_u32 v15, {L_MOD}, v15")
    A(f"s_lshl_b32 s58, s2, 14\ns_add_u32 s3, s58, {WS_YB}\ns_add_u32 s58, s58, {WS_X1}")
    A("s_waitcnt lgkmcnt(0)\ns_barrier")
    stamp(A, 7)
    YR, M, H, TMP, ST = 40, 48, 72, 88, 96
    for c in range(2): A(f"buffer_load_dwordx4 v[{YR+4*c}:{YR+4*c+3}], v12, {WS}, s3 offen offset:{16*c} sc1")
    for j in range(4): A(f"ds_read_b128 v[{M+4*j}:{M+4*j+3}], v15 offset:{j*4096}")
    red_part2(A, vSTR, 0, ST)
    normalize(A, H, LX, ST, M+4, M)
    A(f"v_lshrrev_b32 v12, 3, v{vCG}\nv_and_b32 v15, 3, v{vCG}\nv_lshl_add_u32 v12, v12, 2, v15")
    A(f"v_and_b32 v15, 7, v12\nv_lshlrev_b32 v10, 2, v{vHF}\nv_xor_b32 v15, v15, v10\nv_lshlrev_b32 v15, 4, v15\nv_lshl_add_u32 v12, v12, 7, v15")
    A(f"v_and_b32 v15, 4, v{vCG}\nv_lshl_add_u32 v12, v15, 1, v12\nv_add_u32 v12, {L_MOD}, v12")
    xstamp(A, "ln_a")
    A("s_waitcnt vmcnt(0)")
    xstamp(A, "ln_b")
    if not opt("nopf1"):
        A(f"s_cmp_lt_u32 s{sWAVE}, 4\ns_cbranch_scc1 L_nopf1")
        A(f"buffer_load_dword v223, v222, s[{SA_}:{SA_+3}], 0 offen")
        A("L_nopf1:")
    for i in range(4):
        for c in range(4): (lo if i % 2 == 0 else hi)(A, TMP+c, YR+2*c+i//2)
        for c in range(0, 4, 2): A(f"v_pk_fma_f32 v[{LX+4*i+c}:{LX+4*i+c+1}], v[{H+4*i+c}:{H+4*i+c+1}], v[{TMP+c}:{TMP+c+1}], v[{LX+4*i+c}:{LX+4*i+c+1}]")
        A(f"v_cvt_pk_bf16_f32 v{QR+2*i}, v{LX+4*i}, v{LX+4*i+1}\nv_cvt_pk_bf16_f32 v{QR+2*i+1}, v{LX+4*i+2}, v{LX+4*i+3}")
        lo(A, LX+4*i, QR+2*i); hi(A, LX+4*i+1, QR+2*i); lo(A, LX+4*i+2, QR+2*i+1); hi(A, LX+4*i+3, QR+2*i+1)
    for j in range(2): A(f"buffer_store_dwordx4 v[{QR+4*j}:{QR+4*j+3}], v{13+j}, {WS}, s58 offen sc1")
    stats4(A, LX, LR)
    red_part1(A, LR, vSTW, 64)
    xstamp(A, "ln_c")
    A("s_waitcnt lgkmcnt(0)\ns_barrier")
    xstamp(A, "ln_d")
    red_part2(A, vSTR, 64, ST)
    normalize(A, H, LX, ST, M+12, M+8)
    stats4(A, H, LR)
    red_part1(A, LR, vSTW, 128)
    xstamp(A, "ln_e")
    A("s_waitcnt lgkmcnt(0)\ns_barrier")
    xstamp(A, "ln_f")
    red_part2(A, vSTR, 128, ST)
    normalize(A, H, H, ST)
    for i in range(4):
        A(f"v_cvt_pk_bf16_f32 v{YR+2*i}, v{H+4*i}, v{H+4*i+1}\nv_cvt_pk_bf16_f32 v{YR+2*i+1}, v{H+4*i+2}, v{H+4*i+3}")
        A(f"v_xor_b32 v15, {i*16}, v12")
        A(f"ds_write_b64 v15, v[{YR+2*i}:{YR+2*i+1}]")
    xstamp(A, "ln_g")
    A(f"s_cmp_ge_u32 s{sWAVE}, 4\ns_cbranch_scc1 L_b2")
    A(f"v_lshrrev_b32 v12, 3, v0\nv_and_b32 v13, 7, v0\nv_and_b32 v14, 7, v12\nv_xor_b32 v14, v14, v13\nv_lshlrev_b32 v14, 4, v14\nv_lshl_add_u32 v14, v12, 7, v14\nv_add_u32 v14, {L_MOD}, v14")
    A(f"s_lshr_b32 s3, s2, 1\ns_lshl_b32 s3, s3, 15\ns_and_b32 s57, s2, 1\ns_lshl_b32 s57, s57, 7\ns_add_u32 s3, s3, s57\ns_add_u32 s3, s3, {WS_Y2F}")
    A("v_lshlrev_b32 v15, 8, v12\nv_lshl_add_u32 v15, v13, 4, v15")
    A("s_waitcnt lgkmcnt(0)\ns_barrier")
    xstamp(A, "ln_h")
    for i in range(4): A(f"ds_read_b128 v[{64+4*i}:{67+4*i}], v14 offset:{i*4096}")
    for i in range(4):
        A(f"s_waitcnt lgkmcnt({3-i})")
        A(f"buffer_store_dwordx4 v[{64+4*i}:{67+4*i}], v15, {WS}, s3 offen sc1")
        if i < 3: A("s_add_u32 s3, s3, 8192")
    A(f"s_lshl_b32 s3, s2, 2\ns_add_u32 s3, s3, s{sWAVE}\ns_lshl_b32 s3, s3, 7\ns_add_u32 s3, s3, {F_S3}")
    A("s_waitcnt vmcnt(0)")
    flag_set(A, "s3", 52, vL16)
    xstamp(A, "ln_i")
    A("s_barrier")
    stamp(A, 8)
    g1_consumer(A, 9)
    g2_consumer(A, 12)
    if STAMPS:
        A("s_waitcnt vmcnt(0)"); stamp(A, 14)
    stamp_flush(A)
    A("s_endpgm")
    A.flush_hist()
    A("L_b2:")
    A("s_waitcnt vmcnt(0) lgkmcnt(0)\ns_barrier")
    stamp(A, 8)
    A("s_barrier")
    for _ in range(2): g1_issue_w(A)
    A(f"v_and_b32 v47, 15, v2\nv_lshlrev_b32 v47, 7, v47\ns_lshl_b32 s3, s60, 13\ns_lshl_b32 s57, s64, 11\ns_add_u32 s3, s3, s57\ns_add_u32 s3, s3, {F_S3}")
    poll(A, 47, "s3", 48)
    stamp(A, 9)
    A(f"s_or_b32 s3, s2, s64\ns_cmp_lg_u32 s3, 0\ns_cbranch_scc1 L_noepoch")
    flag_set(A, "0", 52, vL16)
    A("s_waitcnt vmcnt(0)")
    A("L_noepoch:")
    g1_prod_main(A)
    stamp(A, 10)
    g2_producer(A)
    stamp(A, 13)
    stamp_flush(A)
    A("L_exit:\ns_endpgm")
    A("L_end:")

def build():
    A = Asm()
    kernel(A)
    head = ["; generated by dev/gen5.py (single persistent kernel; see that generator for the design notes)",
            f"; @launch grid=(256,1,1) block=(512,1,1) lds={LDS_TOTAL}",
            '.amdgcn_target "amdgcn-amd-amdhsa--gfx950"', ".text"]
    tail = ['.section .rodata,"a"', ".p2align 6", descriptor(NAME, 256, 102)]
    return "\n".join(head) + "\n" + A.text() + "\n".join(tail)

if __name__ == "__main__":
    if "-stamps" in sys.argv: STAMPS = True
    for a in sys.argv:
        if a.startswith("-o="):
            for kv in a[3:].split(","):
                k, v = kv.split(":"); OPT[k] = int(v)
        if a.startswith("-xs="):
            STAMPS = True
            for n, nm in enumerate(a[4:].split(",")): XS[nm] = n + 1
    out = sys.argv[1] if len(sys.argv) > 1 and not sys.argv[1].startswith("-") else "adaLN_cond__ssm_conv_h3__mixer_channel_mlp__prompt.s"
    open(out, "w").write(build())
```

```python
import sys, math, struct
from asmgen import *

MB = 1 << 20
NAME = "adaLN_cond__ssm_conv_h3__mixer_channel_mlp__prompt_kernel"
F_E, F_S2C, F_S2R, F_GVC, F_GVR, F_MOD = 0, 0x1000, 0x3000, 0x5000, 0x7000, 0x10000
F_S3, F_S4A, F_S4B, F_S5, F_S1 = 0x20000, 0x40000, 0x60000, 0x80000, 0xA0000
WS_KVR, WS_YB, WS_X1, WS_Y2F, WS_HF, WS_PART, WS_ST = 1*MB, 5*MB, 9*MB, 13*MB, 17*MB, 32*MB, 48*MB
P = dict(q=4, k=6, v=8, shift=10, ssmk=12, ssmD=14, w1=18, b1=20, w2=22, b2=24, c=26, wmod=28, out=30, ws=34)
WS = "s[36:39]"
SA_, SB_, SC_ = 40, 44, 48
sWAVE, sN, sCT, sTT, sC0 = 52, 53, 54, 55, 56
sCG, sTB = 0, 1
sPF, sDUMMY = 16, 32
PS = 4160; WSZ = 4 * PS; L_Q = 4 * WSZ; L_GW = 102400; L_GS = L_GW + 49152
L_KT = 86016; L_VT = L_KT + 17408; L_TB = L_VT + 16384
L_YS = 86016; L_MOD = 135168; L_ST = 155648; LDS_TOTAL = 156672
L_CNT = L_ST + 192
G1_W, G1_WSLOT, G1_A = 0, 28672, 86016
QR = 240
STAMPS = False
OPT = {}
def opt(k, d=0): return OPT.get(k, d)
def asc(): return '' if opt('nosc1') else 'sc1'

def f2u(x): return struct.unpack("<I", struct.pack("<f", x))[0]
def srd(A, d, name, nbytes):
    b = P[name]
    A(f"s_mov_b32 s{d}, s{b}\ns_mov_b32 s{d+1}, s{b+1}\ns_mov_b32 s{d+2}, {nbytes}\ns_mov_b32 s{d+3}, 0x20000")
    return f"s[{d}:{d+3}]"
def lo(A, d, s): A(f"v_lshlrev_b32 v{d}, 16, v{s}")
def hi(A, d, s): A(f"v_and_b32 v{d}, 0xffff0000, v{s}")

NSLOT = 15
XS = {}
def xstamp(A, name):
    if STAMPS and name in XS: A(f"s_memrealtime s[{72+2*XS[name]}:{73+2*XS[name]}]")
    if STAMPS and "c:" + name in XS: A(f"s_memtime s[{72+2*XS['c:'+name]}:{73+2*XS['c:'+name]}]")
def stamp(A, slot):
    xstamp(A, str(slot))
    if STAMPS and (slot == 0 or not XS):
        if slot == 0:
            for i in range(1, NSLOT): A(f"s_mov_b32 s{72+2*i}, 0")
        A(f"s_memrealtime s[{72+2*slot}:{73+2*slot}]")
def stamp_flush(A):
    if not STAMPS: return
    A("s_waitcnt lgkmcnt(0)")
    if opt("dbgst"):
        l = A.newlabel("nodbg")
        A(f"s_cmp_lg_u32 s2, {opt('dbgwg', 37)}\ns_cbranch_scc1 {l}\ns_cmp_lg_u32 s{sWAVE}, {opt('dbgst')-1}\ns_cbranch_scc1 {l}")
        A("s_mov_b32 s40, s6\ns_mov_b32 s41, s7\ns_mov_b32 s42, 256\ns_mov_b32 s43, 0x20000")
        A("s_mov_b64 exec, 1\nv_mov_b32 v1, 0")
        for i in range(NSLOT):
            A(f"s_sub_u32 s3, s{72+2*i}, s72\nv_mov_b32 v2, s3")
            A(f"buffer_store_dword v2, v1, s[40:43], 0 offen offset:{4*i}")
        A("s_waitcnt vmcnt(0)")
        A(f"{l}:")
        return
    A(f"s_lshl_b32 s3, s2, 9\ns_lshl_b32 s57, s{sWAVE}, 6\ns_add_u32 s3, s3, s57\ns_add_u32 s3, s3, {WS_ST}")
    A("s_mov_b64 exec, 1\nv_mov_b32 v1, 0")
    for i in range(NSLOT):
        A(f"v_mov_b32 v2, s{72+2*i}")
        A(f"buffer_store_dword v2, v1, {WS}, s3 offen offset:{4*i}")
    A("s_waitcnt vmcnt(0)")

def flag_set(A, soff, vt, vl16):
    for i in range(4): A(f"v_mov_b32 v{vt+i}, s{sN}")
    A("s_mov_b64 exec, 0xff")
    A(f"buffer_store_dwordx4 v[{vt}:{vt+3}], v{vl16}, {WS}, {soff} offen sc1")
    A("s_mov_b64 exec, -1")
def poll(A, vaddr, soff, vt, sleep=0):
    l = A.newlabel("poll"); d = A.newlabel("pdone")
    A("s_mov_b32 s57, 0")
    A(f"{l}:")
    A(f"buffer_load_dword v{vt}, v{vaddr}, {WS}, {soff} offen sc1")
    A("s_waitcnt vmcnt(0)")
    A(f"v_cmp_ne_u32 vcc, s{sN}, v{vt}")
    A("s_nop 1")
    A(f"s_cbranch_vccz {d}")
    if sleep: A(f"s_sleep {sleep}")
    A(f"s_add_u32 s57, s57, 1\ns_cmp_lt_u32 s57, 0x40000\ns_cbranch_scc1 {l}")
    A(f"{d}:")
def arrive(A, cbase, rbase, lcnt, vt, vl16, nw=4):
    d = A.newlabel("arr")
    A(f"v_mov_b32 v{vt}, 1\nv_mov_b32 v{vt+1}, {lcnt}\ns_mov_b64 exec, 1")
    A(f"ds_add_rtn_u32 v{vt+2}, v{vt+1}, v{vt}")
    A(f"s_lshl_b32 s57, s{sCT}, 7\ns_add_u32 s58, s57, {cbase}\ns_add_u32 s59, s57, {rbase}")
    A(f"s_waitcnt lgkmcnt(0)\nv_readfirstlane_b32 s57, v{vt+2}")
    A(f"s_cmp_lg_u32 s57, {nw-1}\ns_cbranch_scc1 {d}")
    A(f"buffer_atomic_add v{vt}, v{vl16}, {WS}, s58 offen sc0 sc1")
    A("s_waitcnt vmcnt(0)")
    A(f"v_readfirstlane_b32 s57, v{vt}")
    A(f"s_sub_u32 s57, s57, s{sC0}\ns_cmp_lg_u32 s57, 15\ns_cbranch_scc1 {d}")
    A("s_mov_b64 exec, -1")
    flag_set(A, "s59", vt, vl16)
    A(f"{d}:")
    A("s_mov_b64 exec, -1")

def stats4(A, X, R):
    for i in range(4):
        A(f"v_add_f32 v{R+i}, v{X+4*i}, v{X+4*i+1}")
        A(f"v_mul_f32 v{R+4+i}, v{X+4*i}, v{X+4*i}")
    for c in (2, 3):
        for i in range(4): A(f"v_add_f32 v{R+i}, v{R+i}, v{X+4*i+c}")
    for c in (1, 2, 3):
        for i in range(4): A(f"v_fmac_f32 v{R+4+i}, v{X+4*i+c}, v{X+4*i+c}")
DPPM = "row_mask:0xf bank_mask:0xf"
def red_part1(A, R, vW, off):
    for e in range(4): A(f"v_permlane32_swap_b32 v{R+e}, v{R+e+4}")
    for e in range(4): A(f"v_add_f32 v{R+e}, v{R+e}, v{R+e+4}")
    for e in range(2): A(f"v_permlane16_swap_b32 v{R+e}, v{R+e+2}")
    for e in range(2): A(f"v_add_f32 v{R+e}, v{R+e}, v{R+e+2}")
    for m in ("row_ror:8", "quad_perm:[1,0,3,2]", "quad_perm:[2,3,0,1]"):
        for e in range(2): A(f"v_add_f32_dpp v{R+e}, v{R+e}, v{R+e} {m} {DPPM}")
    A("s_mov_b32 exec_lo, 0x00110011\ns_mov_b32 exec_hi, 0x00110011")
    A(f"ds_add_f32 v{vW}, v{R} offset:{off}\nds_add_f32 v{vW}, v{R+1} offset:{off+4}")
    A("s_mov_b64 exec, -1")
def red_part2(A, vRd, off, tmp):
    A(f"ds_read2_b32 v[{tmp}:{tmp+1}], v{vRd} offset0:{off//4} offset1:{off//4 + 4}")
    A("s_waitcnt lgkmcnt(0)")
    A(f"v_mul_f32 v{tmp}, {f2u(1/1024):#x}, v{tmp}")
    A(f"v_mul_f32 v{tmp+2}, v{tmp}, v{tmp}")
    A(f"v_mul_f32 v{tmp+1}, {f2u(1/1024):#x}, v{tmp+1}")
    A(f"v_sub_f32 v{tmp+1}, v{tmp+1}, v{tmp+2}")
    A(f"v_max_f32 v{tmp+1}, 0, v{tmp+1}")
    A(f"v_add_f32 v{tmp+1}, {f2u(1e-5):#x}, v{tmp+1}")
    A(f"v_rsq_f32 v{tmp+1}, v{tmp+1}")
def qp(i): return f"quad_perm:[{i},{i},{i},{i}] {DPPM}"
def normalize(A, D, X, st, G=None, S=None):
    for i in range(4):
        for c in range(4): A(f"v_subrev_f32_dpp v{D+4*i+c}, v{st}, v{X+4*i+c} {qp(i)}")
    for i in range(4):
        for c in range(4): A(f"v_mul_f32_dpp v{D+4*i+c}, v{st+1}, v{D+4*i+c} {qp(i)}")
    if G is not None:
        for i in range(4):
            for c in range(0, 4, 2): A(f"v_pk_fma_f32 v[{D+4*i+c}:{D+4*i+c+1}], v[{D+4*i+c}:{D+4*i+c+1}], v[{G+c}:{G+c+1}], v[{S+c}:{S+c+1}]")
LX = 16
LR = 32
vSTW, vSTR, vCG, vHF = 4, 5, 6, 7
def ln_ids(A, cg, hf):
    A(f"v_lshrrev_b32 v{cg}, 3, v0\nv_and_b32 v{hf}, 3, v0\nv_lshl_add_u32 v{cg}, v{cg}, 2, v{hf}\nv_bfe_u32 v{hf}, v0, 2, 1")
def q_addr(A, vt):
    srd(A, SC_, "q", 4*MB)
    ln_ids(A, vt, vt+1)
    A(f"v_lshlrev_b32 v{vt}, 3, v{vt}\nv_lshl_add_u32 v{vt}, v{vt+1}, 13, v{vt}")
    A(f"s_lshl_b32 s3, s{sTB}, 14\nv_add_u32 v{vt}, s3, v{vt}\nv_add_u32 v{vt+1}, 4096, v{vt}")
def q_issue(A, vt):
    for i in range(4):
        A(f"buffer_load_dwordx2 v[{QR+2*i}:{QR+2*i+1}], v{vt+i//2}, s[{SC_}:{SC_+3}], 0 offen offset:{(i%2)*2048} nt")
def ln0_part1(A):
    ln_ids(A, vCG, vHF)
    A(f"v_lshrrev_b32 v{vSTW}, 4, v2\nv_lshlrev_b32 v{vSTW}, 3, v{vSTW}\nv_lshl_add_u32 v{vSTW}, v{vHF}, 5, v{vSTW}\nv_add_u32 v{vSTW}, {L_ST}, v{vSTW}")
    A(f"v_and_b32 v{vSTR}, 3, v0\nv_lshlrev_b32 v{vSTR}, 2, v{vSTR}\nv_lshl_add_u32 v{vSTR}, v{vHF}, 5, v{vSTR}\nv_add_u32 v{vSTR}, {L_ST}, v{vSTR}")
    for i in range(4):
        lo(A, LX+4*i, QR+2*i); hi(A, LX+4*i+1, QR+2*i); lo(A, LX+4*i+2, QR+2*i+1); hi(A, LX+4*i+3, QR+2*i+1)
    stats4(A, LX, LR)
    red_part1(A, LR, vSTW, 0)
def x1_store(A):
    for j in range(2): A(f"buffer_store_dwordx4 v[{QR+4*j}:{QR+4*j+3}], v{248+j}, {WS}, 0 offen sc1")
def sprefetch(A, n, adv):
    for k in range(n): A(f"s_load_dword s{sDUMMY}, s[{sPF}:{sPF+1}], {k*64}")
    A(f"s_add_u32 s{sPF}, s{sPF}, {adv}\ns_addc_u32 s{sPF+1}, s{sPF+1}, 0")

def tile_ids(A, which):
    A("s_and_b32 s57, s2, 7\ns_lshr_b32 s58, s2, 3")
    if which == 1:
        A("s_and_b32 s60, s57, 1\ns_lshl_b32 s60, s60, 3\ns_and_b32 s3, s58, 7\ns_add_u32 s60, s60, s3")
        A("s_lshr_b32 s61, s57, 1\ns_lshl_b32 s61, s61, 2\ns_lshr_b32 s3, s58, 3\ns_add_u32 s61, s61, s3")
        A("s_mul_i32 s62, s61, 448\ns_and_b32 s3, s61, 1\ns_cmp_eq_u32 s3, 0")
        A("s_cselect_b32 s63, 384, 0\ns_cselect_b32 s3, 0, 64\ns_add_u32 s63, s63, s62\ns_add_u32 s62, s62, s3")
    else:
        A("s_lshr_b32 s60, s57, 1\ns_lshl_b32 s60, s60, 2\ns_and_b32 s3, s58, 3\ns_add_u32 s60, s60, s3")
        A("s_and_b32 s61, s57, 1\ns_lshr_b32 s62, s58, 2\ns_lshl_b32 s62, s62, 8\ns_lshl_b32 s3, s61, 7\ns_add_u32 s62, s62, s3\ns_xor_b32 s63, s62, 128")

G1_NST = 16
G1_ASLOT, G1_USZ, G1_HOFF = 16384, 8192, 24576
PVA, PVW = 200, 204
def unit_lane_off(A, t, rs):
    A(f"v_lshrrev_b32 v{t}, 3, v2\nv_lshrrev_b32 v{t+1}, 1, v{t}\nv_lshlrev_b32 v{t+1}, 1, v{t+1}\nv_and_b32 v{t+2}, 7, v2\nv_xor_b32 v{t+1}, v{t+1}, v{t+2}\nv_lshlrev_b32 v{t+1}, 4, v{t+1}")
    A(f"s_movk_i32 s3, {rs}\nv_mul_lo_u32 v{t}, v{t}, s3\nv_add_u32 v{t}, v{t}, v{t+1}")
def g1_prod_setup(A):
    RS = 7168
    A(f"s_sub_u32 s64, s{sWAVE}, 4")
    A(f"s_lshl_b32 s3, s60, 3\ns_lshl_b32 s57, s64, 1\ns_add_u32 s3, s3, s57\ns_lshl_b32 s3, s3, 15\ns_add_u32 s3, s3, {WS_Y2F}")
    A(f"v_lshlrev_b32 v{PVA}, 4, v2\nv_add_u32 v{PVA}, s3, v{PVA}\nv_add_u32 v{PVA+1}, {32*1024}, v{PVA}")
    t = 212
    unit_lane_off(A, t, RS)
    A(f"s_mul_i32 s3, s64, {16*RS}\ns_add_u32 s3, s3, s62\nv_add_u32 v{t}, s3, v{t}")
    for u in range(3):
        for rgi in range(2):
            A(f"v_add_u32 v{PVW+u*2+rgi}, {u*128 + rgi*8*RS - rgi*1024}, v{t}")
    A(f"v_lshrrev_b32 v{t}, 2, v2\nv_bfe_u32 v{t+1}, v2, 4, 1\nv_and_b32 v{t+2}, 3, v2\nv_xor_b32 v{t+1}, v{t+1}, v{t+2}\nv_lshlrev_b32 v{t+1}, 4, v{t+1}")
    A(f"s_movk_i32 s3, {RS}\nv_mul_lo_u32 v{t}, v{t}, s3\nv_add_u32 v{t}, v{t}, v{t+1}")
    A(f"s_mul_i32 s3, s64, {16*RS}\ns_add_u32 s3, s3, s63\nv_add_u32 v{PVW+6}, s3, v{t}")
    A("s_mov_b32 s65, 0\ns_mov_b32 s66, 0")
    A(f"s_lshl_b32 s67, s64, 12\ns_add_u32 s67, s67, {G1_A}")
    A(f"s_lshl_b32 s68, s64, 11")
    A(f"s_lshl_b32 s69, s64, 10\ns_sub_u32 s69, {G1_HOFF}, s69")
    A(f"s_add_u32 s70, s67, {3*G1_ASLOT}\ns_add_u32 s71, s68, {3*G1_WSLOT}")
    srd(A, SA_, "w1", 1024*7168)
def g1_issue_w(A):
    for u in range(3):
        A(f"s_add_u32 m0, s68, {u*G1_USZ}")
        for rgi in range(2):
            A(f"buffer_load_dwordx4 v{PVW+u*2+rgi}, s[{SA_}:{SA_+3}], s66 offen offset:{rgi*1024} lds")
    A("s_add_u32 m0, s68, s69")
    A(f"buffer_load_dwordx4 v{PVW+6}, s[{SA_}:{SA_+3}], s66 offen lds")
    A(f"s_add_u32 s66, s66, {64*7168}")
    A(f"s_add_u32 s68, s68, {G1_WSLOT}\ns_cmp_eq_u32 s68, s71\ns_cselect_b32 s3, {3*G1_WSLOT}, 0\ns_sub_u32 s68, s68, s3")
def g1_issue_a(A):
    for h in range(2):
        A(f"s_add_u32 m0, s67, {h*2048}")
        for ks in range(2):
            A(f"buffer_load_dwordx4 v{PVA+h}, {WS}, s65 offen offset:{ks*1024} {asc()} lds")
    A("s_add_u32 s65, s65, 2048")
    A(f"s_add_u32 s67, s67, {G1_ASLOT}\ns_cmp_eq_u32 s67, s70\ns_cselect_b32 s3, {3*G1_ASLOT}, 0\ns_sub_u32 s67, s67, s3")
def g1_prod_main(A):
    NI = 11
    g1_issue_a(A); g1_issue_a(A); g1_issue_w(A); g1_issue_a(A)
    x1_store(A)
    s2_ = srd(A, SB_, "w2", 3584*2048)
    A("s_mul_i32 s48, s2, 224\ns_mul_i32 s57, s64, 56\ns_add_u32 s48, s48, s57\ns_lshl_b32 s48, s48, 7")
    A("v_min_u32 v50, 55, v2\nv_lshlrev_b32 v50, 7, v50")
    A(f"s_lshr_b32 s49, s2, 3\ns_and_b32 s49, s49, 7\ns_add_u32 s49, s49, 2")
    A("s_add_u32 s3, s49, 6\ns_lshl_b32 s3, s3, 3\ns_and_b32 s57, s2, 1\ns_lshl_b32 s57, s57, 2\ns_add_u32 s3, s3, s57\ns_lshr_b32 s57, s2, 6\ns_add_u32 s3, s3, s57\ns_lshl_b32 s3, s3, 2\ns_add_u32 s3, s3, s64\ns_lshl_b32 s3, s3, 1")
    A("v_bfe_u32 v52, v2, 4, 1\nv_add_u32 v52, s3, v52\ns_movk_i32 s3, 7168\nv_mul_lo_u32 v52, v52, s3\nv_and_b32 v53, 15, v2\nv_min_u32 v53, 13, v53\nv_lshl_add_u32 v52, v53, 7, v52")
    A("s_lshr_b32 s50, s61, 2\ns_mul_i32 s50, s50, 1792")
    A(f"s_waitcnt vmcnt({6+NI})\ns_barrier")
    A("s_mov_b32 s59, 0")
    l = A.newlabel("ploop"); l2 = A.newlabel("pnp")
    A(f"{l}:")
    A(f"s_waitcnt vmcnt({NI})\ns_barrier")
    g1_issue_w(A); g1_issue_a(A)
    if not opt("nopf2"):
        A(f"s_cmp_lg_u32 s59, s49\ns_cbranch_scc1 {l2}")
        A(f"buffer_load_dword v53, v52, s[{SA_}:{SA_+3}], s50 offen")
        A(f"buffer_load_dword v51, v50, {s2_}, s48 offen")
        A(f"{l2}:")
    A(f"s_add_u32 s59, s59, 1\ns_cmp_lg_u32 s59, 13\ns_cbranch_scc1 {l}")
    A(f"s_waitcnt vmcnt({NI})\ns_barrier")
    A(f"s_waitcnt vmcnt(0)\ns_barrier")
    A("s_barrier")

def tr_base(A):
    A("v_lshrrev_b32 v3, 4, v2\nv_and_b32 v4, 15, v2")
    A("v_lshrrev_b32 v6, 2, v2\nv_and_b32 v6, 7, v6\nv_lshrrev_b32 v7, 1, v6\nv_lshlrev_b32 v7, 5, v7\nv_lshl_add_u32 v7, v6, 7, v7")
    A("v_and_b32 v8, 3, v2\nv_lshl_add_u32 v7, v8, 3, v7\nv_lshrrev_b32 v9, 5, v2\nv_lshl_add_u32 v7, v9, 10, v7")
def interleave(A, mf, fill, per):
    n = 0
    for m in mf:
        A(m)
        for _ in range(per(n)):
            if n < len(fill): A(fill[n]); n += 1
    while n < len(fill): A(fill[n]); n += 1

def sched(A, mf, slots):
    for n, m in enumerate(mf):
        A(m)
        for l in slots.get(n, []): A(l)
def align8(A):
    A.raw(".p2align 3")

def g1_consumer(A, st0):
    NT = 7
    tile_ids(A, 1)
    A(f"s_and_b32 s64, s{sWAVE}, 1\ns_lshr_b32 s65, s{sWAVE}, 1")
    tr_base(A)
    vA, VT, TC = 5, 10, 44
    A(f"s_lshl_b32 s3, s64, 13\ns_add_u32 s3, s3, {G1_A}\nv_lshlrev_b32 v5, 4, v2\nv_add_u32 v5, s3, v5")
    A(f"s_lshl_b32 s3, s65, 14")
    for cb in range(4):
        A(f"v_xor_b32 v{VT+cb}, {cb*32}, v7\nv_add_u32 v{VT+cb}, s3, v{VT+cb}")
    A("s_lshl_b32 s3, s65, 6")
    for e in range(2):
        A(f"v_xor_b32 v{VT+4+e}, s3, v7\nv_xor_b32 v{VT+4+e}, {e*32}, v{VT+4+e}\nv_add_u32 v{VT+4+e}, {G1_USZ}, v{VT+4+e}")
    A("v_and_b32 v9, 2, v8\nv_or_b32 v9, s65, v9\nv_and_b32 v6, 1, v3\nv_xor_b32 v9, v9, v6\nv_lshlrev_b32 v9, 4, v9")
    A(f"v_lshrrev_b32 v6, 2, v2\nv_lshl_add_u32 v9, v6, 6, v9\nv_and_b32 v6, 1, v8\nv_lshl_add_u32 v9, v6, 3, v9\nv_add_u32 v{VT+6}, {G1_HOFF}, v9")
    A(f"s_lshl_b32 s3, s65, 8\ns_add_u32 s{TC}, s62, s3")
    for cb in range(1, 4): A(f"s_add_u32 s{TC+cb}, s{TC}, {cb*32}")
    A(f"s_lshl_b32 s3, s65, 6\ns_add_u32 s{TC+4}, s62, s3\ns_add_u32 s{TC+4}, s{TC+4}, 128\ns_add_u32 s{TC+5}, s{TC+4}, 32")
    A(f"s_lshl_b32 s3, s65, 4\ns_add_u32 s{TC+6}, s63, s3")
    ACC = 20
    FA = [ACC + 16*NT, ACC + 16*NT + 16]
    FW = [FA[1] + 16, FA[1] + 16 + 4*NT]
    sb = srd(A, SA_, "b1", 7168)
    A("v_lshlrev_b32 v6, 3, v3\nv_and_b32 v9, 1, v3\nv_lshlrev_b32 v9, 3, v9\nv_lshrrev_b32 v17, 1, v3\nv_lshl_add_u32 v9, v17, 5, v9")
    for t in range(NT):
        A(f"buffer_load_dwordx2 v[{FW[1]+2*t}:{FW[1]+2*t+1}], v{6 if t < 6 else 9}, {sb}, s{TC+t} offen")
    A("s_waitcnt vmcnt(0)")
    for t in range(NT):
        a = ACC + 4*t
        lo(A, a, FW[1]+2*t); hi(A, a+1, FW[1]+2*t); lo(A, a+2, FW[1]+2*t+1); hi(A, a+3, FW[1]+2*t+1)
    for i in range(1, 4):
        for t in range(NT):
            for r in range(4): A(f"v_mov_b32 v{ACC+4*(i*NT+t)+r}, v{ACC+4*t+r}")
    def reads(ks, buf):
        aa = [f"ds_read_b128 v[{FA[buf]+4*i}:{FA[buf]+4*i+3}], v{vA} offset:{(i*2+ks)*1024}" for i in range(4)]
        ww = []
        for t in range(NT):
            o0, d = (ks*2048, 1024) if t == 6 else (ks*4096, 2048)
            ww.append(f"ds_read_b64_tr_b16 v[{FW[buf]+4*t}:{FW[buf]+4*t+1}], v{VT+t} offset:{o0}")
            ww.append(f"ds_read_b64_tr_b16 v[{FW[buf]+4*t+2}:{FW[buf]+4*t+3}], v{VT+t} offset:{o0+d}")
        return aa + ww
    A(f"s_mov_b32 s59, {G1_NST-1}\ns_mov_b32 s58, 1\ns_mov_b32 s66, {G1_ASLOT}\ns_mov_b32 s67, {G1_WSLOT}")
    A(f"s_mov_b32 s70, {-2*G1_ASLOT & 0xffffffff}\ns_mov_b32 s71, {-2*G1_WSLOT & 0xffffffff}\ns_mov_b32 s68, s66\ns_mov_b32 s69, s67")
    A("s_barrier")
    stamp(A, st0)
    for l in reads(0, 0): A(l)
    x1_store(A)
    A("s_waitcnt lgkmcnt(0)")
    align8(A)
    start = len(A.lines)
    lp = A.newlabel("cloop")
    A(f"{lp}:")
    for ks in range(2):
        rd = reads(ks ^ 1, ks ^ 1)
        mf = [f"v_mfma_f32_16x16x32_bf16 v[{ACC+4*(i*NT+t)}:{ACC+4*(i*NT+t)+3}], v[{FW[ks]+4*t}:{FW[ks]+4*t+3}], v[{FA[ks]+4*i}:{FA[ks]+4*i+3}], v[{ACC+4*(i*NT+t)}:{ACC+4*(i*NT+t)+3}]"
              for i in range(4) for t in range(NT)]
        sl = {n: [rd[n]] for n in range(18)}
        if ks == 0:
            ad = [f"v_add_u32 v{vA}, s68, v{vA}"] + [f"v_add_u32 v{VT+t}, s69, v{VT+t}" for t in range(NT)]
            for n in range(4): sl[18+n] = ad[2*n:2*n+2]
            sl[25] = ["s_waitcnt lgkmcnt(0)", "s_barrier"]
        else:
            sl[18] = ["s_add_u32 s58, s58, 1", "s_cmp_eq_u32 s58, 3"]
            sl[19] = ["s_cselect_b32 s58, 0, s58", "s_cselect_b32 s68, s70, s66"]
            sl[20] = ["s_cselect_b32 s69, s71, s67", "s_sub_u32 s59, s59, 1"]
            sl[26] = ["s_waitcnt lgkmcnt(0)", "s_nop 0"]
        sched(A, mf, sl)
    A(f"s_cbranch_scc0 {lp}")
    check_loop(A.lines[start:])
    stamp(A, st0 + 1)
    c0 = -2.0 * 1.4426950408889634 * math.sqrt(2.0 / math.pi)
    A(f"v_mov_b32 v12, {f2u(c0*0.044715):#x}\nv_mov_b32 v13, v12\nv_mov_b32 v14, {f2u(c0):#x}\nv_mov_b32 v15, v14")
    A(f"s_lshl_b32 s3, s60, 3\ns_lshl_b32 s57, s64, 2\ns_add_u32 s3, s3, s57\ns_mul_i32 s3, s3, {112*1024}\ns_add_u32 s3, s3, {WS_HF}")
    A("v_lshlrev_b32 v9, 4, v2\nv_add_u32 v7, s3, v9")
    A(f"v_lshrrev_b32 v8, 5, v2\nv_mul_u32_u24 v8, {112*1024 - 512}, v8\nv_add_u32 v8, v8, v7\ns_lshl_b32 s3, s65, 9\nv_add_u32 v8, s3, v8")
    A(f"s_lshl_b32 s{TC}, s{TC}, 4\ns_lshl_b32 s{TC+2}, s{TC+2}, 4\ns_lshl_b32 s{TC+4}, s{TC+4}, 4\ns_lshl_b32 s{TC+6}, s63, 4")
    A(f"s_lshl_b32 s66, s60, 4\ns_add_u32 s66, s66, s61\ns_lshl_b32 s66, s66, 2\ns_add_u32 s66, s66, s{sWAVE}\ns_lshl_b32 s66, s66, 7")
    A(f"s_add_u32 s67, s66, {F_S4B}\ns_add_u32 s66, s66, {F_S4A}")
    T = FA[0]; O = FW[0]
    def gelu8(srcs, o):
        pr = lambda r: f"v[{r}:{r+1}]"
        for e, a in enumerate(srcs): A(f"v_pk_mul_f32 {pr(T+2*e)}, {pr(a)}, {pr(a)}")
        for e, a in enumerate(srcs): A(f"v_pk_fma_f32 {pr(T+2*e)}, {pr(T+2*e)}, v[12:13], v[14:15]")
        for e, a in enumerate(srcs): A(f"v_pk_mul_f32 {pr(T+2*e)}, {pr(T+2*e)}, {pr(a)}")
        for e in range(8): A(f"v_exp_f32 v{T+e}, v{T+e}")
        for e in range(4): A(f"v_pk_add_f32 {pr(T+2*e)}, {pr(T+2*e)}, 1.0 op_sel_hi:[1,0]")
        for e in range(8): A(f"v_rcp_f32 v{T+e}, v{T+e}")
        for e, a in enumerate(srcs): A(f"v_pk_mul_f32 {pr(T+2*e)}, {pr(T+2*e)}, {pr(a)}")
        for e in range(4): A(f"v_cvt_pk_bf16_f32 v{o+e}, v{T+2*e}, v{T+2*e+1}")
    cnt = 0
    for pr_ in (2, 0, 1):
        for i in range(4):
            a = ACC + 4*(i*NT + 2*pr_)
            o = O + 4*(cnt % 4); cnt += 1
            gelu8([a, a+2, a+4, a+6], o)
            A(f"s_add_u32 s3, s{TC+2*pr_}, {i*112*1024}")
            A(f"buffer_store_dwordx4 v[{o}:{o+3}], v7, {WS}, s3 offen sc1")
            xstamp(A, f"ge{cnt}")
            if cnt == EARLY_AT:
                A(f"s_waitcnt vmcnt({EARLY_AT-4})")
                flag_set(A, "s66", 16, 9)
                A(f"v_mov_b32 v10, {L_CNT+12}\nv_mov_b32 v11, 1\nds_write_b32 v10, v11")
                xstamp(A, "gef")
    for i in (0, 2):
        a = ACC + 4*(i*NT + 6); b = ACC + 4*((i+1)*NT + 6)
        o = O + 4*(cnt % 4); cnt += 1
        gelu8([a, a+2, b, b+2], o)
        A(f"v_permlane32_swap_b32 v{o}, v{o+2}\nv_permlane32_swap_b32 v{o+1}, v{o+3}")
        A(f"s_add_u32 s3, s{TC+6}, {i*112*1024}")
        A(f"buffer_store_dwordx4 v[{o}:{o+3}], v8, {WS}, s3 offen sc1")
    stamp(A, st0 + 2)
EARLY_AT = 8

G2_SLOT = 32768
def g2_unit(s):
    if s < 8: return 7*(s >> 1) + (5 if s & 1 else 1), True
    if s < 24: return 7*((s-8) >> 2) + 2*((s-8) & 3), True
    return 7*(s-24) + 3, False
def g2_producer(A):
    tile_ids(A, 2)
    A(f"s_lshl_b32 s3, s60, 3\ns_lshl_b32 s57, s64, 1\ns_add_u32 s3, s3, s57\ns_mul_i32 s3, s3, {112*1024}\ns_add_u32 s3, s3, {WS_HF}")
    A(f"v_lshlrev_b32 v{PVA}, 4, v2\nv_add_u32 v{PVA}, s3, v{PVA}\nv_add_u32 v{PVA+1}, {112*1024}, v{PVA}")
    t = 212
    unit_lane_off(A, t, 2048)
    A(f"s_lshl_b32 s3, s64, 15\nv_add_u32 v{t}, s3, v{t}")
    A(f"v_add_u32 v{PVW}, s62, v{t}\nv_add_u32 v{PVW+1}, {16384-1024}, v{PVW}\nv_add_u32 v{PVW+2}, s63, v{t}\nv_add_u32 v{PVW+3}, {16384-1024}, v{PVW+2}")
    A(f"s_mul_i32 s65, s61, {28*2048}\ns_mul_i32 s66, s61, {28*131072}")
    A(f"s_lshl_b32 s67, s64, 12\ns_lshl_b32 s68, s64, 11\ns_add_u32 s68, s68, 16384")
    sw = srd(A, SA_, "w2", 3584*2048)
    def iw(s):
        u, p1 = g2_unit(s)
        A(f"s_add_u32 s69, s66, {u*131072}" if p1 else f"s_mov_b32 s69, {u*131072}")
        for un in range(2 if p1 else 1):
            A(f"s_add_u32 m0, s68, {(s & 3)*G2_SLOT + un*8192}")
            for rgi in range(2):
                A(f"buffer_load_dwordx4 v{PVW+2*un+rgi}, {sw}, s69 offen offset:{rgi*1024} lds")
        return 4 if p1 else 2
    def ia(s):
        u, p1 = g2_unit(s)
        A(f"s_add_u32 s70, s65, {u*2048}" if p1 else f"s_mov_b32 s70, {u*2048}")
        for h in range(2):
            A(f"s_add_u32 m0, s67, {(s & 3)*G2_SLOT + h*2048}")
            for ks in range(2):
                A(f"buffer_load_dwordx4 v{PVA+h}, {WS}, s70 offen offset:{ks*1024} {asc()} lds")
        return 4
    for s in range(4): iw(s)
    A(f"v_and_b32 v46, 15, v2\nv_lshlrev_b32 v46, 8, v46\nv_and_b32 v47, 31, v2\nv_lshlrev_b32 v47, 8, v47")
    A(f"s_lshl_b32 s71, s60, 13\ns_lshr_b32 s3, s64, 1\ns_lshl_b32 s3, s3, 7\ns_add_u32 s71, s71, s3\ns_lshl_b32 s3, s61, 12\ns_add_u32 s3, s3, s71\ns_add_u32 s3, s3, {F_S4A}\ns_add_u32 s71, s71, {F_S4B}")
    stamp(A, 11)
    l = A.newlabel("wef")
    A(f"v_mov_b32 v48, {L_CNT+12}")
    A(f"{l}:")
    A(f"s_sleep 2\nds_read_b32 v49, v48\ns_waitcnt lgkmcnt(0)\nv_readfirstlane_b32 s57, v49\ns_cmp_eq_u32 s57, 0\ns_cbranch_scc1 {l}")
    poll(A, 46, "s3", 48, 1)
    stamp(A, 12)
    q = []
    for s in range(4): q.append([s, ia(s)])
    def wait_for(stage):
        n = sum(c for st, c in q if st > stage)
        A(f"s_waitcnt vmcnt({n})")
    wait_for(0); A("s_barrier")
    for s in range(32):
        if s + 1 < 32: wait_for(s + 1)
        A("s_barrier")
        n = s + 4
        if n == 7:
            A(f"buffer_load_dword v48, v47, {WS}, s71 offen sc1"); q.append([6.5, 1])
        if n == 8:
            wait_for(6.5)
            d = A.newlabel("s4ok")
            A(f"v_cmp_ne_u32 vcc, s{sN}, v48\ns_nop 1\ns_cbranch_vccz {d}")
            poll(A, 47, "s71", 48)
            A(f"{d}:")
        if n < 32:
            c = iw(n) + ia(n); q.append([n, c])


def g2_consumer(A, st0):
    ACC, FA, FW, XR, GB, PR, vPL = 20, [84, 100], [116, 132], 148, 164, 172, 204
    tile_ids(A, 2)
    tr_base(A)
    vA, VT, TC = 5, 10, 44
    A(f"s_lshl_b32 s3, s64, 13\nv_lshlrev_b32 v9, 4, v2\nv_add_u32 v5, s3, v9")
    A("s_lshl_b32 s3, s65, 6")
    for e in range(2):
        A(f"v_xor_b32 v{VT+e}, s3, v7\nv_xor_b32 v{VT+e}, {e*32}, v{VT+e}\nv_add_u32 v{VT+e}, 16384, v{VT+e}")
    A(f"s_add_u32 s{TC}, s62, s3\ns_add_u32 s{TC+1}, s{TC}, 32")
    sb = srd(A, SA_, "b2", 2048)
    A("v_lshlrev_b32 v6, 3, v3\nv_lshlrev_b32 v18, 4, v3")
    for t in range(2): A(f"buffer_load_dwordx2 v[{FW[1]+2*t}:{FW[1]+2*t+1}], v6, {sb}, s{TC+t} offen")
    for t in range(2):
        A(f"s_lshl_b32 s3, s{TC+t}, 1\ns_add_u32 s3, s3, {F_MOD + 5*4096}")
        A(f"buffer_load_dwordx4 v[{GB+4*t}:{GB+4*t+3}], v18, {WS}, s3 offen sc1")
    A(f"s_xor_b32 s3, s2, 1\ns_lshl_b32 s3, s3, 2\ns_add_u32 s3, s3, s{sWAVE}\ns_lshl_b32 s46, s3, 13\ns_add_u32 s46, s46, {WS_PART}\ns_lshl_b32 s47, s3, 7\ns_add_u32 s47, s47, {F_S5}")
    A(f"s_lshl_b32 s3, s2, 2\ns_add_u32 s3, s3, s{sWAVE}\ns_lshl_b32 s48, s3, 13\ns_add_u32 s48, s48, {WS_PART}\ns_lshl_b32 s49, s3, 7\ns_add_u32 s49, s49, {F_S5}")
    A("v_mov_b32 v19, 0")
    A("s_waitcnt vmcnt(0)")
    flag_set(A, "s67", 12, 9)
    xstamp(A, "s4b")
    for t in range(2):
        a = ACC + 4*t
        lo(A, a, FW[1]+2*t); hi(A, a+1, FW[1]+2*t); lo(A, a+2, FW[1]+2*t+1); hi(A, a+3, FW[1]+2*t+1)
    for i in range(4):
        for t in range(4):
            if i == 0 and t < 2: continue
            for r in range(4): A(f"v_mov_b32 v{ACC+4*(i*4+t)+r}, " + (f"v{ACC+4*t+r}" if t < 2 else "0"))
    for e in range(8): A(f"v_cvt_pk_bf16_f32 v{GB+e}, v{GB+e}, v{GB+e}\nv_lshlrev_b32 v{GB+e}, 16, v{GB+e}")
    def reads(ks, buf, nt):
        aa = [f"ds_read_b128 v[{FA[buf]+4*i}:{FA[buf]+4*i+3}], v{vA} offset:{(i*2+ks)*1024}" for i in range(4)]
        ww = []
        for t in range(nt):
            o0 = ks*4096 + (t >> 1)*8192
            ww.append(f"ds_read_b64_tr_b16 v[{FW[buf]+4*t}:{FW[buf]+4*t+1}], v{VT+(t&1)} offset:{o0}")
            ww.append(f"ds_read_b64_tr_b16 v[{FW[buf]+4*t+2}:{FW[buf]+4*t+3}], v{VT+(t&1)} offset:{o0+2048}")
        return aa + ww
    def stage_body(nt):
        for ks in range(2):
            rd = reads(ks ^ 1, ks ^ 1, nt)
            mf = [f"v_mfma_f32_16x16x32_bf16 v[{ACC+4*(i*4+t)}:{ACC+4*(i*4+t)+3}], v[{FW[ks]+4*t}:{FW[ks]+4*t+3}], v[{FA[ks]+4*i}:{FA[ks]+4*i+3}], v[{ACC+4*(i*4+t)}:{ACC+4*(i*4+t)+3}]"
                  for i in range(4) for t in range(nt)]
            ad = [f"v_add_u32 v{vA}, s68, v{vA}", f"v_add_u32 v{VT}, s68, v{VT}", f"v_add_u32 v{VT+1}, s68, v{VT+1}", "s_nop 0"]
            sa = ["s_add_u32 s58, s58, 1", "s_and_b32 s58, s58, 3", "s_cselect_b32 s68, s66, s70", "s_sub_u32 s59, s59, 1"]
            ex = ad if ks == 0 else sa
            if nt == 4:
                sl = {0: rd[0:2], 1: rd[2:4], 2: rd[4:6], 3: rd[6:8], 4: rd[8:9], 5: rd[9:10], 6: rd[10:11], 7: rd[11:12], 8: ex[0:2], 9: ex[2:4]}
                sl[14] = ["s_waitcnt lgkmcnt(0)", "s_barrier" if ks == 0 else "s_nop 0"]
            else:
                sl = {0: rd[0:3], 1: rd[3:6], 2: rd[6:8], 3: ex[0:2], 4: ex[2:4]}
                sl[7] = ["s_waitcnt lgkmcnt(0)", "s_barrier"] if ks == 0 else ["s_waitcnt lgkmcnt(0)"]
            sched(A, mf, sl)
    A(f"s_mov_b32 s59, 23\ns_mov_b32 s58, 1\ns_mov_b32 s66, {G2_SLOT}\ns_mov_b32 s68, s66\ns_mov_b32 s70, {-3*G2_SLOT & 0xffffffff}")
    A(f"s_lshl_b32 s3, s60, 18\ns_lshl_b32 s57, s64, 17\ns_add_u32 s3, s3, s57")
    A("v_lshlrev_b32 v17, 11, v4\nv_add_u32 v17, v17, v6\nv_add_u32 v17, s3, v17")
    A("v_lshrrev_b32 v16, 1, v4\nv_lshlrev_b32 v16, 12, v16\nv_add_u32 v16, v16, v18\nv_and_b32 v15, 1, v4\nv_lshl_add_u32 v16, v15, 3, v16\nv_add_u32 v16, s3, v16")
    A("s_barrier")
    stamp(A, st0)
    for l in reads(0, 0, 4): A(l)
    A("s_waitcnt lgkmcnt(0)")
    align8(A)
    start = len(A.lines)
    lp = A.newlabel("c2a")
    A(f"{lp}:")
    stage_body(4)
    A(f"s_cbranch_scc0 {lp}")
    check_loop(A.lines[start:])
    xstamp(A, "g2p1")
    for i in range(4):
        for t in range(2):
            a = ACC + 4*(i*4+2+t); j = i*2 + t
            A(f"buffer_store_dwordx4 v[{a}:{a+3}], v9, {WS}, s46 offen offset:{(j & 3)*1024} sc1")
            if j == 3: A("s_add_u32 s46, s46, 4096")
    xstamp(A, "g2st")
    A("s_mov_b32 s59, 7")
    start = len(A.lines)
    lp = A.newlabel("c2b"); l1 = A.newlabel("c2x"); l2 = A.newlabel("c2y"); l3 = A.newlabel("c2z")
    A(f"{lp}:")
    A(f"s_cmp_lg_u32 s59, 5\ns_cbranch_scc1 {l1}")
    A("s_waitcnt vmcnt(0)")
    flag_set(A, "s47", 12, 9)
    A(f"{l1}:")
    A(f"s_cmp_lg_u32 s59, 3\ns_cbranch_scc1 {l2}")
    A(f"buffer_load_dword v{vPL}, v19, {WS}, s49 offen sc1")
    for i in range(4):
        for t in range(2):
            A(f"s_lshl_b32 s57, s{TC+t}, 1\ns_add_u32 s57, s57, {WS_X1 + i*32768}")
            A(f"buffer_load_dwordx2 v[{XR+4*i+2*t}:{XR+4*i+2*t+1}], v16, {WS}, s57 offen sc1")
    A(f"{l2}:")
    A(f"s_cmp_lg_u32 s59, 1\ns_cbranch_scc1 {l3}")
    d = A.newlabel("s5ok")
    A(f"s_waitcnt vmcnt(0)\nv_cmp_ne_u32 vcc, s{sN}, v{vPL}\ns_nop 1\ns_cbranch_vccz {d}")
    poll(A, 19, "s49", vPL)
    A(f"{d}:")
    for j in range(8):
        A(f"buffer_load_dwordx4 v[{PR+4*j}:{PR+4*j+3}], v9, {WS}, s48 offen offset:{(j & 3)*1024} sc1")
        if j == 3: A("s_add_u32 s48, s48, 4096")
    A(f"{l3}:")
    stage_body(2)
    A(f"s_cbranch_scc0 {lp}")
    check_loop(A.lines[start:])
    stamp(A, st0 + 1)
    so = srd(A, SA_, "out", 4*MB)
    T = FA[0]
    A("s_waitcnt vmcnt(0)")
    for i in range(4):
        for t in range(2):
            a = ACC + 4*(i*4+t); x = XR + 4*i + 2*t; p = PR + 4*(i*2+t)
            lo(A, T, x); hi(A, T+1, x); lo(A, T+2, x+1); hi(A, T+3, x+1)
            for r in range(4): A(f"v_add_f32 v{a+r}, v{a+r}, v{p+r}")
            for r in range(4): A(f"v_fmac_f32 v{T+r}, v{a+r}, v{GB+4*t+r}")
            A(f"v_cvt_pk_bf16_f32 v{x}, v{T}, v{T+1}\nv_cvt_pk_bf16_f32 v{x+1}, v{T+2}, v{T+3}")
            A(f"s_add_u32 s3, s{TC+t}, {i*32768}")
            A(f"buffer_store_dwordx2 v[{x}:{x+1}], v17, {so}, s3 offen")

def kernel(A):
    kernel_begin(A, NAME)
    A("s_load_dwordx2 s[40:41], s[0:1], 8\ns_load_dwordx2 s[44:45], s[0:1], 16")
    A("s_load_dwordx16 s[4:19], s[0:1], 0\ns_load_dwordx16 s[20:35], s[0:1], 64")
    A("s_cmp_ge_u32 s2, 256\ns_cbranch_scc1 L_exit")
    stamp(A, 0)
    A("v_lshrrev_b32 v1, 6, v0\nv_and_b32 v2, 63, v0")
    if opt("map0"): A(f"s_and_b32 s{sTT}, s2, 15\ns_lshr_b32 s{sCT}, s2, 4")
    else: A(f"s_and_b32 s{sCT}, s2, 15\ns_lshr_b32 s{sTT}, s2, 4")
    A(f"v_readfirstlane_b32 s{sWAVE}, v1")
    A("v_lshrrev_b32 v3, 3, v2\nv_bfe_u32 v4, v2, 4, 1\nv_and_b32 v5, 7, v2\nv_xor_b32 v4, v4, v5\nv_lshlrev_b32 v4, 4, v4\nv_lshl_add_u32 v4, v3, 11, v4")
    A(f"s_lshl_b32 s3, s{sTT}, 18\ns_lshl_b32 s57, s{sCT}, 7\ns_add_u32 s3, s3, s57")
    A(f"s_lshl_b32 s57, s{sWAVE}, 15\ns_add_u32 s57, s57, s3")
    A(f"s_and_b32 s58, s{sWAVE}, 1\ns_lshl_b32 s58, s58, 6")
    A("v_xor_b32 v5, s58, v4\nv_add_u32 v5, s57, v5")
    A("v_xor_b32 v6, 32, v5")
    A("s_movk_i32 s58, 15360\nv_add_u32 v16, s58, v6")
    A("v_xor_b32 v17, 64, v5\nv_add_u32 v17, s58, v17")
    A(f"s_mov_b32 s42, {4*MB}\ns_mov_b32 s43, 0x20000\ns_mov_b32 s46, s42\ns_mov_b32 s47, s43")
    sk, sv = "s[40:43]", "s[44:47]"
    A(f"s_lshl_b32 s59, s{sWAVE}, 11\ns_add_u32 m0, s59, {L_KT+1024}")
    A("s_waitcnt lgkmcnt(0)")
    A(f"buffer_load_dwordx4 v6, {sk}, 0 offen nt lds\nbuffer_load_dwordx4 v17, {sk}, 0 offen offset:1024 nt lds")
    A(f"s_add_u32 m0, s59, {L_VT}")
    A(f"buffer_load_dwordx4 v5, {sv}, 0 offen nt lds\nbuffer_load_dwordx4 v16, {sv}, 0 offen offset:1024 nt lds")
    A(f"s_cmp_lg_u32 s{sWAVE}, 0\ns_cbranch_scc1 L_nohalo")
    A(f"s_sub_u32 s3, s3, 16384\ns_cmp_eq_u32 s{sTT}, 0\ns_cselect_b32 s3, 0x80000000, s3\nv_add_u32 v7, s3, v4")
    A(f"s_mov_b32 m0, {L_KT}")
    A(f"buffer_load_dwordx4 v7, {sk}, 0 offen nt lds")
    A("L_nohalo:")
    if opt("dbgst"): A("s_mov_b32 s6, s32\ns_mov_b32 s7, s33")
    A("v_and_b32 v8, 15, v2\nv_lshrrev_b32 v9, 4, v2\nv_lshlrev_b32 v11, 4, v2")
    vL16 = 11
    A("v_and_b32 v10, 1, v9\nv_and_b32 v14, 3, v2\nv_lshl_add_u32 v10, v10, 2, v14\nv_lshlrev_b32 v10, 3, v10")
    ss = srd(A, SC_, "shift", 8192)
    A(f"s_lshl_b32 s3, s{sWAVE}, 6\ns_lshl_b32 s57, s{sCT}, 9\ns_add_u32 s3, s3, s57")
    A(f"buffer_load_dwordx2 v[12:13], v10, {ss}, s3 offen")
    tile_ids(A, 1)
    A(f"s_lshl_b32 s{sTB}, s60, 4\ns_add_u32 s{sTB}, s{sTB}, s61\ns_lshl_b32 s{sCG}, s{sCT}, 4\ns_add_u32 s{sCG}, s{sCG}, s{sTT}")
    if opt("tb0"): A(f"s_mov_b32 s{sTB}, s2")
    A(f"s_lshl_b32 s59, s{sCT}, 7")
    A(f"s_cmp_lt_u32 s{sWAVE}, 4\ns_movk_i32 s58, {F_GVC}\ns_cselect_b32 s58, {F_S2C}, s58\ns_add_u32 s59, s59, s58")
    A(f"s_lshl_b32 s60, s{sCG}, 2\ns_add_u32 s60, s60, s{sWAVE}\ns_and_b32 s60, s60, 1023")
    A("s_lshl_b32 s63, s60, 1\ns_and_b32 s63, s63, 0x7fc")
    A(f"s_load_dword s{sN}, s[34:35], {F_E}\ns_load_dword s{sC0}, s[34:35], s59\ns_load_dword s33, s[{P['ssmD']}:{P['ssmD']+1}], s63")
    A(f"v_lshlrev_b32 v14, 2, v2\nv_add_u32 v14, {L_ST}, v14\nv_mov_b32 v15, 0\nds_write_b32 v14, v15")
    A(f"s_mov_b32 s36, s34\ns_mov_b32 s37, s35\ns_mov_b32 s38, {64*MB}\ns_mov_b32 s39, 0x20000")
    A(f"s_mul_i32 s61, s{sWAVE}, {WSZ}\ns_lshl_b32 s62, s60, 12")
    sp = srd(A, SA_, "ssmk", 4*MB); sc = srd(A, SB_, "c", 2048)
    A("s_getpc_b64 s[64:65]")
    A("L_pc:")
    A(f"s_lshr_b32 s3, s2, 3\ns_and_b32 s3, s3, 31\ns_lshl_b32 s3, s3, 10\nv_and_b32 v14, 7, v2\nv_lshlrev_b32 v14, 7, v14\nv_add_u32 v14, s3, v14\nv_min_u32 v14, L_end-L_pc-4, v14")
    A(f"v_lshlrev_b32 v15, 2, v2\ns_and_b32 s3, s{sTT}, 7\ns_lshl_b32 s3, s3, 8")
    xstamp(A, "iss")
    A("s_barrier")
    A(f"s_cmp_ge_u32 s{sWAVE}, 4\ns_cbranch_scc1 L_b0")
    A("s_add_u32 m0, s61, 32")
    for i in range(4): A(f"buffer_load_dwordx4 v{vL16}, {sp}, s62 offen offset:{i*1024} nt lds")
    A("s_branch L_c0")
    A("L_b0:")
    A(f"buffer_load_dword v220, v15, {sc}, s3 offen")
    A("global_load_dword v221, v14, s[64:65]")
    A("global_load_dword v221, v14, s[64:65]\nglobal_load_dword v221, v14, s[64:65]")
    A("L_c0:")
    A.flush_hist()

    A("v_bfe_u32 v16, v2, 2, 2\nv_and_b32 v17, 3, v2\nv_lshrrev_b32 v18, 1, v16")
    A(f"v_xor_b32 v18, s{sWAVE}, v18")
    A("v_lshrrev_b32 v19, 1, v9\nv_lshl_add_u32 v20, v19, 3, v17\nv_lshlrev_b32 v20, 10, v20\nv_lshl_add_u32 v20, v16, 7, v20")
    A(f"v_and_b32 v21, 1, v9\nv_lshl_add_u32 v20, v21, 3, v20\nv_add_u32 v20, {L_KT}, v20")
    A("v_lshlrev_b32 v22, 1, v17\nv_xor_b32 v22, v22, v18\nv_lshl_add_u32 v22, v22, 4, v20")
    A("v_add_u32 v23, 1, v17\nv_and_b32 v23, 3, v23\nv_lshlrev_b32 v23, 1, v23\nv_xor_b32 v23, v23, v18\nv_lshl_add_u32 v23, v23, 4, v20")
    A("v_lshl_add_u32 v24, v19, 3, v16\nv_sub_u32 v24, 11, v24\nv_lshlrev_b32 v24, 6, v24\nv_lshl_add_u32 v24, v17, 4, v24\nv_lshl_add_u32 v24, v21, 14, v24")
    A(f"s_lshl_b32 s3, s{sCT}, 18\ns_lshl_b32 s57, s{sWAVE}, 15\ns_add_u32 s3, s3, s57\ns_lshl_b32 s57, s{sTT}, 10\ns_sub_u32 s3, s3, s57\ns_add_u32 s58, s3, {WS_KVR + 240*64}")
    WF = 26
    A("s_waitcnt vmcnt(4)")
    xstamp(A, "kv")
    lo(A, WF, 12); hi(A, WF+1, 12); lo(A, WF+2, 13); hi(A, WF+3, 13)
    A("s_waitcnt lgkmcnt(0)")
    A(f"s_mul_i32 s{sN}, s{sN}, 0x9E3779B1\ns_add_u32 s{sN}, s{sN}, 0x7F4A7C15")
    A(f"s_lshl_b32 s59, s{sCG}, 3\ns_add_u32 s59, s59, s{sWAVE}\ns_lshl_b32 s59, s59, 7\ns_add_u32 s59, s59, {F_S1}")
    stamp(A, 1)
    A("s_barrier")
    KP, VP, KF, T, O = 32, 44, 52, 64, 72
    for e in range(2):
        A(f"ds_read_b64_tr_b16 v[{KP+6*e}:{KP+6*e+1}], v22 offset:{e*4096 + 512}")
        A(f"ds_read_b64_tr_b16 v[{KP+6*e+2}:{KP+6*e+3}], v23 offset:{e*4096 + 1024}")
        A(f"ds_read_b64_tr_b16 v[{KP+6*e+4}:{KP+6*e+5}], v23 offset:{e*4096 + 1536}")
        A(f"ds_read_b64_tr_b16 v[{VP+4*e}:{VP+4*e+1}], v22 offset:{17408 + e*4096}")
        A(f"ds_read_b64_tr_b16 v[{VP+4*e+2}:{VP+4*e+3}], v22 offset:{17408 + e*4096 + 512}")
    for e in range(2):
        A(f"s_waitcnt lgkmcnt({7 - 5*e})")
        for j in range(11):
            (hi if j % 2 == 0 else lo)(A, KF+j, KP + 6*e + (j+1)//2)
        for i in range(8): A(f"v_mul_f32 v{T+i}, v{WF+3}, v{KF+i}")
        for j in (2, 1, 0):
            for i in range(8): A(f"v_fmac_f32 v{T+i}, v{WF+j}, v{KF+i+3-j}")
        A(f"s_waitcnt lgkmcnt({5 - 5*e})")
        for i in range(8): (lo if i % 2 == 0 else hi)(A, KF+i, VP + 4*e + i//2)
        for i in range(8): A(f"v_mul_f32 v{T+i}, v{T+i}, v{KF+i}")
        for x in range(4): A(f"v_cvt_pk_bf16_f32 v{O+4*e+x}, v{T+7-2*x}, v{T+6-2*x}")
        A(f"buffer_store_dwordx4 v[{O+4*e}:{O+4*e+3}], v24, {WS}, s58 offen offset:{256*(1-e)} sc1")
    xstamp(A, "kst")
    A(f"s_and_b32 s3, s{sTT}, 7\ns_or_b32 s3, s3, s{sWAVE}\ns_cmp_lg_u32 s3, 0\ns_cbranch_scc1 L_nozero")
    A(f"s_lshr_b32 s3, s{sCG}, 3\ns_mul_i32 s3, s3, 768\ns_add_u32 s3, s3, {F_MOD}")
    A("v_mov_b32 v48, 0\nv_mov_b32 v49, 0\nv_mov_b32 v50, 0\nv_mov_b32 v51, 0")
    A("s_mov_b32 exec_lo, -1\ns_mov_b32 exec_hi, 0xffff")
    A(f"buffer_store_dwordx4 v[48:51], v{vL16}, {WS}, s3 offen sc1")
    A("s_mov_b64 exec, -1")
    A("L_nozero:")
    A.flush_hist()
    A("s_waitcnt vmcnt(0)")
    flag_set(A, "s59", 52, vL16)
    stamp(A, 2)
    A(f"s_cmp_ge_u32 s{sWAVE}, 4\ns_cbranch_scc1 L_b1")
    X, Y = 192, 208
    A(f"v_add_u32 v41, s61, v{vL16}")
    for i in range(4):
        A(f"ds_read_b128 v[{X+4*i}:{X+4*i+3}], v41 offset:{32+i*1024}")
        A(f"ds_read_b64 v[{Y+2*i}:{Y+2*i+1}], v41 offset:{48+i*1024}")
    A("v_add_u32 v42, v9, v8\nv_lshlrev_b32 v40, 1, v42\nv_add_u32 v40, s61, v40\nds_read_u16 v216, v40")
    A(f"v_cmp_lt_u32 vcc, 15, v42\nv_mul_u32_u24 v40, {PS}, v9\nv_lshl_add_u32 v40, v8, 1, v40\nv_add_u32 v40, s61, v40")
    A(f"v_mov_b32 v14, 0\nv_mov_b32 v15, 0\nv_lshlrev_b32 v13, 3, v0\nv_add_u32 v13, {L_Q+16384}, v13")
    for i in range(4):
        a = [X+4*i, X+4*i+1, X+4*i+2, X+4*i+3, Y+2*i, Y+2*i+1]
        c1 = 112 + 12*i; c2 = c1 + 4; c3 = c1 + 8
        if i == 0: A("s_waitcnt lgkmcnt(0)")
        for j in range(4): A(f"v_alignbit_b32 v{c1+j}, v{a[j+1]}, v{a[j]}, 16")
        A(f"ds_write_b128 v41, v[{c1}:{c1+3}] offset:{PS+32+i*1024}")
        for j in range(4): A(f"v_mov_b32 v{c2+j}, v{a[j+1]}")
        A(f"ds_write_b128 v41, v[{c2}:{c2+3}] offset:{2*PS+32+i*1024}")
        for j in range(4): A(f"v_alignbit_b32 v{c3+j}, v{a[j+2]}, v{a[j+1]}, 16")
        A(f"ds_write_b128 v41, v[{c3}:{c3+3}] offset:{3*PS+32+i*1024}")
    A("v_cndmask_b32 v216, 0, v216, vcc\nds_write_b16 v40, v216")
    A("ds_write_b64 v13, v[14:15]")
    A("s_and_b32 s3, s60, 1\ns_lshl_b32 s3, s3, 4\ns_lshr_b32 s33, s33, s3\ns_and_b32 s33, s33, 0xffff")
    A("v_lshl_add_u32 v48, v9, 3, v8\nv_sub_u32 v48, 15, v48\nv_and_b32 v49, 1, v48\nv_lshlrev_b32 v49, 4, v49\nv_lshlrev_b32 v49, v49, s33\nv_ashrrev_i32 v48, 1, v48")
    for e in range(4): A(f"v_cmp_eq_u32 vcc, {e}, v48\nv_cndmask_b32 v{64+e}, 0, v49, vcc")
    A(f"v_add_u32 v42, 1, v8\nv_and_b32 v43, 3, v42\nv_mul_u32_u24 v43, {PS}, v43\nv_lshrrev_b32 v42, 2, v42")
    A("v_lshl_add_u32 v43, v42, 3, v43\nv_lshl_add_u32 v43, v9, 4, v43\nv_add_u32 v43, s61, v43")
    vP, vQ, vE, vS = 43, [44, 45], 47, 46
    A("v_lshlrev_b32 v48, 1, v8\nv_sub_u32 v48, 30, v48\nv_add_u32 v48, v48, v9\nv_lshrrev_b32 v49, 2, v48")
    for rho in range(2):
        A(f"v_add_u32 v50, {rho}, v49\nv_and_b32 v50, 3, v50\nv_xor_b32 v50, s{sWAVE}, v50\nv_lshlrev_b32 v50, 4, v50\nv_lshl_add_u32 v50, v48, 6, v50\nv_add_u32 v{vQ[rho]}, {L_Q}, v50")
    A(f"s_lshr_b32 s3, s{sWAVE}, 1\nv_lshl_add_u32 v46, v9, 1, s3\nv_and_b32 v48, 7, v8\nv_xor_b32 v46, v46, v48\nv_lshlrev_b32 v46, 4, v46")
    A(f"v_lshl_add_u32 v46, v8, 7, v46\ns_and_b32 s3, s{sWAVE}, 1\ns_lshl_b32 s3, s3, 3\ns_add_u32 s3, s3, {L_YS}\nv_add_u32 v46, s3, v46")
    ACC = 80; FA = [112, 176]; FB = [144, 208]; KE = 64
    def reads(r, buf):
        La, Lb = [], []
        for i in range(8):
            Lb.append(f"ds_read_b128 v[{FB[buf]+4*i}:{FB[buf]+4*i+3}], v{vQ[r & 1]} offset:{256*r + 2048*(7-i)}")
            La.append(f"ds_read_b64 v[{FA[buf]+4*i}:{FA[buf]+4*i+1}], v{vP} offset:{512*i + 64*r}")
            La.append(f"ds_read_b64 v[{FA[buf]+4*i+2}:{FA[buf]+4*i+3}], v{vP} offset:{512*i + 64*r + 8}")
        return La, Lb
    La, Lb = reads(0, 0)
    A("s_waitcnt lgkmcnt(0)")
    for l in La: A(l)
    q_addr(A, 48)
    A("s_mov_b32 s59, 3")
    stamp(A, 3)
    A("s_waitcnt lgkmcnt(0)\ns_barrier")
    for l in Lb: A(l)
    q_issue(A, 48)
    stamp(A, 4)
    for q in range(8):
        A(f"s_waitcnt lgkmcnt({7-q if not STAMPS else 0})")
        A(f"v_mfma_f32_16x16x32_bf16 v[{ACC+4*q}:{ACC+4*q+3}], v[64:67], v[{FB[0]+4*q}:{FB[0]+4*q+3}], 0")
    align8(A)
    start = len(A.lines)
    A("L_conv:")
    for r in range(2):
        if r == 0:
            La, Lb = reads(1, 1)
            tail = [[f"v_xor_b32 v{vQ[0]}, 32, v{vQ[0]}", f"v_xor_b32 v{vQ[1]}, 32, v{vQ[1]}"],
                    [f"v_add_u32 v{vQ[0]}, 512, v{vQ[0]}"], [f"v_add_u32 v{vQ[1]}, 512, v{vQ[1]}"], [f"v_add_u32 v{vP}, 128, v{vP}"]]
        else:
            La, Lb = reads(0, 0)
            tail = [["s_sub_u32 s59, s59, 1", "s_nop 0"]]
        nxt = [[x] for x in Lb + La] + tail
        mf = [f"v_mfma_f32_16x16x32_bf16 v[{ACC+4*(i+j)}:{ACC+4*(i+j)+3}], v[{FA[r]+4*i}:{FA[r]+4*i+3}], v[{FB[r]+4*j}:{FB[r]+4*j+3}], v[{ACC+4*(i+j)}:{ACC+4*(i+j)+3}]"
              for i in range(8) for j in range(8 - i)]
        sl = {n: x for n, x in enumerate(nxt)}
        sl[34] = ["s_waitcnt lgkmcnt(0)", "s_nop 0"]
        sched(A, mf, sl)
    A("s_cbranch_scc0 L_conv")
    check_loop(A.lines[start:])
    stamp(A, 5)
    T = 48
    for q in range(8):
        e = KE + 2*q
        A(f"v_cvt_pk_bf16_f32 v{e}, v{ACC+4*q}, v{ACC+4*q+1}\nv_cvt_pk_bf16_f32 v{e+1}, v{ACC+4*q+2}, v{ACC+4*q+3}")
        A(f"ds_write_b64 v{vS}, v[{e}:{e+1}] offset:{q*2048}")
    A(f"v_mov_b32 v52, {L_CNT}\nv_mov_b32 v53, 1\ns_waitcnt lgkmcnt(0)\ns_mov_b64 exec, 1\nds_add_u32 v52, v53\ns_mov_b64 exec, -1")
    A(f"v_lshrrev_b32 v48, 3, v2\nv_and_b32 v49, 7, v2\nv_xor_b32 v50, v48, v49\nv_lshlrev_b32 v50, 4, v50\nv_lshl_add_u32 v50, v48, 7, v50")
    A(f"s_lshl_b32 s3, s{sWAVE}, 12\ns_add_u32 s3, s3, {L_YS}\nv_add_u32 v50, s3, v50")
    A("v_lshrrev_b32 v51, 2, v49\nv_lshl_add_u32 v51, v48, 1, v51\nv_lshlrev_b32 v51, 14, v51\nv_and_b32 v49, 3, v49\nv_lshl_add_u32 v51, v49, 4, v51")
    A(f"s_lshl_b32 s3, s{sWAVE}, 20\ns_lshl_b32 s57, s{sCG}, 6\ns_add_u32 s3, s3, s57\ns_add_u32 s3, s3, {WS_YB}")
    A("L_rv:")
    A("ds_read_b32 v53, v52\ns_waitcnt lgkmcnt(0)\nv_readfirstlane_b32 s57, v53\ns_cmp_lt_u32 s57, 4\ns_cbranch_scc1 L_rv")
    for i in range(4): A(f"ds_read_b128 v[{64+4*i}:{67+4*i}], v50 offset:{i*1024}")
    for i in range(4):
        A(f"s_waitcnt lgkmcnt({3-i})")
        A(f"buffer_store_dwordx4 v[{64+4*i}:{67+4*i}], v51, {WS}, s3 offen sc1")
        if i < 3: A(f"s_add_u32 s3, s3, {8*2*16384}")
    xstamp(A, "ys")
    A("s_waitcnt vmcnt(4)")
    ln0_part1(A)
    A("s_waitcnt vmcnt(0)")
    xstamp(A, "yd")
    arrive(A, F_S2C, F_S2R, L_CNT+4, 52, vL16)
    stamp(A, 6)
    A(f"s_cmp_lg_u32 s{sWAVE}, 0\ns_cbranch_scc1 L_ln")
    A(f"v_lshlrev_b32 v47, 7, v8\ns_movk_i32 s3, {F_S2R}")
    poll(A, 47, "s3", 48)
    xstamp(A, "s2p")
    A("s_branch L_ln")
    A.flush_hist()
    A("L_b1:")
    A(f"s_cmp_lg_u32 s{sWAVE}, 7\ns_cbranch_scc1 L_b1g")
    A(f"s_lshr_b32 s3, s{sTT}, 1\ns_lshl_b32 s3, s3, 7\nv_and_b32 v47, 1, v9\nv_subrev_u32 v47, 1, v47\nv_and_b32 v47, s3, v47\nv_lshl_add_u32 v47, v8, 10, v47")
    A("v_and_b32 v46, 3, v2\nv_xor_b32 v46, v46, v9\nv_lshlrev_b32 v46, 4, v46\nv_lshrrev_b32 v45, 2, v2\nv_lshl_add_u32 v46, v45, 6, v46")
    A(f"s_lshl_b32 s3, s{sCT}, 14\ns_add_u32 s3, s3, {F_S1}\ns_lshl_b32 s58, s{sCG}, 14\ns_add_u32 s58, s58, {WS_KVR}")
    poll(A, 47, "s3", 48)
    xstamp(A, "s1p")
    for w in range(4):
        A(f"s_mov_b32 m0, {L_Q + w*4096}")
        for i in range(4): A(f"buffer_load_dwordx4 v46, {WS}, s58 offen offset:{i*1024} sc1 lds")
        if w < 3: A("s_add_u32 s58, s58, 4096")
    tile_ids(A, 1)
    g1_prod_setup(A)
    q_addr(A, 48)
    A("s_lshr_b32 s58, s2, 3\ns_lshl_b32 s58, s58, 1\ns_and_b32 s57, s2, 1\ns_add_u32 s58, s58, s57\ns_mul_i32 s58, s58, 7168")
    A(f"s_lshr_b32 s57, s61, 2\ns_mul_i32 s57, s57, 1792\ns_add_u32 s58, s58, s57\ns_add_u32 s{sPF}, s{P['w1']}, s58\ns_addc_u32 s{sPF+1}, s{P['w1']+1}, 0")
    A("s_waitcnt vmcnt(0)\ns_barrier")
    A("s_sleep 8")
    q_issue(A, 48)
    if opt("pf0", 4):
        A(f"s_mov_b32 s59, {opt('pf0', 4)}")
        A("L_pf0:")
        sprefetch(A, 28, 64*7168)
        A("s_sub_u32 s59, s59, 1\ns_cmp_lg_u32 s59, 0\ns_cbranch_scc1 L_pf0")
    xstamp(A, "bp")
    A("s_waitcnt vmcnt(0)")
    ln0_part1(A)
    A("s_branch L_b1m")
    A.flush_hist()
    A("L_b1g:")
    tile_ids(A, 1)
    g1_prod_setup(A)
    A(f"s_mov_b32 s3, {f2u(-1.4426950408889634):#x}")
    lo(A, 16, 220); hi(A, 17, 220)
    for i in range(2): A(f"v_mul_f32 v{18+i}, s3, v{16+i}")
    for i in range(2): A(f"v_exp_f32 v{18+i}, v{18+i}")
    for i in range(2): A(f"v_add_f32 v{18+i}, 1.0, v{18+i}")
    for i in range(2): A(f"v_rcp_f32 v{18+i}, v{18+i}")
    for i in range(2): A(f"v_mul_f32 v{18+i}, v{18+i}, v{16+i}")
    A("v_cvt_pk_bf16_f32 v18, v18, v19")
    A(f"s_lshl_b32 s58, s64, 9\ns_add_u32 s58, s58, {L_GS}\nv_lshlrev_b32 v20, 2, v2\nv_add_u32 v21, s58, v20\nds_write_b32 v21, v18")
    A("v_lshlrev_b32 v22, 3, v9\nv_add_u32 v22, s58, v22")
    SF, GA, GW = 64, 80, 96
    for kb in range(4):
        A(f"ds_read_b64 v[{SF+4*kb}:{SF+4*kb+1}], v22 offset:{kb*64}\nds_read_b64 v[{SF+4*kb+2}:{SF+4*kb+3}], v22 offset:{kb*64+32}")
    unit_lane_off(A, 24, 12288)
    for k in range(1, 4): A(f"v_add_u32 v{24+k}, {k*(8*12288 - 1024)}, v24")
    A(f"s_and_b32 s3, s{sTT}, 7\ns_mul_i32 s3, s3, {128*12288}\ns_lshr_b32 s57, s{sCG}, 3\ns_mul_i32 s57, s57, 384\ns_add_u32 s3, s3, s57\ns_lshl_b32 s57, s64, 7\ns_add_u32 s48, s3, s57")
    A(f"s_lshl_b32 s49, s64, 14\ns_add_u32 s49, s49, {L_GW}")
    A("v_lshrrev_b32 v28, 2, v2\nv_and_b32 v28, 7, v28\nv_lshrrev_b32 v29, 1, v28\nv_lshlrev_b32 v29, 5, v29\nv_lshl_add_u32 v29, v28, 7, v29")
    A("v_and_b32 v28, 3, v2\nv_lshl_add_u32 v29, v28, 3, v29\nv_lshrrev_b32 v28, 5, v2\nv_lshl_add_u32 v29, v28, 10, v29\nv_add_u32 v29, s49, v29")
    for cb in range(4): A(f"v_xor_b32 v{56+cb}, {cb*32}, v29")
    A("v_lshlrev_b32 v23, 4, v9\nv_add_u32 v23, s58, v23")
    sw = srd(A, SB_, "wmod", 12*MB)
    A("s_mov_b32 s58, s48\ns_mov_b32 s59, s49")
    q_addr(A, 48)
    A("s_waitcnt lgkmcnt(0)\ns_barrier")
    A("s_sleep 2")
    for kb in range(4):
        A(f"s_add_u32 m0, s59, {kb*4096}")
        for k in range(4): A(f"buffer_load_dwordx4 v{24+k}, {sw}, s58 offen offset:{k*1024} nt lds")
        if kb < 3: A(f"s_add_u32 s58, s58, {32*12288}")
    q_issue(A, 48)
    xstamp(A, "bi")
    A("s_setprio 3")
    for kb in range(4):
        A(f"s_waitcnt vmcnt({16 - 4*kb})")
        for cb in range(4):
            A(f"ds_read_b64_tr_b16 v[{GW+4*cb}:{GW+4*cb+1}], v{56+cb} offset:{kb*4096}\nds_read_b64_tr_b16 v[{GW+4*cb+2}:{GW+4*cb+3}], v{56+cb} offset:{kb*4096+2048}")
        A("s_waitcnt lgkmcnt(0)")
        for cb in range(4):
            c = "0" if kb == 0 else f"v[{GA+4*cb}:{GA+4*cb+3}]"
            A(f"v_mfma_f32_16x16x32_bf16 v[{GA+4*cb}:{GA+4*cb+3}], v[{GW+4*cb}:{GW+4*cb+3}], v[{SF+4*kb}:{SF+4*kb+3}], {c}")
    xstamp(A, "bw")
    A("s_mov_b32 exec_lo, 0x00010001\ns_mov_b32 exec_hi, 0x00010001")
    for cb in range(4): A(f"ds_write_b128 v23, v[{GA+4*cb}:{GA+4*cb+3}] offset:{256 + cb*64}")
    A("s_mov_b64 exec, -1")
    A("ds_read_b32 v30, v21 offset:256")
    A(f"s_lshr_b32 s3, s{sCG}, 3\ns_mul_i32 s3, s3, 768\ns_lshl_b32 s57, s64, 8\ns_add_u32 s3, s3, s57\ns_add_u32 s3, s3, {F_MOD}")
    A("s_waitcnt lgkmcnt(0)")
    A(f"buffer_atomic_add_f32 v30, v20, {WS}, s3 offen sc1")
    xstamp(A, "ba")
    A("s_waitcnt vmcnt(1)")
    ln0_part1(A)
    A("s_waitcnt vmcnt(0)")
    xstamp(A, "bd")
    arrive(A, F_GVC, F_GVR, L_CNT+8, 52, vL16, 3)
    A("s_setprio 0")
    A("L_b1m:")
    A.flush_hist()
    stamp(A, 3)
    A(f"v_lshlrev_b32 v47, 7, v8\ns_movk_i32 s3, {F_GVR}")
    poll(A, 47, "s3", 48, 4)
    stamp(A, 4)
    A("v_and_b32 v48, 255, v0\nv_lshlrev_b32 v48, 4, v48")
    M = 64
    for j in range(5):
        A(f"s_mov_b32 s3, {F_MOD + j*4096}")
        A(f"buffer_load_dwordx4 v[{M+4*j}:{M+4*j+3}], v48, {WS}, s3 offen sc1")
    A(f"v_add_u32 v48, {L_MOD}, v48")
    A("s_waitcnt vmcnt(0)")
    for e in range(20): A(f"v_cvt_pk_bf16_f32 v{M+e}, v{M+e}, v{M+e}")
    for e in range(20): A(f"v_lshlrev_b32 v{M+e}, 16, v{M+e}")
    for j in (1, 4):
        for e in range(4): A(f"v_add_f32 v{M+4*j+e}, 1.0, v{M+4*j+e}")
        for e in range(4): A(f"v_cvt_pk_bf16_f32 v{M+4*j+e}, v{M+4*j+e}, v{M+4*j+e}")
        for e in range(4): A(f"v_lshlrev_b32 v{M+4*j+e}, 16, v{M+4*j+e}")
    for j in (0, 1):
        for e in range(4): A(f"v_mul_f32 v{M+4*j+e}, v{M+4*j+e}, v{M+8+e}")
    for n, j in enumerate((0, 1, 3, 4)): A(f"ds_write_b128 v48, v[{M+4*j}:{M+4*j+3}] offset:{n*4096}")
    A(f"s_add_u32 s3, s64, 4\ns_lshl_b32 s3, s3, 6\nv_mov_b32 v222, s3")
    A("s_lshr_b32 s3, s2, 3\ns_lshl_b32 s3, s3, 1\ns_and_b32 s57, s2, 1\ns_add_u32 s3, s3, s57\nv_add_u32 v222, s3, v222\ns_movk_i32 s3, 7168\nv_mul_lo_u32 v222, v222, s3")
    A("v_min_u32 v223, 13, v8\nv_lshl_add_u32 v222, v223, 7, v222\ns_lshr_b32 s57, s61, 2\ns_mul_i32 s57, s57, 1792\nv_add_u32 v222, s57, v222")
    stamp(A, 6)
    A("L_ln:")
    A.flush_hist()
    A("s_nop 4")
    A(f"v_lshlrev_b32 v12, 6, v{vCG}\nv_lshl_add_u32 v12, v{vHF}, 5, v12")
    A(f"v_lshlrev_b32 v15, 4, v{vCG}\nv_lshl_add_u32 v248, v{vHF}, 13, v15\nv_add_u32 v15, {L_MOD}, v15")
    A(f"s_lshl_b32 s58, s{sTB}, 14\ns_add_u32 s3, s58, {WS_YB}\ns_add_u32 s58, s58, {WS_X1}\nv_add_u32 v248, s58, v248\nv_add_u32 v249, 4096, v248")
    A("s_waitcnt lgkmcnt(0)\ns_barrier")
    stamp(A, 7)
    YR, M, H, TMP, ST = 40, 48, 72, 88, 96
    for c in range(2): A(f"buffer_load_dwordx4 v[{YR+4*c}:{YR+4*c+3}], v12, {WS}, s3 offen offset:{16*c} sc1")
    for j in range(4): A(f"ds_read_b128 v[{M+4*j}:{M+4*j+3}], v15 offset:{j*4096}")
    red_part2(A, vSTR, 0, ST)
    normalize(A, H, LX, ST, M+4, M)
    A(f"v_lshrrev_b32 v12, 3, v{vCG}\nv_and_b32 v15, 3, v{vCG}\nv_lshl_add_u32 v12, v12, 2, v15")
    A(f"v_and_b32 v15, 7, v12\nv_lshlrev_b32 v10, 2, v{vHF}\nv_xor_b32 v15, v15, v10\nv_lshlrev_b32 v15, 4, v15\nv_lshl_add_u32 v12, v12, 7, v15")
    A(f"v_and_b32 v15, 4, v{vCG}\nv_lshl_add_u32 v12, v15, 1, v12\nv_add_u32 v12, {L_MOD}, v12")
    xstamp(A, "ln_a")
    A("s_waitcnt vmcnt(0)")
    xstamp(A, "ln_b")
    if not opt("nopf1"):
        A(f"s_cmp_lt_u32 s{sWAVE}, 4\ns_cbranch_scc1 L_nopf1")
        A(f"buffer_load_dword v223, v222, s[{SA_}:{SA_+3}], 0 offen")
        A("L_nopf1:")
    for i in range(4):
        for c in range(4): (lo if i % 2 == 0 else hi)(A, TMP+c, YR+2*c+i//2)
        for c in range(0, 4, 2): A(f"v_pk_fma_f32 v[{LX+4*i+c}:{LX+4*i+c+1}], v[{H+4*i+c}:{H+4*i+c+1}], v[{TMP+c}:{TMP+c+1}], v[{LX+4*i+c}:{LX+4*i+c+1}]")
        A(f"v_cvt_pk_bf16_f32 v{QR+2*i}, v{LX+4*i}, v{LX+4*i+1}\nv_cvt_pk_bf16_f32 v{QR+2*i+1}, v{LX+4*i+2}, v{LX+4*i+3}")
        lo(A, LX+4*i, QR+2*i); hi(A, LX+4*i+1, QR+2*i); lo(A, LX+4*i+2, QR+2*i+1); hi(A, LX+4*i+3, QR+2*i+1)
    stats4(A, LX, LR)
    red_part1(A, LR, vSTW, 64)
    xstamp(A, "ln_c")
    A("s_waitcnt lgkmcnt(0)\ns_barrier")
    xstamp(A, "ln_d")
    red_part2(A, vSTR, 64, ST)
    normalize(A, H, LX, ST, M+12, M+8)
    stats4(A, H, LR)
    red_part1(A, LR, vSTW, 128)
    xstamp(A, "ln_e")
    A("s_waitcnt lgkmcnt(0)\ns_barrier")
    xstamp(A, "ln_f")
    red_part2(A, vSTR, 128, ST)
    normalize(A, H, H, ST)
    for i in range(4):
        A(f"v_cvt_pk_bf16_f32 v{YR+2*i}, v{H+4*i}, v{H+4*i+1}\nv_cvt_pk_bf16_f32 v{YR+2*i+1}, v{H+4*i+2}, v{H+4*i+3}")
        A(f"v_xor_b32 v15, {i*16}, v12")
        A(f"ds_write_b64 v15, v[{YR+2*i}:{YR+2*i+1}]")
    xstamp(A, "ln_g")
    A(f"s_cmp_ge_u32 s{sWAVE}, 4\ns_cbranch_scc1 L_b2")
    A(f"v_lshrrev_b32 v12, 3, v0\nv_and_b32 v13, 7, v0\nv_and_b32 v14, 7, v12\nv_xor_b32 v14, v14, v13\nv_lshlrev_b32 v14, 4, v14\nv_lshl_add_u32 v14, v12, 7, v14\nv_add_u32 v14, {L_MOD}, v14")
    A(f"s_lshr_b32 s3, s{sTB}, 1\ns_lshl_b32 s3, s3, 15\ns_and_b32 s57, s{sTB}, 1\ns_lshl_b32 s57, s57, 7\ns_add_u32 s3, s3, s57\ns_add_u32 s3, s3, {WS_Y2F}")
    A("v_lshlrev_b32 v15, 8, v12\nv_lshl_add_u32 v15, v13, 4, v15")
    A("s_waitcnt lgkmcnt(0)\ns_barrier")
    xstamp(A, "ln_h")
    for i in range(4): A(f"ds_read_b128 v[{64+4*i}:{67+4*i}], v14 offset:{i*4096}")
    for i in range(4):
        A(f"s_waitcnt lgkmcnt({3-i})")
        A(f"buffer_store_dwordx4 v[{64+4*i}:{67+4*i}], v15, {WS}, s3 offen sc1")
        if i < 3: A("s_add_u32 s3, s3, 8192")
    A(f"s_lshl_b32 s3, s{sTB}, 2\ns_add_u32 s3, s3, s{sWAVE}\ns_lshl_b32 s3, s3, 7\ns_add_u32 s3, s3, {F_S3}")
    A("s_waitcnt vmcnt(0)")
    flag_set(A, "s3", 52, vL16)
    xstamp(A, "ln_i")
    A("s_barrier")
    stamp(A, 8)
    g1_consumer(A, 9)
    g2_consumer(A, 12)
    if STAMPS:
        A("s_waitcnt vmcnt(0)"); stamp(A, 14)
    stamp_flush(A)
    A("s_endpgm")
    A.flush_hist()
    A("L_b2:")
    A("s_waitcnt lgkmcnt(0)\ns_barrier")
    stamp(A, 8)
    A("s_barrier")
    for _ in range(2): g1_issue_w(A)
    A(f"v_and_b32 v47, 15, v2\nv_lshlrev_b32 v47, 7, v47\ns_lshl_b32 s3, s60, 13\ns_lshl_b32 s57, s64, 11\ns_add_u32 s3, s3, s57\ns_add_u32 s3, s3, {F_S3}")
    poll(A, 47, "s3", 48)
    stamp(A, 9)
    A(f"s_or_b32 s3, s2, s64\ns_cmp_lg_u32 s3, 0\ns_cbranch_scc1 L_noepoch")
    flag_set(A, "0", 52, vL16)
    A("s_waitcnt vmcnt(0)")
    A("L_noepoch:")
    g1_prod_main(A)
    stamp(A, 10)
    g2_producer(A)
    stamp(A, 13)
    stamp_flush(A)
    A("L_exit:\ns_endpgm")
    A("L_end:")

def build():
    A = Asm()
    kernel(A)
    head = ["; generated by dev/gen6.py (single persistent kernel; see that generator for the design notes)",
            f"; @launch grid=(256,1,1) block=(512,1,1) lds={LDS_TOTAL}",
            '.amdgcn_target "amdgcn-amd-amdhsa--gfx950"', ".text"]
    tail = ['.section .rodata,"a"', ".p2align 6", descriptor(NAME, 256, 102)]
    return "\n".join(head) + "\n" + A.text() + "\n".join(tail)

if __name__ == "__main__":
    if "-stamps" in sys.argv: STAMPS = True
    for a in sys.argv:
        if a.startswith("-o="):
            for kv in a[3:].split(","):
                k, v = kv.split(":"); OPT[k] = int(v)
        if a.startswith("-xs="):
            STAMPS = True
            for n, nm in enumerate(a[4:].split(",")): XS[nm] = n + 1
    out = sys.argv[1] if len(sys.argv) > 1 and not sys.argv[1].startswith("-") else "adaLN_cond__ssm_conv_h3__mixer_channel_mlp__prompt.s"
    open(out, "w").write(build())
```

```python
import sys, math, struct
from asmgen import *

MB = 1 << 20
NAME = "adaLN_cond__ssm_conv_h3__mixer_channel_mlp__prompt_kernel"
F_E, F_S2C, F_S2R, F_GVC, F_GVR, F_MOD = 0, 0x1000, 0x3000, 0x5000, 0x7000, 0x10000
F_S3, F_S4A, F_S4B, F_S5, F_S1 = 0x20000, 0x40000, 0x60000, 0x80000, 0xA0000
WS_KVR, WS_YB, WS_X1, WS_Y2F, WS_HF, WS_PART, WS_ST = 1*MB, 5*MB, 9*MB, 13*MB, 17*MB, 32*MB, 48*MB
P = dict(q=4, k=6, v=8, shift=10, ssmk=12, ssmD=14, w1=18, b1=20, w2=22, b2=24, c=26, wmod=28, out=30, ws=34)
WS = "s[36:39]"
SA_, SB_, SC_ = 40, 44, 48
sWAVE, sN, sCT, sTT, sC0 = 52, 53, 54, 55, 56
sCG, sTB = 0, 1
sPF, sDUMMY = 16, 32
PS = 4160; WSZ = 4 * PS; L_Q = 4 * WSZ; L_GW = 102400; L_GS = L_GW + 49152
L_KT = 86016; L_VT = L_KT + 17408; L_TB = L_VT + 16384
L_YS = 86016; L_MOD = 135168; L_ST = 155648; LDS_TOTAL = 156672
L_CNT = L_ST + 192
G1_W, G1_WSLOT, G1_A = 0, 28672, 86016
QR = 240
STAMPS = False
OPT = {}
def opt(k, d=0): return OPT.get(k, d)
def asc(): return '' if opt('nosc1') else 'sc1'

def f2u(x): return struct.unpack("<I", struct.pack("<f", x))[0]
def srd(A, d, name, nbytes):
    b = P[name]
    A(f"s_mov_b32 s{d}, s{b}\ns_mov_b32 s{d+1}, s{b+1}\ns_mov_b32 s{d+2}, {nbytes}\ns_mov_b32 s{d+3}, 0x20000")
    return f"s[{d}:{d+3}]"
def lo(A, d, s): A(f"v_lshlrev_b32 v{d}, 16, v{s}")
def hi(A, d, s): A(f"v_and_b32 v{d}, 0xffff0000, v{s}")

NSLOT = 15
XS = {}
def xstamp(A, name):
    if STAMPS and name in XS: A(f"s_memrealtime s[{72+2*XS[name]}:{73+2*XS[name]}]")
    if STAMPS and "c:" + name in XS: A(f"s_memtime s[{72+2*XS['c:'+name]}:{73+2*XS['c:'+name]}]")
def stamp(A, slot):
    xstamp(A, str(slot))
    if STAMPS and (slot == 0 or not XS):
        if slot == 0:
            for i in range(1, NSLOT): A(f"s_mov_b32 s{72+2*i}, 0")
        A(f"s_memrealtime s[{72+2*slot}:{73+2*slot}]")
def stamp_flush(A):
    if not STAMPS: return
    A("s_waitcnt lgkmcnt(0)")
    if opt("pad", -1) >= 0:
        l = A.newlabel("nopad"); l2 = A.newlabel("padl")
        A(f"s_cmp_lg_u32 s2, {opt('dbgwg', 37)}\ns_cbranch_scc1 {l}\ns_cmp_lg_u32 s{sWAVE}, 0\ns_cbranch_scc1 {l}")
        A(f"{l2}:")
        A(f"s_memrealtime s[40:41]\ns_waitcnt lgkmcnt(0)\ns_sub_u32 s40, s40, s{72+2*opt('pad')}\ns_cmp_lt_u32 s40, {opt('padt', 10000)}\ns_cbranch_scc1 {l2}")
        A(f"{l}:")
        return
    if opt("dbgst"):
        l = A.newlabel("nodbg")
        A(f"s_cmp_lg_u32 s2, {opt('dbgwg', 37)}\ns_cbranch_scc1 {l}\ns_cmp_lg_u32 s{sWAVE}, {opt('dbgst')-1}\ns_cbranch_scc1 {l}")
        A("s_mov_b32 s40, s6\ns_mov_b32 s41, s7\ns_mov_b32 s42, 256\ns_mov_b32 s43, 0x20000")
        A("s_mov_b64 exec, 1\nv_mov_b32 v1, 0")
        for i in range(NSLOT):
            A(f"s_sub_u32 s3, s{72+2*i}, s72\nv_mov_b32 v2, s3")
            A(f"buffer_store_dword v2, v1, s[40:43], 0 offen offset:{4*i}")
        A("s_waitcnt vmcnt(0)")
        A(f"{l}:")
        return
    A(f"s_lshl_b32 s3, s2, 9\ns_lshl_b32 s57, s{sWAVE}, 6\ns_add_u32 s3, s3, s57\ns_add_u32 s3, s3, {WS_ST}")
    A("s_mov_b64 exec, 1\nv_mov_b32 v1, 0")
    for i in range(NSLOT):
        A(f"v_mov_b32 v2, s{72+2*i}")
        A(f"buffer_store_dword v2, v1, {WS}, s3 offen offset:{4*i}")
    A("s_waitcnt vmcnt(0)")

def flag_set(A, soff, vt, vl16):
    for i in range(4): A(f"v_mov_b32 v{vt+i}, s{sN}")
    A("s_mov_b64 exec, 0xff")
    A(f"buffer_store_dwordx4 v[{vt}:{vt+3}], v{vl16}, {WS}, {soff} offen sc1")
    A("s_mov_b64 exec, -1")
def poll(A, vaddr, soff, vt, sleep=0):
    l = A.newlabel("poll"); d = A.newlabel("pdone")
    A("s_mov_b32 s57, 0")
    A(f"{l}:")
    A(f"buffer_load_dword v{vt}, v{vaddr}, {WS}, {soff} offen sc1")
    A("s_waitcnt vmcnt(0)")
    A(f"v_cmp_ne_u32 vcc, s{sN}, v{vt}")
    A("s_nop 1")
    A(f"s_cbranch_vccz {d}")
    if sleep: A(f"s_sleep {sleep}")
    A(f"s_add_u32 s57, s57, 1\ns_cmp_lt_u32 s57, 0x40000\ns_cbranch_scc1 {l}")
    A(f"{d}:")
def arrive(A, cbase, rbase, lcnt, vt, vl16, nw=4):
    d = A.newlabel("arr")
    A(f"v_mov_b32 v{vt}, 1\nv_mov_b32 v{vt+1}, {lcnt}\ns_mov_b64 exec, 1")
    A(f"ds_add_rtn_u32 v{vt+2}, v{vt+1}, v{vt}")
    A(f"s_lshl_b32 s57, s{sCT}, 7\ns_add_u32 s58, s57, {cbase}\ns_add_u32 s59, s57, {rbase}")
    A(f"s_waitcnt lgkmcnt(0)\nv_readfirstlane_b32 s57, v{vt+2}")
    A(f"s_cmp_lg_u32 s57, {nw-1}\ns_cbranch_scc1 {d}")
    A(f"buffer_atomic_add v{vt}, v{vl16}, {WS}, s58 offen sc0 sc1")
    A("s_waitcnt vmcnt(0)")
    A(f"v_readfirstlane_b32 s57, v{vt}")
    A(f"s_sub_u32 s57, s57, s{sC0}\ns_cmp_lg_u32 s57, 15\ns_cbranch_scc1 {d}")
    A("s_mov_b64 exec, -1")
    flag_set(A, "s59", vt, vl16)
    A(f"{d}:")
    A("s_mov_b64 exec, -1")

def stats4(A, X, R):
    for i in range(4):
        A(f"v_add_f32 v{R+i}, v{X+4*i}, v{X+4*i+1}")
        A(f"v_mul_f32 v{R+4+i}, v{X+4*i}, v{X+4*i}")
    for c in (2, 3):
        for i in range(4): A(f"v_add_f32 v{R+i}, v{R+i}, v{X+4*i+c}")
    for c in (1, 2, 3):
        for i in range(4): A(f"v_fmac_f32 v{R+4+i}, v{X+4*i+c}, v{X+4*i+c}")
DPPM = "row_mask:0xf bank_mask:0xf"
def red_part1(A, R, vW, off):
    for e in range(4): A(f"v_permlane32_swap_b32 v{R+e}, v{R+e+4}")
    for e in range(4): A(f"v_add_f32 v{R+e}, v{R+e}, v{R+e+4}")
    for e in range(2): A(f"v_permlane16_swap_b32 v{R+e}, v{R+e+2}")
    for e in range(2): A(f"v_add_f32 v{R+e}, v{R+e}, v{R+e+2}")
    for m in ("row_ror:8", "quad_perm:[1,0,3,2]", "quad_perm:[2,3,0,1]"):
        for e in range(2): A(f"v_add_f32_dpp v{R+e}, v{R+e}, v{R+e} {m} {DPPM}")
    A("s_mov_b32 exec_lo, 0x00110011\ns_mov_b32 exec_hi, 0x00110011")
    A(f"ds_add_f32 v{vW}, v{R} offset:{off}\nds_add_f32 v{vW}, v{R+1} offset:{off+4}")
    A("s_mov_b64 exec, -1")
def red_part2(A, vRd, off, tmp):
    A(f"ds_read2_b32 v[{tmp}:{tmp+1}], v{vRd} offset0:{off//4} offset1:{off//4 + 4}")
    A("s_waitcnt lgkmcnt(0)")
    A(f"v_mul_f32 v{tmp}, {f2u(1/1024):#x}, v{tmp}")
    A(f"v_mul_f32 v{tmp+2}, v{tmp}, v{tmp}")
    A(f"v_mul_f32 v{tmp+1}, {f2u(1/1024):#x}, v{tmp+1}")
    A(f"v_sub_f32 v{tmp+1}, v{tmp+1}, v{tmp+2}")
    A(f"v_max_f32 v{tmp+1}, 0, v{tmp+1}")
    A(f"v_add_f32 v{tmp+1}, {f2u(1e-5):#x}, v{tmp+1}")
    A(f"v_rsq_f32 v{tmp+1}, v{tmp+1}")
def qp(i): return f"quad_perm:[{i},{i},{i},{i}] {DPPM}"
def normalize(A, D, X, st, G=None, S=None):
    for i in range(4):
        for c in range(4): A(f"v_subrev_f32_dpp v{D+4*i+c}, v{st}, v{X+4*i+c} {qp(i)}")
    for i in range(4):
        for c in range(4): A(f"v_mul_f32_dpp v{D+4*i+c}, v{st+1}, v{D+4*i+c} {qp(i)}")
    if G is not None:
        for i in range(4):
            for c in range(0, 4, 2): A(f"v_pk_fma_f32 v[{D+4*i+c}:{D+4*i+c+1}], v[{D+4*i+c}:{D+4*i+c+1}], v[{G+c}:{G+c+1}], v[{S+c}:{S+c+1}]")
LX = 16
LR = 32
vSTW, vSTR, vCG, vHF = 4, 5, 6, 7
def ln_ids(A, cg, hf):
    A(f"v_lshrrev_b32 v{cg}, 3, v0\nv_and_b32 v{hf}, 3, v0\nv_lshl_add_u32 v{cg}, v{cg}, 2, v{hf}\nv_bfe_u32 v{hf}, v0, 2, 1")
def q_addr(A, vt):
    srd(A, SC_, "q", 4*MB)
    ln_ids(A, vt, vt+1)
    A(f"v_lshlrev_b32 v{vt}, 3, v{vt}\nv_lshl_add_u32 v{vt}, v{vt+1}, 13, v{vt}")
    A(f"s_lshl_b32 s3, s{sTB}, 14\nv_add_u32 v{vt}, s3, v{vt}\nv_add_u32 v{vt+1}, 4096, v{vt}")
def q_issue(A, vt):
    for i in range(4):
        A(f"buffer_load_dwordx2 v[{QR+2*i}:{QR+2*i+1}], v{vt+i//2}, s[{SC_}:{SC_+3}], 0 offen offset:{(i%2)*2048} nt")
def ln0_part1(A):
    ln_ids(A, vCG, vHF)
    A(f"v_lshrrev_b32 v{vSTW}, 4, v2\nv_lshlrev_b32 v{vSTW}, 3, v{vSTW}\nv_lshl_add_u32 v{vSTW}, v{vHF}, 5, v{vSTW}\nv_add_u32 v{vSTW}, {L_ST}, v{vSTW}")
    A(f"v_and_b32 v{vSTR}, 3, v0\nv_lshlrev_b32 v{vSTR}, 2, v{vSTR}\nv_lshl_add_u32 v{vSTR}, v{vHF}, 5, v{vSTR}\nv_add_u32 v{vSTR}, {L_ST}, v{vSTR}")
    for i in range(4):
        lo(A, LX+4*i, QR+2*i); hi(A, LX+4*i+1, QR+2*i); lo(A, LX+4*i+2, QR+2*i+1); hi(A, LX+4*i+3, QR+2*i+1)
    stats4(A, LX, LR)
    red_part1(A, LR, vSTW, 0)
def x1_store(A):
    for j in range(2): A(f"buffer_store_dwordx4 v[{QR+4*j}:{QR+4*j+3}], v{248+j}, {WS}, 0 offen sc1")
def sprefetch(A, n, adv):
    for k in range(n): A(f"s_load_dword s{sDUMMY}, s[{sPF}:{sPF+1}], {k*64}")
    A(f"s_add_u32 s{sPF}, s{sPF}, {adv}\ns_addc_u32 s{sPF+1}, s{sPF+1}, 0")

def tile_ids(A, which):
    A("s_and_b32 s57, s2, 7\ns_lshr_b32 s58, s2, 3")
    if which == 1:
        A("s_and_b32 s60, s57, 1\ns_lshl_b32 s60, s60, 3\ns_and_b32 s3, s58, 7\ns_add_u32 s60, s60, s3")
        A("s_lshr_b32 s61, s57, 1\ns_lshl_b32 s61, s61, 2\ns_lshr_b32 s3, s58, 3\ns_add_u32 s61, s61, s3")
        A("s_mul_i32 s62, s61, 448\ns_and_b32 s3, s61, 1\ns_cmp_eq_u32 s3, 0")
        A("s_cselect_b32 s63, 384, 0\ns_cselect_b32 s3, 0, 64\ns_add_u32 s63, s63, s62\ns_add_u32 s62, s62, s3")
    else:
        A("s_lshr_b32 s60, s57, 1\ns_lshl_b32 s60, s60, 2\ns_and_b32 s3, s58, 3\ns_add_u32 s60, s60, s3")
        A("s_and_b32 s61, s57, 1\ns_lshr_b32 s62, s58, 2\ns_lshl_b32 s62, s62, 8\ns_lshl_b32 s3, s61, 7\ns_add_u32 s62, s62, s3\ns_xor_b32 s63, s62, 128")

G1_NST = 16
G1_ASLOT, G1_USZ, G1_HOFF = 16384, 8192, 24576
PVA, PVW = 200, 204
def unit_lane_off(A, t, rs):
    A(f"v_lshrrev_b32 v{t}, 3, v2\nv_lshrrev_b32 v{t+1}, 1, v{t}\nv_lshlrev_b32 v{t+1}, 1, v{t+1}\nv_and_b32 v{t+2}, 7, v2\nv_xor_b32 v{t+1}, v{t+1}, v{t+2}\nv_lshlrev_b32 v{t+1}, 4, v{t+1}")
    A(f"s_movk_i32 s3, {rs}\nv_mul_lo_u32 v{t}, v{t}, s3\nv_add_u32 v{t}, v{t}, v{t+1}")
def g1_prod_setup(A):
    RS = 7168
    A(f"s_sub_u32 s64, s{sWAVE}, 4")
    A(f"s_lshl_b32 s3, s60, 3\ns_lshl_b32 s57, s64, 1\ns_add_u32 s3, s3, s57\ns_lshl_b32 s3, s3, 15\ns_add_u32 s3, s3, {WS_Y2F}")
    A(f"v_lshlrev_b32 v{PVA}, 4, v2\nv_add_u32 v{PVA}, s3, v{PVA}\nv_add_u32 v{PVA+1}, {32*1024}, v{PVA}")
    t = 212
    unit_lane_off(A, t, RS)
    A(f"s_mul_i32 s3, s64, {16*RS}\ns_add_u32 s3, s3, s62\nv_add_u32 v{t}, s3, v{t}")
    for u in range(3):
        for rgi in range(2):
            A(f"v_add_u32 v{PVW+u*2+rgi}, {u*128 + rgi*8*RS - rgi*1024}, v{t}")
    A(f"v_lshrrev_b32 v{t}, 2, v2\nv_bfe_u32 v{t+1}, v2, 4, 1\nv_and_b32 v{t+2}, 3, v2\nv_xor_b32 v{t+1}, v{t+1}, v{t+2}\nv_lshlrev_b32 v{t+1}, 4, v{t+1}")
    A(f"s_movk_i32 s3, {RS}\nv_mul_lo_u32 v{t}, v{t}, s3\nv_add_u32 v{t}, v{t}, v{t+1}")
    A(f"s_mul_i32 s3, s64, {16*RS}\ns_add_u32 s3, s3, s63\nv_add_u32 v{PVW+6}, s3, v{t}")
    A("s_mov_b32 s65, 0\ns_mov_b32 s66, 0")
    A(f"s_lshl_b32 s67, s64, 12\ns_add_u32 s67, s67, {G1_A}")
    A(f"s_lshl_b32 s68, s64, 11")
    A(f"s_lshl_b32 s69, s64, 10\ns_sub_u32 s69, {G1_HOFF}, s69")
    A(f"s_add_u32 s70, s67, {3*G1_ASLOT}\ns_add_u32 s71, s68, {3*G1_WSLOT}")
    srd(A, SA_, "w1", 1024*7168)
def g1_issue_w(A):
    for u in range(3):
        A(f"s_add_u32 m0, s68, {u*G1_USZ}")
        for rgi in range(2):
            A(f"buffer_load_dwordx4 v{PVW+u*2+rgi}, s[{SA_}:{SA_+3}], s66 offen offset:{rgi*1024} lds")
    A("s_add_u32 m0, s68, s69")
    A(f"buffer_load_dwordx4 v{PVW+6}, s[{SA_}:{SA_+3}], s66 offen lds")
    A(f"s_add_u32 s66, s66, {64*7168}")
    A(f"s_add_u32 s68, s68, {G1_WSLOT}\ns_cmp_eq_u32 s68, s71\ns_cselect_b32 s3, {3*G1_WSLOT}, 0\ns_sub_u32 s68, s68, s3")
def g1_issue_a(A):
    for h in range(2):
        A(f"s_add_u32 m0, s67, {h*2048}")
        for ks in range(2):
            A(f"buffer_load_dwordx4 v{PVA+h}, {WS}, s65 offen offset:{ks*1024} {asc()} lds")
    A("s_add_u32 s65, s65, 2048")
    A(f"s_add_u32 s67, s67, {G1_ASLOT}\ns_cmp_eq_u32 s67, s70\ns_cselect_b32 s3, {3*G1_ASLOT}, 0\ns_sub_u32 s67, s67, s3")
def g1_prod_main(A):
    NI = 11
    g1_issue_a(A); g1_issue_a(A); g1_issue_w(A); g1_issue_a(A)
    x1_store(A)
    s2_ = srd(A, SB_, "w2", 3584*2048)
    A("s_mul_i32 s48, s2, 224\ns_mul_i32 s57, s64, 56\ns_add_u32 s48, s48, s57\ns_lshl_b32 s48, s48, 7")
    A("v_min_u32 v50, 55, v2\nv_lshlrev_b32 v50, 7, v50")
    A(f"s_lshr_b32 s49, s2, 3\ns_and_b32 s49, s49, 7\ns_add_u32 s49, s49, 2")
    A("s_add_u32 s3, s49, 6\ns_lshl_b32 s3, s3, 3\ns_and_b32 s57, s2, 1\ns_lshl_b32 s57, s57, 2\ns_add_u32 s3, s3, s57\ns_lshr_b32 s57, s2, 6\ns_add_u32 s3, s3, s57\ns_lshl_b32 s3, s3, 2\ns_add_u32 s3, s3, s64\ns_lshl_b32 s3, s3, 1")
    A("v_bfe_u32 v52, v2, 4, 1\nv_add_u32 v52, s3, v52\ns_movk_i32 s3, 7168\nv_mul_lo_u32 v52, v52, s3\nv_and_b32 v53, 15, v2\nv_min_u32 v53, 13, v53\nv_lshl_add_u32 v52, v53, 7, v52")
    A("s_lshr_b32 s50, s61, 2\ns_mul_i32 s50, s50, 1792")
    A(f"s_waitcnt vmcnt({6+NI})\ns_barrier")
    A("s_mov_b32 s59, 0")
    l = A.newlabel("ploop"); l2 = A.newlabel("pnp")
    A(f"{l}:")
    A(f"s_waitcnt vmcnt({NI})\ns_barrier")
    g1_issue_w(A); g1_issue_a(A)
    if not opt("nopf2"):
        A(f"s_cmp_lg_u32 s59, s49\ns_cbranch_scc1 {l2}")
        A(f"buffer_load_dword v53, v52, s[{SA_}:{SA_+3}], s50 offen")
        A(f"buffer_load_dword v51, v50, {s2_}, s48 offen")
        A(f"{l2}:")
    A(f"s_add_u32 s59, s59, 1\ns_cmp_lg_u32 s59, 13\ns_cbranch_scc1 {l}")
    A(f"s_waitcnt vmcnt({NI})\ns_barrier")
    A(f"s_waitcnt vmcnt(0)\ns_barrier")
    A("s_barrier")

def tr_base(A):
    A("v_lshrrev_b32 v3, 4, v2\nv_and_b32 v4, 15, v2")
    A("v_lshrrev_b32 v6, 2, v2\nv_and_b32 v6, 7, v6\nv_lshrrev_b32 v7, 1, v6\nv_lshlrev_b32 v7, 5, v7\nv_lshl_add_u32 v7, v6, 7, v7")
    A("v_and_b32 v8, 3, v2\nv_lshl_add_u32 v7, v8, 3, v7\nv_lshrrev_b32 v9, 5, v2\nv_lshl_add_u32 v7, v9, 10, v7")
def interleave(A, mf, fill, per):
    n = 0
    for m in mf:
        A(m)
        for _ in range(per(n)):
            if n < len(fill): A(fill[n]); n += 1
    while n < len(fill): A(fill[n]); n += 1

def sched(A, mf, slots):
    for n, m in enumerate(mf):
        A(m)
        for l in slots.get(n, []): A(l)
def align8(A):
    A.raw(".p2align 3")

def g1_consumer(A, st0):
    NT = 7
    tile_ids(A, 1)
    A(f"s_and_b32 s64, s{sWAVE}, 1\ns_lshr_b32 s65, s{sWAVE}, 1")
    tr_base(A)
    vA, VT, TC = 5, 10, 44
    A(f"s_lshl_b32 s3, s64, 13\ns_add_u32 s3, s3, {G1_A}\nv_lshlrev_b32 v5, 4, v2\nv_add_u32 v5, s3, v5")
    A(f"s_lshl_b32 s3, s65, 14")
    for cb in range(4):
        A(f"v_xor_b32 v{VT+cb}, {cb*32}, v7\nv_add_u32 v{VT+cb}, s3, v{VT+cb}")
    A("s_lshl_b32 s3, s65, 6")
    for e in range(2):
        A(f"v_xor_b32 v{VT+4+e}, s3, v7\nv_xor_b32 v{VT+4+e}, {e*32}, v{VT+4+e}\nv_add_u32 v{VT+4+e}, {G1_USZ}, v{VT+4+e}")
    A("v_and_b32 v9, 2, v8\nv_or_b32 v9, s65, v9\nv_and_b32 v6, 1, v3\nv_xor_b32 v9, v9, v6\nv_lshlrev_b32 v9, 4, v9")
    A(f"v_lshrrev_b32 v6, 2, v2\nv_lshl_add_u32 v9, v6, 6, v9\nv_and_b32 v6, 1, v8\nv_lshl_add_u32 v9, v6, 3, v9\nv_add_u32 v{VT+6}, {G1_HOFF}, v9")
    A(f"s_lshl_b32 s3, s65, 8\ns_add_u32 s{TC}, s62, s3")
    for cb in range(1, 4): A(f"s_add_u32 s{TC+cb}, s{TC}, {cb*32}")
    A(f"s_lshl_b32 s3, s65, 6\ns_add_u32 s{TC+4}, s62, s3\ns_add_u32 s{TC+4}, s{TC+4}, 128\ns_add_u32 s{TC+5}, s{TC+4}, 32")
    A(f"s_lshl_b32 s3, s65, 4\ns_add_u32 s{TC+6}, s63, s3")
    ACC = 20
    FA = [ACC + 16*NT, ACC + 16*NT + 16]
    FW = [FA[1] + 16, FA[1] + 16 + 4*NT]
    sb = srd(A, SA_, "b1", 7168)
    A("v_lshlrev_b32 v6, 3, v3\nv_and_b32 v9, 1, v3\nv_lshlrev_b32 v9, 3, v9\nv_lshrrev_b32 v17, 1, v3\nv_lshl_add_u32 v9, v17, 5, v9")
    for t in range(NT):
        A(f"buffer_load_dwordx2 v[{FW[1]+2*t}:{FW[1]+2*t+1}], v{6 if t < 6 else 9}, {sb}, s{TC+t} offen")
    A("s_waitcnt vmcnt(0)")
    for t in range(NT):
        a = ACC + 4*t
        lo(A, a, FW[1]+2*t); hi(A, a+1, FW[1]+2*t); lo(A, a+2, FW[1]+2*t+1); hi(A, a+3, FW[1]+2*t+1)
    for i in range(1, 4):
        for t in range(NT):
            for r in range(4): A(f"v_mov_b32 v{ACC+4*(i*NT+t)+r}, v{ACC+4*t+r}")
    def reads(ks, buf):
        aa = [f"ds_read_b128 v[{FA[buf]+4*i}:{FA[buf]+4*i+3}], v{vA} offset:{(i*2+ks)*1024}" for i in range(4)]
        ww = []
        for t in range(NT):
            o0, d = (ks*2048, 1024) if t == 6 else (ks*4096, 2048)
            ww.append(f"ds_read_b64_tr_b16 v[{FW[buf]+4*t}:{FW[buf]+4*t+1}], v{VT+t} offset:{o0}")
            ww.append(f"ds_read_b64_tr_b16 v[{FW[buf]+4*t+2}:{FW[buf]+4*t+3}], v{VT+t} offset:{o0+d}")
        return aa + ww
    A(f"s_mov_b32 s59, {G1_NST-1}\ns_mov_b32 s58, 1\ns_mov_b32 s66, {G1_ASLOT}\ns_mov_b32 s67, {G1_WSLOT}")
    A(f"s_mov_b32 s70, {-2*G1_ASLOT & 0xffffffff}\ns_mov_b32 s71, {-2*G1_WSLOT & 0xffffffff}\ns_mov_b32 s68, s66\ns_mov_b32 s69, s67")
    A("s_barrier")
    stamp(A, st0)
    for l in reads(0, 0): A(l)
    x1_store(A)
    A("s_waitcnt lgkmcnt(0)")
    align8(A)
    start = len(A.lines)
    lp = A.newlabel("cloop")
    A(f"{lp}:")
    for ks in range(2):
        rd = reads(ks ^ 1, ks ^ 1)
        mf = [f"v_mfma_f32_16x16x32_bf16 v[{ACC+4*(i*NT+t)}:{ACC+4*(i*NT+t)+3}], v[{FW[ks]+4*t}:{FW[ks]+4*t+3}], v[{FA[ks]+4*i}:{FA[ks]+4*i+3}], v[{ACC+4*(i*NT+t)}:{ACC+4*(i*NT+t)+3}]"
              for i in range(4) for t in range(NT)]
        sl = {n: [rd[n]] for n in range(18)}
        if ks == 0:
            ad = [f"v_add_u32 v{vA}, s68, v{vA}"] + [f"v_add_u32 v{VT+t}, s69, v{VT+t}" for t in range(NT)]
            for n in range(4): sl[18+n] = ad[2*n:2*n+2]
            sl[25] = ["s_waitcnt lgkmcnt(0)", "s_barrier"]
        else:
            sl[18] = ["s_add_u32 s58, s58, 1", "s_cmp_eq_u32 s58, 3"]
            sl[19] = ["s_cselect_b32 s58, 0, s58", "s_cselect_b32 s68, s70, s66"]
            sl[20] = ["s_cselect_b32 s69, s71, s67", "s_sub_u32 s59, s59, 1"]
            sl[26] = ["s_waitcnt lgkmcnt(0)", "s_nop 0"]
        sched(A, mf, sl)
    A(f"s_cbranch_scc0 {lp}")
    check_loop(A.lines[start:])
    stamp(A, st0 + 1)
    c0 = -2.0 * 1.4426950408889634 * math.sqrt(2.0 / math.pi)
    A(f"v_mov_b32 v12, {f2u(c0*0.044715):#x}\nv_mov_b32 v13, v12\nv_mov_b32 v14, {f2u(c0):#x}\nv_mov_b32 v15, v14")
    A(f"s_lshl_b32 s3, s60, 3\ns_lshl_b32 s57, s64, 2\ns_add_u32 s3, s3, s57\ns_mul_i32 s3, s3, {112*1024}\ns_add_u32 s3, s3, {WS_HF}")
    A("v_lshlrev_b32 v9, 4, v2\nv_add_u32 v7, s3, v9")
    A(f"v_lshrrev_b32 v8, 5, v2\nv_mul_u32_u24 v8, {112*1024 - 512}, v8\nv_add_u32 v8, v8, v7\ns_lshl_b32 s3, s65, 9\nv_add_u32 v8, s3, v8")
    A(f"s_lshl_b32 s{TC}, s{TC}, 4\ns_lshl_b32 s{TC+2}, s{TC+2}, 4\ns_lshl_b32 s{TC+4}, s{TC+4}, 4\ns_lshl_b32 s{TC+6}, s63, 4")
    A(f"s_lshl_b32 s66, s60, 4\ns_add_u32 s66, s66, s61\ns_lshl_b32 s66, s66, 2\ns_add_u32 s66, s66, s{sWAVE}\ns_lshl_b32 s66, s66, 7")
    A(f"s_add_u32 s67, s66, {F_S4B}\ns_add_u32 s66, s66, {F_S4A}")
    T = FA[0]; O = FW[0]
    def gelu8(srcs, o):
        pr = lambda r: f"v[{r}:{r+1}]"
        for e, a in enumerate(srcs): A(f"v_pk_mul_f32 {pr(T+2*e)}, {pr(a)}, {pr(a)}")
        for e, a in enumerate(srcs): A(f"v_pk_fma_f32 {pr(T+2*e)}, {pr(T+2*e)}, v[12:13], v[14:15]")
        for e, a in enumerate(srcs): A(f"v_pk_mul_f32 {pr(T+2*e)}, {pr(T+2*e)}, {pr(a)}")
        for e in range(8): A(f"v_exp_f32 v{T+e}, v{T+e}")
        for e in range(4): A(f"v_pk_add_f32 {pr(T+2*e)}, {pr(T+2*e)}, 1.0 op_sel_hi:[1,0]")
        for e in range(8): A(f"v_rcp_f32 v{T+e}, v{T+e}")
        for e, a in enumerate(srcs): A(f"v_pk_mul_f32 {pr(T+2*e)}, {pr(T+2*e)}, {pr(a)}")
        for e in range(4): A(f"v_cvt_pk_bf16_f32 v{o+e}, v{T+2*e}, v{T+2*e+1}")
    cnt = 0
    for pr_ in (2, 0, 1):
        for i in range(4):
            a = ACC + 4*(i*NT + 2*pr_)
            o = O + 4*(cnt % 4); cnt += 1
            gelu8([a, a+2, a+4, a+6], o)
            A(f"s_add_u32 s3, s{TC+2*pr_}, {i*112*1024}")
            A(f"buffer_store_dwordx4 v[{o}:{o+3}], v7, {WS}, s3 offen sc1")
            xstamp(A, f"ge{cnt}")
            if cnt == EARLY_AT:
                A(f"s_waitcnt vmcnt({EARLY_AT-4})")
                flag_set(A, "s66", 16, 9)
                A(f"v_mov_b32 v10, {L_CNT+12}\nv_mov_b32 v11, 1\nds_write_b32 v10, v11")
                xstamp(A, "gef")
    for i in (0, 2):
        a = ACC + 4*(i*NT + 6); b = ACC + 4*((i+1)*NT + 6)
        o = O + 4*(cnt % 4); cnt += 1
        gelu8([a, a+2, b, b+2], o)
        A(f"v_permlane32_swap_b32 v{o}, v{o+2}\nv_permlane32_swap_b32 v{o+1}, v{o+3}")
        A(f"s_add_u32 s3, s{TC+6}, {i*112*1024}")
        A(f"buffer_store_dwordx4 v[{o}:{o+3}], v8, {WS}, s3 offen sc1")
    stamp(A, st0 + 2)
EARLY_AT = 8

G2_SLOT = 32768
def g2_unit(s):
    if s < 8: return 7*(s >> 1) + (5 if s & 1 else 1), True
    if s < 24: return 7*((s-8) >> 2) + 2*((s-8) & 3), True
    return 7*(s-24) + 3, False
def g2_producer(A):
    tile_ids(A, 2)
    A(f"s_lshl_b32 s3, s60, 3\ns_lshl_b32 s57, s64, 1\ns_add_u32 s3, s3, s57\ns_mul_i32 s3, s3, {112*1024}\ns_add_u32 s3, s3, {WS_HF}")
    A(f"v_lshlrev_b32 v{PVA}, 4, v2\nv_add_u32 v{PVA}, s3, v{PVA}\nv_add_u32 v{PVA+1}, {112*1024}, v{PVA}")
    t = 212
    unit_lane_off(A, t, 2048)
    A(f"s_lshl_b32 s3, s64, 15\nv_add_u32 v{t}, s3, v{t}")
    A(f"v_add_u32 v{PVW}, s62, v{t}\nv_add_u32 v{PVW+1}, {16384-1024}, v{PVW}\nv_add_u32 v{PVW+2}, s63, v{t}\nv_add_u32 v{PVW+3}, {16384-1024}, v{PVW+2}")
    A(f"s_mul_i32 s65, s61, {28*2048}\ns_mul_i32 s66, s61, {28*131072}")
    A(f"s_lshl_b32 s67, s64, 12\ns_lshl_b32 s68, s64, 11\ns_add_u32 s68, s68, 16384")
    sw = srd(A, SA_, "w2", 3584*2048)
    def iw(s):
        u, p1 = g2_unit(s)
        A(f"s_add_u32 s69, s66, {u*131072}" if p1 else f"s_mov_b32 s69, {u*131072}")
        for un in range(2 if p1 else 1):
            A(f"s_add_u32 m0, s68, {(s & 3)*G2_SLOT + un*8192}")
            for rgi in range(2):
                A(f"buffer_load_dwordx4 v{PVW+2*un+rgi}, {sw}, s69 offen offset:{rgi*1024} lds")
        return 4 if p1 else 2
    def ia(s):
        u, p1 = g2_unit(s)
        A(f"s_add_u32 s70, s65, {u*2048}" if p1 else f"s_mov_b32 s70, {u*2048}")
        for h in range(2):
            A(f"s_add_u32 m0, s67, {(s & 3)*G2_SLOT + h*2048}")
            for ks in range(2):
                A(f"buffer_load_dwordx4 v{PVA+h}, {WS}, s70 offen offset:{ks*1024} {asc()} lds")
        return 4
    for s in range(4): iw(s)
    A(f"v_and_b32 v46, 15, v2\nv_lshlrev_b32 v46, 8, v46\nv_and_b32 v47, 31, v2\nv_lshlrev_b32 v47, 8, v47")
    A(f"s_lshl_b32 s71, s60, 13\ns_lshr_b32 s3, s64, 1\ns_lshl_b32 s3, s3, 7\ns_add_u32 s71, s71, s3\ns_lshl_b32 s3, s61, 12\ns_add_u32 s3, s3, s71\ns_add_u32 s3, s3, {F_S4A}\ns_add_u32 s71, s71, {F_S4B}")
    stamp(A, 11)
    l = A.newlabel("wef")
    A(f"v_mov_b32 v48, {L_CNT+12}")
    A(f"{l}:")
    A(f"s_sleep 2\nds_read_b32 v49, v48\ns_waitcnt lgkmcnt(0)\nv_readfirstlane_b32 s57, v49\ns_cmp_eq_u32 s57, 0\ns_cbranch_scc1 {l}")
    poll(A, 46, "s3", 48, 1)
    stamp(A, 12)
    q = []
    for s in range(4): q.append([s, ia(s)])
    def wait_for(stage):
        n = sum(c for st, c in q if st > stage)
        A(f"s_waitcnt vmcnt({n})")
    wait_for(0); A("s_barrier")
    for s in range(32):
        if s + 1 < 32: wait_for(s + 1)
        A("s_barrier")
        n = s + 4
        if n == 7:
            A(f"buffer_load_dword v48, v47, {WS}, s71 offen sc1"); q.append([6.5, 1])
        if n == 8:
            wait_for(6.5)
            d = A.newlabel("s4ok")
            A(f"v_cmp_ne_u32 vcc, s{sN}, v48\ns_nop 1\ns_cbranch_vccz {d}")
            poll(A, 47, "s71", 48)
            A(f"{d}:")
        if n < 32:
            c = iw(n) + ia(n); q.append([n, c])


def g2_consumer(A, st0):
    ACC, FA, FW, XR, GB, PR, vPL = 20, [84, 100], [116, 132], 148, 164, 172, 204
    tile_ids(A, 2)
    tr_base(A)
    vA, VT, TC = 5, 10, 44
    A(f"s_lshl_b32 s3, s64, 13\nv_lshlrev_b32 v9, 4, v2\nv_add_u32 v5, s3, v9")
    A("s_lshl_b32 s3, s65, 6")
    for e in range(2):
        A(f"v_xor_b32 v{VT+e}, s3, v7\nv_xor_b32 v{VT+e}, {e*32}, v{VT+e}\nv_add_u32 v{VT+e}, 16384, v{VT+e}")
    A(f"s_add_u32 s{TC}, s62, s3\ns_add_u32 s{TC+1}, s{TC}, 32")
    sb = srd(A, SA_, "b2", 2048)
    A("v_lshlrev_b32 v6, 3, v3\nv_lshlrev_b32 v18, 4, v3")
    for t in range(2): A(f"buffer_load_dwordx2 v[{FW[1]+2*t}:{FW[1]+2*t+1}], v6, {sb}, s{TC+t} offen")
    for t in range(2):
        A(f"s_lshl_b32 s3, s{TC+t}, 1\ns_add_u32 s3, s3, {F_MOD + 5*4096}")
        A(f"buffer_load_dwordx4 v[{GB+4*t}:{GB+4*t+3}], v18, {WS}, s3 offen sc1")
    A(f"s_xor_b32 s3, s2, 1\ns_lshl_b32 s3, s3, 2\ns_add_u32 s3, s3, s{sWAVE}\ns_lshl_b32 s46, s3, 13\ns_add_u32 s46, s46, {WS_PART}\ns_lshl_b32 s47, s3, 7\ns_add_u32 s47, s47, {F_S5}")
    A(f"s_lshl_b32 s3, s2, 2\ns_add_u32 s3, s3, s{sWAVE}\ns_lshl_b32 s48, s3, 13\ns_add_u32 s48, s48, {WS_PART}\ns_lshl_b32 s49, s3, 7\ns_add_u32 s49, s49, {F_S5}")
    A("v_mov_b32 v19, 0")
    A("s_waitcnt vmcnt(0)")
    flag_set(A, "s67", 12, 9)
    xstamp(A, "s4b")
    for t in range(2):
        a = ACC + 4*t
        lo(A, a, FW[1]+2*t); hi(A, a+1, FW[1]+2*t); lo(A, a+2, FW[1]+2*t+1); hi(A, a+3, FW[1]+2*t+1)
    for i in range(4):
        for t in range(4):
            if i == 0 and t < 2: continue
            for r in range(4): A(f"v_mov_b32 v{ACC+4*(i*4+t)+r}, " + (f"v{ACC+4*t+r}" if t < 2 else "0"))
    for e in range(8): A(f"v_cvt_pk_bf16_f32 v{GB+e}, v{GB+e}, v{GB+e}\nv_lshlrev_b32 v{GB+e}, 16, v{GB+e}")
    def reads(ks, buf, nt):
        aa = [f"ds_read_b128 v[{FA[buf]+4*i}:{FA[buf]+4*i+3}], v{vA} offset:{(i*2+ks)*1024}" for i in range(4)]
        ww = []
        for t in range(nt):
            o0 = ks*4096 + (t >> 1)*8192
            ww.append(f"ds_read_b64_tr_b16 v[{FW[buf]+4*t}:{FW[buf]+4*t+1}], v{VT+(t&1)} offset:{o0}")
            ww.append(f"ds_read_b64_tr_b16 v[{FW[buf]+4*t+2}:{FW[buf]+4*t+3}], v{VT+(t&1)} offset:{o0+2048}")
        return aa + ww
    def stage_body(nt):
        for ks in range(2):
            rd = reads(ks ^ 1, ks ^ 1, nt)
            mf = [f"v_mfma_f32_16x16x32_bf16 v[{ACC+4*(i*4+t)}:{ACC+4*(i*4+t)+3}], v[{FW[ks]+4*t}:{FW[ks]+4*t+3}], v[{FA[ks]+4*i}:{FA[ks]+4*i+3}], v[{ACC+4*(i*4+t)}:{ACC+4*(i*4+t)+3}]"
                  for i in range(4) for t in range(nt)]
            ad = [f"v_add_u32 v{vA}, s68, v{vA}", f"v_add_u32 v{VT}, s68, v{VT}", f"v_add_u32 v{VT+1}, s68, v{VT+1}", "s_nop 0"]
            sa = ["s_add_u32 s58, s58, 1", "s_and_b32 s58, s58, 3", "s_cselect_b32 s68, s66, s70", "s_sub_u32 s59, s59, 1"]
            ex = ad if ks == 0 else sa
            if nt == 4:
                sl = {0: rd[0:2], 1: rd[2:4], 2: rd[4:6], 3: rd[6:8], 4: rd[8:9], 5: rd[9:10], 6: rd[10:11], 7: rd[11:12], 8: ex[0:2], 9: ex[2:4]}
                sl[14] = ["s_waitcnt lgkmcnt(0)", "s_barrier" if ks == 0 else "s_nop 0"]
            else:
                sl = {0: rd[0:3], 1: rd[3:6], 2: rd[6:8], 3: ex[0:2], 4: ex[2:4]}
                sl[7] = ["s_waitcnt lgkmcnt(0)", "s_barrier"] if ks == 0 else ["s_waitcnt lgkmcnt(0)"]
            sched(A, mf, sl)
    A(f"s_mov_b32 s59, 23\ns_mov_b32 s58, 1\ns_mov_b32 s66, {G2_SLOT}\ns_mov_b32 s68, s66\ns_mov_b32 s70, {-3*G2_SLOT & 0xffffffff}")
    A(f"s_lshl_b32 s3, s60, 18\ns_lshl_b32 s57, s64, 17\ns_add_u32 s3, s3, s57")
    A("v_lshlrev_b32 v17, 11, v4\nv_add_u32 v17, v17, v6\nv_add_u32 v17, s3, v17")
    A("v_lshrrev_b32 v16, 1, v4\nv_lshlrev_b32 v16, 12, v16\nv_add_u32 v16, v16, v18\nv_and_b32 v15, 1, v4\nv_lshl_add_u32 v16, v15, 3, v16\nv_add_u32 v16, s3, v16")
    A("s_barrier")
    stamp(A, st0)
    for l in reads(0, 0, 4): A(l)
    A("s_waitcnt lgkmcnt(0)")
    align8(A)
    start = len(A.lines)
    lp = A.newlabel("c2a")
    A(f"{lp}:")
    stage_body(4)
    A(f"s_cbranch_scc0 {lp}")
    check_loop(A.lines[start:])
    xstamp(A, "g2p1")
    for i in range(4):
        for t in range(2):
            a = ACC + 4*(i*4+2+t); j = i*2 + t
            A(f"buffer_store_dwordx4 v[{a}:{a+3}], v9, {WS}, s46 offen offset:{(j & 3)*1024} sc1")
            if j == 3: A("s_add_u32 s46, s46, 4096")
    xstamp(A, "g2st")
    A("s_mov_b32 s59, 7")
    start = len(A.lines)
    lp = A.newlabel("c2b"); l1 = A.newlabel("c2x"); l2 = A.newlabel("c2y"); l3 = A.newlabel("c2z")
    A(f"{lp}:")
    A(f"s_cmp_lg_u32 s59, 5\ns_cbranch_scc1 {l1}")
    A("s_waitcnt vmcnt(0)")
    flag_set(A, "s47", 12, 9)
    A(f"{l1}:")
    A(f"s_cmp_lg_u32 s59, 3\ns_cbranch_scc1 {l2}")
    A(f"buffer_load_dword v{vPL}, v19, {WS}, s49 offen sc1")
    for i in range(4):
        for t in range(2):
            A(f"s_lshl_b32 s57, s{TC+t}, 1\ns_add_u32 s57, s57, {WS_X1 + i*32768}")
            A(f"buffer_load_dwordx2 v[{XR+4*i+2*t}:{XR+4*i+2*t+1}], v16, {WS}, s57 offen sc1")
    A(f"{l2}:")
    A(f"s_cmp_lg_u32 s59, 1\ns_cbranch_scc1 {l3}")
    d = A.newlabel("s5ok")
    A(f"s_waitcnt vmcnt(0)\nv_cmp_ne_u32 vcc, s{sN}, v{vPL}\ns_nop 1\ns_cbranch_vccz {d}")
    poll(A, 19, "s49", vPL)
    A(f"{d}:")
    for j in range(8):
        A(f"buffer_load_dwordx4 v[{PR+4*j}:{PR+4*j+3}], v9, {WS}, s48 offen offset:{(j & 3)*1024} sc1")
        if j == 3: A("s_add_u32 s48, s48, 4096")
    A(f"{l3}:")
    stage_body(2)
    A(f"s_cbranch_scc0 {lp}")
    check_loop(A.lines[start:])
    stamp(A, st0 + 1)
    so = srd(A, SA_, "out", 4*MB)
    T = FA[0]
    A("s_waitcnt vmcnt(0)")
    for i in range(4):
        for t in range(2):
            a = ACC + 4*(i*4+t); x = XR + 4*i + 2*t; p = PR + 4*(i*2+t)
            lo(A, T, x); hi(A, T+1, x); lo(A, T+2, x+1); hi(A, T+3, x+1)
            for r in range(4): A(f"v_add_f32 v{a+r}, v{a+r}, v{p+r}")
            for r in range(4): A(f"v_fmac_f32 v{T+r}, v{a+r}, v{GB+4*t+r}")
            A(f"v_cvt_pk_bf16_f32 v{x}, v{T}, v{T+1}\nv_cvt_pk_bf16_f32 v{x+1}, v{T+2}, v{T+3}")
            A(f"s_add_u32 s3, s{TC+t}, {i*32768}")
            A(f"buffer_store_dwordx2 v[{x}:{x+1}], v17, {so}, s3 offen")

def kernel(A):
    kernel_begin(A, NAME)
    A("s_load_dwordx2 s[40:41], s[0:1], 8\ns_load_dwordx2 s[44:45], s[0:1], 16")
    A("s_load_dwordx16 s[4:19], s[0:1], 0\ns_load_dwordx16 s[20:35], s[0:1], 64")
    A("s_cmp_ge_u32 s2, 256\ns_cbranch_scc1 L_exit")
    stamp(A, 0)
    A("v_lshrrev_b32 v1, 6, v0\nv_and_b32 v2, 63, v0")
    if opt("map0"): A(f"s_and_b32 s{sTT}, s2, 15\ns_lshr_b32 s{sCT}, s2, 4")
    else: A(f"s_and_b32 s{sCT}, s2, 15\ns_lshr_b32 s{sTT}, s2, 4")
    A(f"v_readfirstlane_b32 s{sWAVE}, v1")
    A("v_lshrrev_b32 v3, 3, v2\nv_bfe_u32 v4, v2, 4, 1\nv_and_b32 v5, 7, v2\nv_xor_b32 v4, v4, v5\nv_lshlrev_b32 v4, 4, v4\nv_lshl_add_u32 v4, v3, 11, v4")
    A(f"s_lshl_b32 s3, s{sTT}, 18\ns_lshl_b32 s57, s{sCT}, 7\ns_add_u32 s3, s3, s57")
    A(f"s_lshl_b32 s57, s{sWAVE}, 15\ns_add_u32 s57, s57, s3")
    A(f"s_and_b32 s58, s{sWAVE}, 1\ns_lshl_b32 s58, s58, 6")
    A("v_xor_b32 v5, s58, v4\nv_add_u32 v5, s57, v5")
    A("v_xor_b32 v6, 32, v5")
    A("s_movk_i32 s58, 15360\nv_add_u32 v16, s58, v6")
    A("v_xor_b32 v17, 64, v5\nv_add_u32 v17, s58, v17")
    A(f"s_mov_b32 s42, {4*MB}\ns_mov_b32 s43, 0x20000\ns_mov_b32 s46, s42\ns_mov_b32 s47, s43")
    sk, sv = "s[40:43]", "s[44:47]"
    A(f"s_lshl_b32 s59, s{sWAVE}, 11\ns_add_u32 m0, s59, {L_KT+1024}")
    A("s_waitcnt lgkmcnt(0)")
    A(f"buffer_load_dwordx4 v6, {sk}, 0 offen nt lds\nbuffer_load_dwordx4 v17, {sk}, 0 offen offset:1024 nt lds")
    A(f"s_add_u32 m0, s59, {L_VT}")
    A(f"buffer_load_dwordx4 v5, {sv}, 0 offen nt lds\nbuffer_load_dwordx4 v16, {sv}, 0 offen offset:1024 nt lds")
    A(f"s_cmp_lg_u32 s{sWAVE}, 0\ns_cbranch_scc1 L_nohalo")
    A(f"s_sub_u32 s3, s3, 16384\ns_cmp_eq_u32 s{sTT}, 0\ns_cselect_b32 s3, 0x80000000, s3\nv_add_u32 v7, s3, v4")
    A(f"s_mov_b32 m0, {L_KT}")
    A(f"buffer_load_dwordx4 v7, {sk}, 0 offen nt lds")
    A("L_nohalo:")
    if opt("dbgst"): A("s_mov_b32 s6, s32\ns_mov_b32 s7, s33")
    A("v_and_b32 v8, 15, v2\nv_lshrrev_b32 v9, 4, v2\nv_lshlrev_b32 v11, 4, v2")
    vL16 = 11
    A("v_and_b32 v10, 1, v9\nv_and_b32 v14, 3, v2\nv_lshl_add_u32 v10, v10, 2, v14\nv_lshlrev_b32 v10, 3, v10")
    ss = srd(A, SC_, "shift", 8192)
    A(f"s_lshl_b32 s3, s{sWAVE}, 6\ns_lshl_b32 s57, s{sCT}, 9\ns_add_u32 s3, s3, s57")
    A(f"buffer_load_dwordx2 v[12:13], v10, {ss}, s3 offen")
    tile_ids(A, 1)
    A(f"s_lshl_b32 s{sTB}, s60, 4\ns_add_u32 s{sTB}, s{sTB}, s61\ns_lshl_b32 s{sCG}, s{sCT}, 4\ns_add_u32 s{sCG}, s{sCG}, s{sTT}")
    if opt("tb0"): A(f"s_mov_b32 s{sTB}, s2")
    A(f"s_lshl_b32 s59, s{sCT}, 7")
    A(f"s_cmp_lt_u32 s{sWAVE}, 4\ns_movk_i32 s58, {F_GVC}\ns_cselect_b32 s58, {F_S2C}, s58\ns_add_u32 s59, s59, s58")
    A(f"s_lshl_b32 s60, s{sCG}, 2\ns_add_u32 s60, s60, s{sWAVE}\ns_and_b32 s60, s60, 1023")
    A("s_lshl_b32 s63, s60, 1\ns_and_b32 s63, s63, 0x7fc")
    A(f"s_load_dword s{sN}, s[34:35], {F_E}\ns_load_dword s{sC0}, s[34:35], s59\ns_load_dword s33, s[{P['ssmD']}:{P['ssmD']+1}], s63")
    A(f"v_lshlrev_b32 v14, 2, v2\nv_add_u32 v14, {L_ST}, v14\nv_mov_b32 v15, 0\nds_write_b32 v14, v15")
    A(f"s_mov_b32 s36, s34\ns_mov_b32 s37, s35\ns_mov_b32 s38, {64*MB}\ns_mov_b32 s39, 0x20000")
    A(f"s_mul_i32 s61, s{sWAVE}, {WSZ}\ns_lshl_b32 s62, s60, 12")
    sp = srd(A, SA_, "ssmk", 4*MB); sc = srd(A, SB_, "c", 2048)
    A("s_getpc_b64 s[64:65]")
    A("L_pc:")
    A(f"s_lshr_b32 s3, s2, 3\ns_and_b32 s3, s3, 31\ns_lshl_b32 s3, s3, 10\nv_and_b32 v14, 7, v2\nv_lshlrev_b32 v14, 7, v14\nv_add_u32 v14, s3, v14\nv_min_u32 v14, L_end-L_pc-4, v14")
    A(f"v_lshlrev_b32 v15, 2, v2\ns_and_b32 s3, s{sTT}, 7\ns_lshl_b32 s3, s3, 8")
    xstamp(A, "iss")
    A("s_barrier")
    A(f"s_cmp_ge_u32 s{sWAVE}, 4\ns_cbranch_scc1 L_b0")
    A("s_add_u32 m0, s61, 32")
    for i in range(4): A(f"buffer_load_dwordx4 v{vL16}, {sp}, s62 offen offset:{i*1024} nt lds")
    A("s_branch L_c0")
    A("L_b0:")
    A(f"buffer_load_dword v220, v15, {sc}, s3 offen")
    A("global_load_dword v221, v14, s[64:65]")
    A("global_load_dword v221, v14, s[64:65]\nglobal_load_dword v221, v14, s[64:65]")
    A("L_c0:")
    A.flush_hist()

    A("v_bfe_u32 v16, v2, 2, 2\nv_and_b32 v17, 3, v2\nv_lshrrev_b32 v18, 1, v16")
    A(f"v_xor_b32 v18, s{sWAVE}, v18")
    A("v_lshrrev_b32 v19, 1, v9\nv_lshl_add_u32 v20, v19, 3, v17\nv_lshlrev_b32 v20, 10, v20\nv_lshl_add_u32 v20, v16, 7, v20")
    A(f"v_and_b32 v21, 1, v9\nv_lshl_add_u32 v20, v21, 3, v20\nv_add_u32 v20, {L_KT}, v20")
    A("v_lshlrev_b32 v22, 1, v17\nv_xor_b32 v22, v22, v18\nv_lshl_add_u32 v22, v22, 4, v20")
    A("v_add_u32 v23, 1, v17\nv_and_b32 v23, 3, v23\nv_lshlrev_b32 v23, 1, v23\nv_xor_b32 v23, v23, v18\nv_lshl_add_u32 v23, v23, 4, v20")
    A("v_lshl_add_u32 v24, v19, 3, v16\nv_sub_u32 v24, 11, v24\nv_lshlrev_b32 v24, 6, v24\nv_lshl_add_u32 v24, v17, 4, v24\nv_lshl_add_u32 v24, v21, 14, v24")
    A(f"s_lshl_b32 s3, s{sCT}, 18\ns_lshl_b32 s57, s{sWAVE}, 15\ns_add_u32 s3, s3, s57\ns_lshl_b32 s57, s{sTT}, 10\ns_sub_u32 s3, s3, s57\ns_add_u32 s58, s3, {WS_KVR + 240*64}")
    WF = 26
    A("s_waitcnt vmcnt(4)")
    xstamp(A, "kv")
    lo(A, WF, 12); hi(A, WF+1, 12); lo(A, WF+2, 13); hi(A, WF+3, 13)
    A("s_waitcnt lgkmcnt(0)")
    A(f"s_mul_i32 s{sN}, s{sN}, 0x9E3779B1\ns_add_u32 s{sN}, s{sN}, 0x7F4A7C15")
    A(f"s_lshl_b32 s59, s{sCG}, 3\ns_add_u32 s59, s59, s{sWAVE}\ns_lshl_b32 s59, s59, 7\ns_add_u32 s59, s59, {F_S1}")
    stamp(A, 1)
    A("s_barrier")
    KP, VP, KF, T, O = 32, 44, 52, 64, 72
    for e in range(2):
        A(f"ds_read_b64_tr_b16 v[{KP+6*e}:{KP+6*e+1}], v22 offset:{e*4096 + 512}")
        A(f"ds_read_b64_tr_b16 v[{KP+6*e+2}:{KP+6*e+3}], v23 offset:{e*4096 + 1024}")
        A(f"ds_read_b64_tr_b16 v[{KP+6*e+4}:{KP+6*e+5}], v23 offset:{e*4096 + 1536}")
        A(f"ds_read_b64_tr_b16 v[{VP+4*e}:{VP+4*e+1}], v22 offset:{17408 + e*4096}")
        A(f"ds_read_b64_tr_b16 v[{VP+4*e+2}:{VP+4*e+3}], v22 offset:{17408 + e*4096 + 512}")
    for e in range(2):
        A(f"s_waitcnt lgkmcnt({7 - 5*e})")
        for j in range(11):
            (hi if j % 2 == 0 else lo)(A, KF+j, KP + 6*e + (j+1)//2)
        for i in range(8): A(f"v_mul_f32 v{T+i}, v{WF+3}, v{KF+i}")
        for j in (2, 1, 0):
            for i in range(8): A(f"v_fmac_f32 v{T+i}, v{WF+j}, v{KF+i+3-j}")
        A(f"s_waitcnt lgkmcnt({5 - 5*e})")
        for i in range(8): (lo if i % 2 == 0 else hi)(A, KF+i, VP + 4*e + i//2)
        for i in range(8): A(f"v_mul_f32 v{T+i}, v{T+i}, v{KF+i}")
        for x in range(4): A(f"v_cvt_pk_bf16_f32 v{O+4*e+x}, v{T+7-2*x}, v{T+6-2*x}")
        A(f"buffer_store_dwordx4 v[{O+4*e}:{O+4*e+3}], v24, {WS}, s58 offen offset:{256*(1-e)} sc1")
    xstamp(A, "kst")
    A(f"s_and_b32 s3, s{sTT}, 7\ns_or_b32 s3, s3, s{sWAVE}\ns_cmp_lg_u32 s3, 0\ns_cbranch_scc1 L_nozero")
    A(f"s_lshr_b32 s3, s{sCG}, 3\ns_mul_i32 s3, s3, 768\ns_add_u32 s3, s3, {F_MOD}")
    A("v_mov_b32 v48, 0\nv_mov_b32 v49, 0\nv_mov_b32 v50, 0\nv_mov_b32 v51, 0")
    A("s_mov_b32 exec_lo, -1\ns_mov_b32 exec_hi, 0xffff")
    A(f"buffer_store_dwordx4 v[48:51], v{vL16}, {WS}, s3 offen sc1")
    A("s_mov_b64 exec, -1")
    A("L_nozero:")
    A.flush_hist()
    A("s_waitcnt vmcnt(0)")
    flag_set(A, "s59", 52, vL16)
    stamp(A, 2)
    A(f"s_cmp_ge_u32 s{sWAVE}, 4\ns_cbranch_scc1 L_b1")
    X, Y = 192, 208
    A(f"v_add_u32 v41, s61, v{vL16}")
    for i in range(4):
        A(f"ds_read_b128 v[{X+4*i}:{X+4*i+3}], v41 offset:{32+i*1024}")
        A(f"ds_read_b64 v[{Y+2*i}:{Y+2*i+1}], v41 offset:{48+i*1024}")
    A("v_add_u32 v42, v9, v8\nv_lshlrev_b32 v40, 1, v42\nv_add_u32 v40, s61, v40\nds_read_u16 v216, v40")
    A(f"v_cmp_lt_u32 vcc, 15, v42\nv_mul_u32_u24 v40, {PS}, v9\nv_lshl_add_u32 v40, v8, 1, v40\nv_add_u32 v40, s61, v40")
    A(f"v_mov_b32 v14, 0\nv_mov_b32 v15, 0\nv_lshlrev_b32 v13, 3, v0\nv_add_u32 v13, {L_Q+16384}, v13")
    for i in range(4):
        a = [X+4*i, X+4*i+1, X+4*i+2, X+4*i+3, Y+2*i, Y+2*i+1]
        c1 = 112 + 12*i; c2 = c1 + 4; c3 = c1 + 8
        if i == 0: A("s_waitcnt lgkmcnt(0)")
        for j in range(4): A(f"v_alignbit_b32 v{c1+j}, v{a[j+1]}, v{a[j]}, 16")
        A(f"ds_write_b128 v41, v[{c1}:{c1+3}] offset:{PS+32+i*1024}")
        for j in range(4): A(f"v_mov_b32 v{c2+j}, v{a[j+1]}")
        A(f"ds_write_b128 v41, v[{c2}:{c2+3}] offset:{2*PS+32+i*1024}")
        for j in range(4): A(f"v_alignbit_b32 v{c3+j}, v{a[j+2]}, v{a[j+1]}, 16")
        A(f"ds_write_b128 v41, v[{c3}:{c3+3}] offset:{3*PS+32+i*1024}")
    A("v_cndmask_b32 v216, 0, v216, vcc\nds_write_b16 v40, v216")
    A("ds_write_b64 v13, v[14:15]")
    A("s_and_b32 s3, s60, 1\ns_lshl_b32 s3, s3, 4\ns_lshr_b32 s33, s33, s3\ns_and_b32 s33, s33, 0xffff")
    A("v_lshl_add_u32 v48, v9, 3, v8\nv_sub_u32 v48, 15, v48\nv_and_b32 v49, 1, v48\nv_lshlrev_b32 v49, 4, v49\nv_lshlrev_b32 v49, v49, s33\nv_ashrrev_i32 v48, 1, v48")
    for e in range(4): A(f"v_cmp_eq_u32 vcc, {e}, v48\nv_cndmask_b32 v{64+e}, 0, v49, vcc")
    A(f"v_add_u32 v42, 1, v8\nv_and_b32 v43, 3, v42\nv_mul_u32_u24 v43, {PS}, v43\nv_lshrrev_b32 v42, 2, v42")
    A("v_lshl_add_u32 v43, v42, 3, v43\nv_lshl_add_u32 v43, v9, 4, v43\nv_add_u32 v43, s61, v43")
    vP, vQ, vE, vS = 43, [44, 45], 47, 46
    A("v_lshlrev_b32 v48, 1, v8\nv_sub_u32 v48, 30, v48\nv_add_u32 v48, v48, v9\nv_lshrrev_b32 v49, 2, v48")
    for rho in range(2):
        A(f"v_add_u32 v50, {rho}, v49\nv_and_b32 v50, 3, v50\nv_xor_b32 v50, s{sWAVE}, v50\nv_lshlrev_b32 v50, 4, v50\nv_lshl_add_u32 v50, v48, 6, v50\nv_add_u32 v{vQ[rho]}, {L_Q}, v50")
    A(f"s_lshr_b32 s3, s{sWAVE}, 1\nv_lshl_add_u32 v46, v9, 1, s3\nv_and_b32 v48, 7, v8\nv_xor_b32 v46, v46, v48\nv_lshlrev_b32 v46, 4, v46")
    A(f"v_lshl_add_u32 v46, v8, 7, v46\ns_and_b32 s3, s{sWAVE}, 1\ns_lshl_b32 s3, s3, 3\ns_add_u32 s3, s3, {L_YS}\nv_add_u32 v46, s3, v46")
    ACC = 80; FA = [112, 176]; FB = [144, 208]; KE = 64
    def reads(r, buf):
        La, Lb = [], []
        for i in range(8):
            Lb.append(f"ds_read_b128 v[{FB[buf]+4*i}:{FB[buf]+4*i+3}], v{vQ[r & 1]} offset:{256*r + 2048*(7-i)}")
            La.append(f"ds_read_b64 v[{FA[buf]+4*i}:{FA[buf]+4*i+1}], v{vP} offset:{512*i + 64*r}")
            La.append(f"ds_read_b64 v[{FA[buf]+4*i+2}:{FA[buf]+4*i+3}], v{vP} offset:{512*i + 64*r + 8}")
        return La, Lb
    La, Lb = reads(0, 0)
    A("s_waitcnt lgkmcnt(0)")
    for l in La: A(l)
    q_addr(A, 48)
    A("s_mov_b32 s59, 3")
    stamp(A, 3)
    A("s_waitcnt lgkmcnt(0)\ns_barrier")
    for l in Lb: A(l)
    q_issue(A, 48)
    stamp(A, 4)
    for q in range(8):
        A(f"s_waitcnt lgkmcnt({7-q if not STAMPS else 0})")
        A(f"v_mfma_f32_16x16x32_bf16 v[{ACC+4*q}:{ACC+4*q+3}], v[64:67], v[{FB[0]+4*q}:{FB[0]+4*q+3}], 0")
    align8(A)
    start = len(A.lines)
    A("L_conv:")
    for r in range(2):
        if r == 0:
            La, Lb = reads(1, 1)
            tail = [[f"v_xor_b32 v{vQ[0]}, 32, v{vQ[0]}", f"v_xor_b32 v{vQ[1]}, 32, v{vQ[1]}"],
                    [f"v_add_u32 v{vQ[0]}, 512, v{vQ[0]}"], [f"v_add_u32 v{vQ[1]}, 512, v{vQ[1]}"], [f"v_add_u32 v{vP}, 128, v{vP}"]]
        else:
            La, Lb = reads(0, 0)
            tail = [["s_sub_u32 s59, s59, 1", "s_nop 0"]]
        nxt = [[x] for x in Lb + La] + tail
        mf = [f"v_mfma_f32_16x16x32_bf16 v[{ACC+4*(i+j)}:{ACC+4*(i+j)+3}], v[{FA[r]+4*i}:{FA[r]+4*i+3}], v[{FB[r]+4*j}:{FB[r]+4*j+3}], v[{ACC+4*(i+j)}:{ACC+4*(i+j)+3}]"
              for i in range(8) for j in range(8 - i)]
        sl = {n: x for n, x in enumerate(nxt)}
        sl[34] = ["s_waitcnt lgkmcnt(0)", "s_nop 0"]
        sched(A, mf, sl)
    A("s_cbranch_scc0 L_conv")
    check_loop(A.lines[start:])
    stamp(A, 5)
    T = 48
    for q in range(8):
        e = KE + 2*q
        A(f"v_cvt_pk_bf16_f32 v{e}, v{ACC+4*q}, v{ACC+4*q+1}\nv_cvt_pk_bf16_f32 v{e+1}, v{ACC+4*q+2}, v{ACC+4*q+3}")
        A(f"ds_write_b64 v{vS}, v[{e}:{e+1}] offset:{q*2048}")
    A(f"v_mov_b32 v52, {L_CNT}\nv_mov_b32 v53, 1\ns_waitcnt lgkmcnt(0)\ns_mov_b64 exec, 1\nds_add_u32 v52, v53\ns_mov_b64 exec, -1")
    A(f"v_lshrrev_b32 v48, 3, v2\nv_and_b32 v49, 7, v2\nv_xor_b32 v50, v48, v49\nv_lshlrev_b32 v50, 4, v50\nv_lshl_add_u32 v50, v48, 7, v50")
    A(f"s_lshl_b32 s3, s{sWAVE}, 12\ns_add_u32 s3, s3, {L_YS}\nv_add_u32 v50, s3, v50")
    A("v_lshrrev_b32 v51, 2, v49\nv_lshl_add_u32 v51, v48, 1, v51\nv_lshlrev_b32 v51, 14, v51\nv_and_b32 v49, 3, v49\nv_lshl_add_u32 v51, v49, 4, v51")
    A(f"s_lshl_b32 s3, s{sWAVE}, 20\ns_lshl_b32 s57, s{sCG}, 6\ns_add_u32 s3, s3, s57\ns_add_u32 s3, s3, {WS_YB}")
    A("L_rv:")
    A("ds_read_b32 v53, v52\ns_waitcnt lgkmcnt(0)\nv_readfirstlane_b32 s57, v53\ns_cmp_lt_u32 s57, 4\ns_cbranch_scc1 L_rv")
    for i in range(4): A(f"ds_read_b128 v[{64+4*i}:{67+4*i}], v50 offset:{i*1024}")
    for i in range(4):
        A(f"s_waitcnt lgkmcnt({3-i})")
        A(f"buffer_store_dwordx4 v[{64+4*i}:{67+4*i}], v51, {WS}, s3 offen sc1")
        if i < 3: A(f"s_add_u32 s3, s3, {8*2*16384}")
    xstamp(A, "ys")
    A("s_waitcnt vmcnt(4)")
    ln0_part1(A)
    A("s_waitcnt vmcnt(0)")
    xstamp(A, "yd")
    arrive(A, F_S2C, F_S2R, L_CNT+4, 52, vL16)
    stamp(A, 6)
    A(f"s_cmp_lg_u32 s{sWAVE}, 0\ns_cbranch_scc1 L_ln")
    A(f"v_lshlrev_b32 v47, 7, v8\ns_movk_i32 s3, {F_S2R}")
    poll(A, 47, "s3", 48)
    xstamp(A, "s2p")
    A("s_branch L_ln")
    A.flush_hist()
    A("L_b1:")
    A(f"s_cmp_lg_u32 s{sWAVE}, 7\ns_cbranch_scc1 L_b1g")
    A(f"s_lshr_b32 s3, s{sTT}, 1\ns_lshl_b32 s3, s3, 7\nv_and_b32 v47, 1, v9\nv_subrev_u32 v47, 1, v47\nv_and_b32 v47, s3, v47\nv_lshl_add_u32 v47, v8, 10, v47")
    A("v_and_b32 v46, 3, v2\nv_xor_b32 v46, v46, v9\nv_lshlrev_b32 v46, 4, v46\nv_lshrrev_b32 v45, 2, v2\nv_lshl_add_u32 v46, v45, 6, v46")
    A(f"s_lshl_b32 s3, s{sCT}, 14\ns_add_u32 s3, s3, {F_S1}\ns_lshl_b32 s58, s{sCG}, 14\ns_add_u32 s58, s58, {WS_KVR}")
    poll(A, 47, "s3", 48)
    xstamp(A, "s1p")
    for w in range(4):
        A(f"s_mov_b32 m0, {L_Q + w*4096}")
        for i in range(4): A(f"buffer_load_dwordx4 v46, {WS}, s58 offen offset:{i*1024} sc1 lds")
        if w < 3: A("s_add_u32 s58, s58, 4096")
    tile_ids(A, 1)
    g1_prod_setup(A)
    q_addr(A, 48)
    A("s_lshr_b32 s58, s2, 3\ns_lshl_b32 s58, s58, 1\ns_and_b32 s57, s2, 1\ns_add_u32 s58, s58, s57\ns_mul_i32 s58, s58, 7168")
    A(f"s_lshr_b32 s57, s61, 2\ns_mul_i32 s57, s57, 1792\ns_add_u32 s58, s58, s57\ns_add_u32 s{sPF}, s{P['w1']}, s58\ns_addc_u32 s{sPF+1}, s{P['w1']+1}, 0")
    A("s_waitcnt vmcnt(0)\ns_barrier")
    A("s_sleep 8")
    q_issue(A, 48)
    if opt("pf0", 4):
        A(f"s_mov_b32 s59, {opt('pf0', 4)}")
        A("L_pf0:")
        sprefetch(A, 28, 64*7168)
        A("s_sub_u32 s59, s59, 1\ns_cmp_lg_u32 s59, 0\ns_cbranch_scc1 L_pf0")
    xstamp(A, "bp")
    A("s_waitcnt vmcnt(0)")
    ln0_part1(A)
    A("s_branch L_b1m")
    A.flush_hist()
    A("L_b1g:")
    tile_ids(A, 1)
    g1_prod_setup(A)
    A(f"s_mov_b32 s3, {f2u(-1.4426950408889634):#x}")
    lo(A, 16, 220); hi(A, 17, 220)
    for i in range(2): A(f"v_mul_f32 v{18+i}, s3, v{16+i}")
    for i in range(2): A(f"v_exp_f32 v{18+i}, v{18+i}")
    for i in range(2): A(f"v_add_f32 v{18+i}, 1.0, v{18+i}")
    for i in range(2): A(f"v_rcp_f32 v{18+i}, v{18+i}")
    for i in range(2): A(f"v_mul_f32 v{18+i}, v{18+i}, v{16+i}")
    A("v_cvt_pk_bf16_f32 v18, v18, v19")
    A(f"s_lshl_b32 s58, s64, 9\ns_add_u32 s58, s58, {L_GS}\nv_lshlrev_b32 v20, 2, v2\nv_add_u32 v21, s58, v20\nds_write_b32 v21, v18")
    A("v_lshlrev_b32 v22, 3, v9\nv_add_u32 v22, s58, v22")
    SF, GA, GW = 64, 80, 96
    for kb in range(4):
        A(f"ds_read_b64 v[{SF+4*kb}:{SF+4*kb+1}], v22 offset:{kb*64}\nds_read_b64 v[{SF+4*kb+2}:{SF+4*kb+3}], v22 offset:{kb*64+32}")
    unit_lane_off(A, 24, 12288)
    for k in range(1, 4): A(f"v_add_u32 v{24+k}, {k*(8*12288 - 1024)}, v24")
    A(f"s_and_b32 s3, s{sTT}, 7\ns_mul_i32 s3, s3, {128*12288}\ns_lshr_b32 s57, s{sCG}, 3\ns_mul_i32 s57, s57, 384\ns_add_u32 s3, s3, s57\ns_lshl_b32 s57, s64, 7\ns_add_u32 s48, s3, s57")
    A(f"s_lshl_b32 s49, s64, 14\ns_add_u32 s49, s49, {L_GW}")
    A("v_lshrrev_b32 v28, 2, v2\nv_and_b32 v28, 7, v28\nv_lshrrev_b32 v29, 1, v28\nv_lshlrev_b32 v29, 5, v29\nv_lshl_add_u32 v29, v28, 7, v29")
    A("v_and_b32 v28, 3, v2\nv_lshl_add_u32 v29, v28, 3, v29\nv_lshrrev_b32 v28, 5, v2\nv_lshl_add_u32 v29, v28, 10, v29\nv_add_u32 v29, s49, v29")
    for cb in range(4): A(f"v_xor_b32 v{56+cb}, {cb*32}, v29")
    A("v_lshlrev_b32 v23, 4, v9\nv_add_u32 v23, s58, v23")
    sw = srd(A, SB_, "wmod", 12*MB)
    A("s_mov_b32 s58, s48\ns_mov_b32 s59, s49")
    q_addr(A, 48)
    A("s_waitcnt lgkmcnt(0)\ns_barrier")
    A("s_sleep 2")
    for kb in range(4):
        A(f"s_add_u32 m0, s59, {kb*4096}")
        for k in range(4): A(f"buffer_load_dwordx4 v{24+k}, {sw}, s58 offen offset:{k*1024} nt lds")
        if kb < 3: A(f"s_add_u32 s58, s58, {32*12288}")
    q_issue(A, 48)
    xstamp(A, "bi")
    A("s_setprio 3")
    for kb in range(4):
        A(f"s_waitcnt vmcnt({16 - 4*kb})")
        for cb in range(4):
            A(f"ds_read_b64_tr_b16 v[{GW+4*cb}:{GW+4*cb+1}], v{56+cb} offset:{kb*4096}\nds_read_b64_tr_b16 v[{GW+4*cb+2}:{GW+4*cb+3}], v{56+cb} offset:{kb*4096+2048}")
        A("s_waitcnt lgkmcnt(0)")
        for cb in range(4):
            c = "0" if kb == 0 else f"v[{GA+4*cb}:{GA+4*cb+3}]"
            A(f"v_mfma_f32_16x16x32_bf16 v[{GA+4*cb}:{GA+4*cb+3}], v[{GW+4*cb}:{GW+4*cb+3}], v[{SF+4*kb}:{SF+4*kb+3}], {c}")
    xstamp(A, "bw")
    A("s_mov_b32 exec_lo, 0x00010001\ns_mov_b32 exec_hi, 0x00010001")
    for cb in range(4): A(f"ds_write_b128 v23, v[{GA+4*cb}:{GA+4*cb+3}] offset:{256 + cb*64}")
    A("s_mov_b64 exec, -1")
    A("ds_read_b32 v30, v21 offset:256")
    A(f"s_lshr_b32 s3, s{sCG}, 3\ns_mul_i32 s3, s3, 768\ns_lshl_b32 s57, s64, 8\ns_add_u32 s3, s3, s57\ns_add_u32 s3, s3, {F_MOD}")
    A("s_waitcnt lgkmcnt(0)")
    A(f"buffer_atomic_add_f32 v30, v20, {WS}, s3 offen sc1")
    xstamp(A, "ba")
    A("s_waitcnt vmcnt(1)")
    ln0_part1(A)
    A("s_waitcnt vmcnt(0)")
    xstamp(A, "bd")
    arrive(A, F_GVC, F_GVR, L_CNT+8, 52, vL16, 3)
    A("s_setprio 0")
    A("L_b1m:")
    A.flush_hist()
    stamp(A, 3)
    A(f"v_lshlrev_b32 v47, 7, v8\ns_movk_i32 s3, {F_GVR}")
    poll(A, 47, "s3", 48, 4)
    stamp(A, 4)
    A("v_and_b32 v48, 255, v0\nv_lshlrev_b32 v48, 4, v48")
    M = 64
    for j in range(5):
        A(f"s_mov_b32 s3, {F_MOD + j*4096}")
        A(f"buffer_load_dwordx4 v[{M+4*j}:{M+4*j+3}], v48, {WS}, s3 offen sc1")
    A(f"v_add_u32 v48, {L_MOD}, v48")
    A("s_waitcnt vmcnt(0)")
    for e in range(20): A(f"v_cvt_pk_bf16_f32 v{M+e}, v{M+e}, v{M+e}")
    for e in range(20): A(f"v_lshlrev_b32 v{M+e}, 16, v{M+e}")
    for j in (1, 4):
        for e in range(4): A(f"v_add_f32 v{M+4*j+e}, 1.0, v{M+4*j+e}")
        for e in range(4): A(f"v_cvt_pk_bf16_f32 v{M+4*j+e}, v{M+4*j+e}, v{M+4*j+e}")
        for e in range(4): A(f"v_lshlrev_b32 v{M+4*j+e}, 16, v{M+4*j+e}")
    for j in (0, 1):
        for e in range(4): A(f"v_mul_f32 v{M+4*j+e}, v{M+4*j+e}, v{M+8+e}")
    for n, j in enumerate((0, 1, 3, 4)): A(f"ds_write_b128 v48, v[{M+4*j}:{M+4*j+3}] offset:{n*4096}")
    A(f"s_add_u32 s3, s64, 4\ns_lshl_b32 s3, s3, 6\nv_mov_b32 v222, s3")
    A("s_lshr_b32 s3, s2, 3\ns_lshl_b32 s3, s3, 1\ns_and_b32 s57, s2, 1\ns_add_u32 s3, s3, s57\nv_add_u32 v222, s3, v222\ns_movk_i32 s3, 7168\nv_mul_lo_u32 v222, v222, s3")
    A("v_min_u32 v223, 13, v8\nv_lshl_add_u32 v222, v223, 7, v222\ns_lshr_b32 s57, s61, 2\ns_mul_i32 s57, s57, 1792\nv_add_u32 v222, s57, v222")
    stamp(A, 6)
    A("L_ln:")
    A.flush_hist()
    A("s_nop 4")
    A(f"v_lshlrev_b32 v12, 6, v{vCG}\nv_lshl_add_u32 v12, v{vHF}, 5, v12")
    A(f"v_lshlrev_b32 v15, 4, v{vCG}\nv_lshl_add_u32 v248, v{vHF}, 13, v15\nv_add_u32 v15, {L_MOD}, v15")
    A(f"s_lshl_b32 s58, s{sTB}, 14\ns_add_u32 s3, s58, {WS_YB}\ns_add_u32 s58, s58, {WS_X1}\nv_add_u32 v248, s58, v248\nv_add_u32 v249, 4096, v248")
    A("s_waitcnt lgkmcnt(0)\ns_barrier")
    stamp(A, 7)
    YR, M, H, TMP, ST = 40, 48, 72, 88, 96
    for c in range(2): A(f"buffer_load_dwordx4 v[{YR+4*c}:{YR+4*c+3}], v12, {WS}, s3 offen offset:{16*c} sc1")
    for j in range(4): A(f"ds_read_b128 v[{M+4*j}:{M+4*j+3}], v15 offset:{j*4096}")
    red_part2(A, vSTR, 0, ST)
    normalize(A, H, LX, ST, M+4, M)
    A(f"v_lshrrev_b32 v12, 3, v{vCG}\nv_and_b32 v15, 3, v{vCG}\nv_lshl_add_u32 v12, v12, 2, v15")
    A(f"v_and_b32 v15, 7, v12\nv_lshlrev_b32 v10, 2, v{vHF}\nv_xor_b32 v15, v15, v10\nv_lshlrev_b32 v15, 4, v15\nv_lshl_add_u32 v12, v12, 7, v15")
    A(f"v_and_b32 v15, 4, v{vCG}\nv_lshl_add_u32 v12, v15, 1, v12\nv_add_u32 v12, {L_MOD}, v12")
    xstamp(A, "ln_a")
    A("s_waitcnt vmcnt(0)")
    xstamp(A, "ln_b")
    if not opt("nopf1"):
        A(f"s_cmp_lt_u32 s{sWAVE}, 4\ns_cbranch_scc1 L_nopf1")
        A(f"buffer_load_dword v223, v222, s[{SA_}:{SA_+3}], 0 offen")
        A("L_nopf1:")
    for i in range(4):
        for c in range(4): (lo if i % 2 == 0 else hi)(A, TMP+c, YR+2*c+i//2)
        for c in range(0, 4, 2): A(f"v_pk_fma_f32 v[{LX+4*i+c}:{LX+4*i+c+1}], v[{H+4*i+c}:{H+4*i+c+1}], v[{TMP+c}:{TMP+c+1}], v[{LX+4*i+c}:{LX+4*i+c+1}]")
        A(f"v_cvt_pk_bf16_f32 v{QR+2*i}, v{LX+4*i}, v{LX+4*i+1}\nv_cvt_pk_bf16_f32 v{QR+2*i+1}, v{LX+4*i+2}, v{LX+4*i+3}")
        lo(A, LX+4*i, QR+2*i); hi(A, LX+4*i+1, QR+2*i); lo(A, LX+4*i+2, QR+2*i+1); hi(A, LX+4*i+3, QR+2*i+1)
    stats4(A, LX, LR)
    red_part1(A, LR, vSTW, 64)
    xstamp(A, "ln_c")
    A("s_waitcnt lgkmcnt(0)\ns_barrier")
    xstamp(A, "ln_d")
    red_part2(A, vSTR, 64, ST)
    normalize(A, H, LX, ST, M+12, M+8)
    stats4(A, H, LR)
    red_part1(A, LR, vSTW, 128)
    xstamp(A, "ln_e")
    A("s_waitcnt lgkmcnt(0)\ns_barrier")
    xstamp(A, "ln_f")
    red_part2(A, vSTR, 128, ST)
    normalize(A, H, H, ST)
    for i in range(4):
        A(f"v_cvt_pk_bf16_f32 v{YR+2*i}, v{H+4*i}, v{H+4*i+1}\nv_cvt_pk_bf16_f32 v{YR+2*i+1}, v{H+4*i+2}, v{H+4*i+3}")
        A(f"v_xor_b32 v15, {i*16}, v12")
        A(f"ds_write_b64 v15, v[{YR+2*i}:{YR+2*i+1}]")
    xstamp(A, "ln_g")
    A(f"s_cmp_ge_u32 s{sWAVE}, 4\ns_cbranch_scc1 L_b2")
    A(f"v_lshrrev_b32 v12, 3, v0\nv_and_b32 v13, 7, v0\nv_and_b32 v14, 7, v12\nv_xor_b32 v14, v14, v13\nv_lshlrev_b32 v14, 4, v14\nv_lshl_add_u32 v14, v12, 7, v14\nv_add_u32 v14, {L_MOD}, v14")
    A(f"s_lshr_b32 s3, s{sTB}, 1\ns_lshl_b32 s3, s3, 15\ns_and_b32 s57, s{sTB}, 1\ns_lshl_b32 s57, s57, 7\ns_add_u32 s3, s3, s57\ns_add_u32 s3, s3, {WS_Y2F}")
    A("v_lshlrev_b32 v15, 8, v12\nv_lshl_add_u32 v15, v13, 4, v15")
    A("s_waitcnt lgkmcnt(0)\ns_barrier")
    xstamp(A, "ln_h")
    for i in range(4): A(f"ds_read_b128 v[{64+4*i}:{67+4*i}], v14 offset:{i*4096}")
    for i in range(4):
        A(f"s_waitcnt lgkmcnt({3-i})")
        A(f"buffer_store_dwordx4 v[{64+4*i}:{67+4*i}], v15, {WS}, s3 offen sc1")
        if i < 3: A("s_add_u32 s3, s3, 8192")
    A(f"s_lshl_b32 s3, s{sTB}, 2\ns_add_u32 s3, s3, s{sWAVE}\ns_lshl_b32 s3, s3, 7\ns_add_u32 s3, s3, {F_S3}")
    A("s_waitcnt vmcnt(0)")
    flag_set(A, "s3", 52, vL16)
    xstamp(A, "ln_i")
    A("s_barrier")
    stamp(A, 8)
    g1_consumer(A, 9)
    g2_consumer(A, 12)
    if STAMPS:
        A("s_waitcnt vmcnt(0)"); stamp(A, 14)
    stamp_flush(A)
    A("s_endpgm")
    A.flush_hist()
    A("L_b2:")
    A("s_waitcnt lgkmcnt(0)\ns_barrier")
    stamp(A, 8)
    A("s_barrier")
    for _ in range(2): g1_issue_w(A)
    A(f"v_and_b32 v47, 15, v2\nv_lshlrev_b32 v47, 7, v47\ns_lshl_b32 s3, s60, 13\ns_lshl_b32 s57, s64, 11\ns_add_u32 s3, s3, s57\ns_add_u32 s3, s3, {F_S3}")
    poll(A, 47, "s3", 48)
    stamp(A, 9)
    A(f"s_or_b32 s3, s2, s64\ns_cmp_lg_u32 s3, 0\ns_cbranch_scc1 L_noepoch")
    flag_set(A, "0", 52, vL16)
    A("s_waitcnt vmcnt(0)")
    A("L_noepoch:")
    g1_prod_main(A)
    stamp(A, 10)
    g2_producer(A)
    stamp(A, 13)
    stamp_flush(A)
    A("L_exit:\ns_endpgm")
    A("L_end:")

def build():
    A = Asm()
    kernel(A)
    head = ["; generated by dev/gen6.py (single persistent kernel; see that generator for the design notes)",
            f"; @launch grid=(256,1,1) block=(512,1,1) lds={LDS_TOTAL}",
            '.amdgcn_target "amdgcn-amd-amdhsa--gfx950"', ".text"]
    tail = ['.section .rodata,"a"', ".p2align 6", descriptor(NAME, 256, 102)]
    return "\n".join(head) + "\n" + A.text() + "\n".join(tail)

if __name__ == "__main__":
    if "-stamps" in sys.argv: STAMPS = True
    for a in sys.argv:
        if a.startswith("-o="):
            for kv in a[3:].split(","):
                k, v = kv.split(":"); OPT[k] = int(v)
        if a.startswith("-xs="):
            STAMPS = True
            for n, nm in enumerate(a[4:].split(",")): XS[nm] = n + 1
    out = sys.argv[1] if len(sys.argv) > 1 and not sys.argv[1].startswith("-") else "adaLN_cond__ssm_conv_h3__mixer_channel_mlp__prompt.s"
    open(out, "w").write(build())
```

```python
import sys, math, struct
from asmgen import *

MB = 1 << 20
NAME = "adaLN_cond__ssm_conv_h3__mixer_channel_mlp__prompt_kernel"
F_E, F_S2C, F_S2R, F_GVC, F_GVR, F_MOD = 0, 0x1000, 0x3000, 0x5000, 0x7000, 0x10000
F_S3, F_S4A, F_S4B, F_S5, F_S1 = 0x20000, 0x40000, 0x60000, 0x80000, 0xA0000
WS_KVR, WS_YB, WS_X1, WS_Y2F, WS_HF, WS_PART, WS_ST = 1*MB, 5*MB, 9*MB, 13*MB, 17*MB, 32*MB, 48*MB
P = dict(q=4, k=6, v=8, shift=10, ssmk=12, ssmD=14, w1=18, b1=20, w2=22, b2=24, c=26, wmod=28, out=30, ws=34)
WS = "s[36:39]"
SA_, SB_, SC_ = 40, 44, 48
sWAVE, sN, sCT, sTT, sC0 = 52, 53, 54, 55, 56
sCG, sTB = 0, 1
sPF, sDUMMY = 16, 32
PS = 4160; WSZ = 4 * PS; L_Q = 4 * WSZ; L_GW = 102400; L_GS = L_GW + 49152
L_KT = 86016; L_VT = L_KT + 17408; L_TB = L_VT + 16384
L_YS = 86016; L_MOD = 135168; L_ST = 155648; LDS_TOTAL = 156672
L_CNT = L_ST + 192
G1_W, G1_WSLOT, G1_A = 0, 28672, 86016
QR = 240
STAMPS = False
OPT = {}
def opt(k, d=0): return OPT.get(k, d)
def asc(): return '' if opt('nosc1') else 'sc1'

def f2u(x): return struct.unpack("<I", struct.pack("<f", x))[0]
def srd(A, d, name, nbytes):
    b = P[name]
    A(f"s_mov_b32 s{d}, s{b}\ns_mov_b32 s{d+1}, s{b+1}\ns_mov_b32 s{d+2}, {nbytes}\ns_mov_b32 s{d+3}, 0x20000")
    return f"s[{d}:{d+3}]"
def lo(A, d, s): A(f"v_lshlrev_b32 v{d}, 16, v{s}")
def hi(A, d, s): A(f"v_and_b32 v{d}, 0xffff0000, v{s}")

NSLOT = 15
XS = {}
def xstamp(A, name):
    if STAMPS and name in XS: A(f"s_memrealtime s[{72+2*XS[name]}:{73+2*XS[name]}]")
    if STAMPS and "c:" + name in XS: A(f"s_memtime s[{72+2*XS['c:'+name]}:{73+2*XS['c:'+name]}]")
def stamp(A, slot):
    xstamp(A, str(slot))
    if STAMPS and (slot == 0 or not XS):
        if slot == 0:
            for i in range(1, NSLOT): A(f"s_mov_b32 s{72+2*i}, 0")
        A(f"s_memrealtime s[{72+2*slot}:{73+2*slot}]")
def stamp_flush(A):
    if not STAMPS: return
    A("s_waitcnt lgkmcnt(0)")
    if opt("xcc"):
        l = A.newlabel("nopad"); l2 = A.newlabel("padl")
        A(f"s_cmp_lg_u32 s{sWAVE}, 0\ns_cbranch_scc1 {l}")
        A("s_getreg_b32 s42, hwreg(HW_REG_XCC_ID)\ns_sub_u32 s42, s42, s2\ns_and_b32 s42, s42, 7")
        if opt("xcc") == 2: A("s_sub_u32 s42, 7, s42")
        A("s_mul_i32 s42, s42, 1000\ns_add_u32 s42, s42, 10000")
        A(f"{l2}:")
        A(f"s_memrealtime s[40:41]\ns_waitcnt lgkmcnt(0)\ns_sub_u32 s40, s40, s72\ns_cmp_lt_u32 s40, s42\ns_cbranch_scc1 {l2}")
        A(f"{l}:")
        return
    if opt("pad", -1) >= 0:
        l = A.newlabel("nopad"); l2 = A.newlabel("padl")
        A(f"s_cmp_lg_u32 s2, {opt('dbgwg', 37)}\ns_cbranch_scc1 {l}\ns_cmp_lg_u32 s{sWAVE}, 0\ns_cbranch_scc1 {l}")
        A(f"{l2}:")
        A(f"s_memrealtime s[40:41]\ns_waitcnt lgkmcnt(0)\ns_sub_u32 s40, s40, s{72+2*opt('pad')}\ns_cmp_lt_u32 s40, {opt('padt', 10000)}\ns_cbranch_scc1 {l2}")
        A(f"{l}:")
        return
    if opt("dbgst"):
        l = A.newlabel("nodbg")
        A(f"s_cmp_lg_u32 s2, {opt('dbgwg', 37)}\ns_cbranch_scc1 {l}\ns_cmp_lg_u32 s{sWAVE}, {opt('dbgst')-1}\ns_cbranch_scc1 {l}")
        A("s_mov_b32 s40, s6\ns_mov_b32 s41, s7\ns_mov_b32 s42, 256\ns_mov_b32 s43, 0x20000")
        A("s_mov_b64 exec, 1\nv_mov_b32 v1, 0")
        for i in range(NSLOT):
            A(f"s_sub_u32 s3, s{72+2*i}, s72\nv_mov_b32 v2, s3")
            A(f"buffer_store_dword v2, v1, s[40:43], 0 offen offset:{4*i}")
        A("s_waitcnt vmcnt(0)")
        A(f"{l}:")
        return
    A(f"s_lshl_b32 s3, s2, 9\ns_lshl_b32 s57, s{sWAVE}, 6\ns_add_u32 s3, s3, s57\ns_add_u32 s3, s3, {WS_ST}")
    A("s_mov_b64 exec, 1\nv_mov_b32 v1, 0")
    for i in range(NSLOT):
        A(f"v_mov_b32 v2, s{72+2*i}")
        A(f"buffer_store_dword v2, v1, {WS}, s3 offen offset:{4*i}")
    A("s_waitcnt vmcnt(0)")

def flag_set(A, soff, vt, vl16):
    for i in range(4): A(f"v_mov_b32 v{vt+i}, s{sN}")
    A("s_mov_b64 exec, 0xff")
    A(f"buffer_store_dwordx4 v[{vt}:{vt+3}], v{vl16}, {WS}, {soff} offen sc1")
    A("s_mov_b64 exec, -1")
def poll(A, vaddr, soff, vt, sleep=0):
    l = A.newlabel("poll"); d = A.newlabel("pdone")
    A("s_mov_b32 s57, 0")
    A(f"{l}:")
    A(f"buffer_load_dword v{vt}, v{vaddr}, {WS}, {soff} offen sc1")
    A("s_waitcnt vmcnt(0)")
    A(f"v_cmp_ne_u32 vcc, s{sN}, v{vt}")
    A("s_nop 1")
    A(f"s_cbranch_vccz {d}")
    if sleep: A(f"s_sleep {sleep}")
    A(f"s_add_u32 s57, s57, 1\ns_cmp_lt_u32 s57, 0x40000\ns_cbranch_scc1 {l}")
    A(f"{d}:")
def arrive(A, cbase, rbase, lcnt, vt, vl16, nw=4):
    d = A.newlabel("arr")
    A(f"v_mov_b32 v{vt}, 1\nv_mov_b32 v{vt+1}, {lcnt}\ns_mov_b64 exec, 1")
    A(f"ds_add_rtn_u32 v{vt+2}, v{vt+1}, v{vt}")
    A(f"s_lshl_b32 s57, s{sCT}, 7\ns_add_u32 s58, s57, {cbase}\ns_add_u32 s59, s57, {rbase}")
    A(f"s_waitcnt lgkmcnt(0)\nv_readfirstlane_b32 s57, v{vt+2}")
    A(f"s_cmp_lg_u32 s57, {nw-1}\ns_cbranch_scc1 {d}")
    A(f"buffer_atomic_add v{vt}, v{vl16}, {WS}, s58 offen sc0 sc1")
    A("s_waitcnt vmcnt(0)")
    A(f"v_readfirstlane_b32 s57, v{vt}")
    A(f"s_sub_u32 s57, s57, s{sC0}\ns_cmp_lg_u32 s57, 15\ns_cbranch_scc1 {d}")
    A("s_mov_b64 exec, -1")
    flag_set(A, "s59", vt, vl16)
    A(f"{d}:")
    A("s_mov_b64 exec, -1")

def stats4(A, X, R):
    for i in range(4):
        A(f"v_add_f32 v{R+i}, v{X+4*i}, v{X+4*i+1}")
        A(f"v_mul_f32 v{R+4+i}, v{X+4*i}, v{X+4*i}")
    for c in (2, 3):
        for i in range(4): A(f"v_add_f32 v{R+i}, v{R+i}, v{X+4*i+c}")
    for c in (1, 2, 3):
        for i in range(4): A(f"v_fmac_f32 v{R+4+i}, v{X+4*i+c}, v{X+4*i+c}")
DPPM = "row_mask:0xf bank_mask:0xf"
def red_part1(A, R, vW, off):
    for e in range(4): A(f"v_permlane32_swap_b32 v{R+e}, v{R+e+4}")
    for e in range(4): A(f"v_add_f32 v{R+e}, v{R+e}, v{R+e+4}")
    for e in range(2): A(f"v_permlane16_swap_b32 v{R+e}, v{R+e+2}")
    for e in range(2): A(f"v_add_f32 v{R+e}, v{R+e}, v{R+e+2}")
    for m in ("row_ror:8", "quad_perm:[1,0,3,2]", "quad_perm:[2,3,0,1]"):
        for e in range(2): A(f"v_add_f32_dpp v{R+e}, v{R+e}, v{R+e} {m} {DPPM}")
    A("s_mov_b32 exec_lo, 0x00110011\ns_mov_b32 exec_hi, 0x00110011")
    A(f"ds_add_f32 v{vW}, v{R} offset:{off}\nds_add_f32 v{vW}, v{R+1} offset:{off+4}")
    A("s_mov_b64 exec, -1")
def red_part2(A, vRd, off, tmp):
    A(f"ds_read2_b32 v[{tmp}:{tmp+1}], v{vRd} offset0:{off//4} offset1:{off//4 + 4}")
    A("s_waitcnt lgkmcnt(0)")
    A(f"v_mul_f32 v{tmp}, {f2u(1/1024):#x}, v{tmp}")
    A(f"v_mul_f32 v{tmp+2}, v{tmp}, v{tmp}")
    A(f"v_mul_f32 v{tmp+1}, {f2u(1/1024):#x}, v{tmp+1}")
    A(f"v_sub_f32 v{tmp+1}, v{tmp+1}, v{tmp+2}")
    A(f"v_max_f32 v{tmp+1}, 0, v{tmp+1}")
    A(f"v_add_f32 v{tmp+1}, {f2u(1e-5):#x}, v{tmp+1}")
    A(f"v_rsq_f32 v{tmp+1}, v{tmp+1}")
def qp(i): return f"quad_perm:[{i},{i},{i},{i}] {DPPM}"
def normalize(A, D, X, st, G=None, S=None):
    for i in range(4):
        for c in range(4): A(f"v_subrev_f32_dpp v{D+4*i+c}, v{st}, v{X+4*i+c} {qp(i)}")
    for i in range(4):
        for c in range(4): A(f"v_mul_f32_dpp v{D+4*i+c}, v{st+1}, v{D+4*i+c} {qp(i)}")
    if G is not None:
        for i in range(4):
            for c in range(0, 4, 2): A(f"v_pk_fma_f32 v[{D+4*i+c}:{D+4*i+c+1}], v[{D+4*i+c}:{D+4*i+c+1}], v[{G+c}:{G+c+1}], v[{S+c}:{S+c+1}]")
LX = 16
LR = 32
vSTW, vSTR, vCG, vHF = 4, 5, 6, 7
def ln_ids(A, cg, hf):
    A(f"v_lshrrev_b32 v{cg}, 3, v0\nv_and_b32 v{hf}, 3, v0\nv_lshl_add_u32 v{cg}, v{cg}, 2, v{hf}\nv_bfe_u32 v{hf}, v0, 2, 1")
def q_addr(A, vt):
    srd(A, SC_, "q", 4*MB)
    ln_ids(A, vt, vt+1)
    A(f"v_lshlrev_b32 v{vt}, 3, v{vt}\nv_lshl_add_u32 v{vt}, v{vt+1}, 13, v{vt}")
    A(f"s_lshl_b32 s3, s{sTB}, 14\nv_add_u32 v{vt}, s3, v{vt}\nv_add_u32 v{vt+1}, 4096, v{vt}")
def q_issue(A, vt):
    for i in range(4):
        A(f"buffer_load_dwordx2 v[{QR+2*i}:{QR+2*i+1}], v{vt+i//2}, s[{SC_}:{SC_+3}], 0 offen offset:{(i%2)*2048} nt")
def ln0_part1(A):
    ln_ids(A, vCG, vHF)
    A(f"v_lshrrev_b32 v{vSTW}, 4, v2\nv_lshlrev_b32 v{vSTW}, 3, v{vSTW}\nv_lshl_add_u32 v{vSTW}, v{vHF}, 5, v{vSTW}\nv_add_u32 v{vSTW}, {L_ST}, v{vSTW}")
    A(f"v_and_b32 v{vSTR}, 3, v0\nv_lshlrev_b32 v{vSTR}, 2, v{vSTR}\nv_lshl_add_u32 v{vSTR}, v{vHF}, 5, v{vSTR}\nv_add_u32 v{vSTR}, {L_ST}, v{vSTR}")
    for i in range(4):
        lo(A, LX+4*i, QR+2*i); hi(A, LX+4*i+1, QR+2*i); lo(A, LX+4*i+2, QR+2*i+1); hi(A, LX+4*i+3, QR+2*i+1)
    stats4(A, LX, LR)
    red_part1(A, LR, vSTW, 0)
def x1_store(A):
    for j in range(2): A(f"buffer_store_dwordx4 v[{QR+4*j}:{QR+4*j+3}], v{248+j}, {WS}, 0 offen sc1")
def sprefetch(A, n, adv):
    for k in range(n): A(f"s_load_dword s{sDUMMY}, s[{sPF}:{sPF+1}], {k*64}")
    A(f"s_add_u32 s{sPF}, s{sPF}, {adv}\ns_addc_u32 s{sPF+1}, s{sPF+1}, 0")

def tile_ids(A, which):
    A("s_and_b32 s57, s2, 7\ns_lshr_b32 s58, s2, 3")
    if which == 1:
        A("s_and_b32 s60, s57, 1\ns_lshl_b32 s60, s60, 3\ns_and_b32 s3, s58, 7\ns_add_u32 s60, s60, s3")
        A("s_lshr_b32 s61, s57, 1\ns_lshl_b32 s61, s61, 2\ns_lshr_b32 s3, s58, 3\ns_add_u32 s61, s61, s3")
        A("s_mul_i32 s62, s61, 448\ns_and_b32 s3, s61, 1\ns_cmp_eq_u32 s3, 0")
        A("s_cselect_b32 s63, 384, 0\ns_cselect_b32 s3, 0, 64\ns_add_u32 s63, s63, s62\ns_add_u32 s62, s62, s3")
    else:
        A("s_lshr_b32 s60, s57, 1\ns_lshl_b32 s60, s60, 2\ns_and_b32 s3, s58, 3\ns_add_u32 s60, s60, s3")
        A("s_and_b32 s61, s57, 1\ns_lshr_b32 s62, s58, 2\ns_lshl_b32 s62, s62, 8\ns_lshl_b32 s3, s61, 7\ns_add_u32 s62, s62, s3\ns_xor_b32 s63, s62, 128")

G1_NST = 16
G1_ASLOT, G1_USZ, G1_HOFF = 16384, 8192, 24576
PVA, PVW = 200, 204
def unit_lane_off(A, t, rs):
    A(f"v_lshrrev_b32 v{t}, 3, v2\nv_lshrrev_b32 v{t+1}, 1, v{t}\nv_lshlrev_b32 v{t+1}, 1, v{t+1}\nv_and_b32 v{t+2}, 7, v2\nv_xor_b32 v{t+1}, v{t+1}, v{t+2}\nv_lshlrev_b32 v{t+1}, 4, v{t+1}")
    A(f"s_movk_i32 s3, {rs}\nv_mul_lo_u32 v{t}, v{t}, s3\nv_add_u32 v{t}, v{t}, v{t+1}")
def g1_prod_setup(A):
    RS = 7168
    A(f"s_sub_u32 s64, s{sWAVE}, 4")
    A(f"s_lshl_b32 s3, s60, 3\ns_lshl_b32 s57, s64, 1\ns_add_u32 s3, s3, s57\ns_lshl_b32 s3, s3, 15\ns_add_u32 s3, s3, {WS_Y2F}")
    A(f"v_lshlrev_b32 v{PVA}, 4, v2\nv_add_u32 v{PVA}, s3, v{PVA}\nv_add_u32 v{PVA+1}, {32*1024}, v{PVA}")
    t = 212
    unit_lane_off(A, t, RS)
    A(f"s_mul_i32 s3, s64, {16*RS}\ns_add_u32 s3, s3, s62\nv_add_u32 v{t}, s3, v{t}")
    for u in range(3):
        for rgi in range(2):
            A(f"v_add_u32 v{PVW+u*2+rgi}, {u*128 + rgi*8*RS - rgi*1024}, v{t}")
    A(f"v_lshrrev_b32 v{t}, 2, v2\nv_bfe_u32 v{t+1}, v2, 4, 1\nv_and_b32 v{t+2}, 3, v2\nv_xor_b32 v{t+1}, v{t+1}, v{t+2}\nv_lshlrev_b32 v{t+1}, 4, v{t+1}")
    A(f"s_movk_i32 s3, {RS}\nv_mul_lo_u32 v{t}, v{t}, s3\nv_add_u32 v{t}, v{t}, v{t+1}")
    A(f"s_mul_i32 s3, s64, {16*RS}\ns_add_u32 s3, s3, s63\nv_add_u32 v{PVW+6}, s3, v{t}")
    A("s_mov_b32 s65, 0\ns_mov_b32 s66, 0")
    A(f"s_lshl_b32 s67, s64, 12\ns_add_u32 s67, s67, {G1_A}")
    A(f"s_lshl_b32 s68, s64, 11")
    A(f"s_lshl_b32 s69, s64, 10\ns_sub_u32 s69, {G1_HOFF}, s69")
    A(f"s_add_u32 s70, s67, {3*G1_ASLOT}\ns_add_u32 s71, s68, {3*G1_WSLOT}")
    srd(A, SA_, "w1", 1024*7168)
def g1_issue_w(A):
    for u in range(3):
        A(f"s_add_u32 m0, s68, {u*G1_USZ}")
        for rgi in range(2):
            A(f"buffer_load_dwordx4 v{PVW+u*2+rgi}, s[{SA_}:{SA_+3}], s66 offen offset:{rgi*1024} lds")
    A("s_add_u32 m0, s68, s69")
    A(f"buffer_load_dwordx4 v{PVW+6}, s[{SA_}:{SA_+3}], s66 offen lds")
    A(f"s_add_u32 s66, s66, {64*7168}")
    A(f"s_add_u32 s68, s68, {G1_WSLOT}\ns_cmp_eq_u32 s68, s71\ns_cselect_b32 s3, {3*G1_WSLOT}, 0\ns_sub_u32 s68, s68, s3")
def g1_issue_a(A):
    for h in range(2):
        A(f"s_add_u32 m0, s67, {h*2048}")
        for ks in range(2):
            A(f"buffer_load_dwordx4 v{PVA+h}, {WS}, s65 offen offset:{ks*1024} {asc()} lds")
    A("s_add_u32 s65, s65, 2048")
    A(f"s_add_u32 s67, s67, {G1_ASLOT}\ns_cmp_eq_u32 s67, s70\ns_cselect_b32 s3, {3*G1_ASLOT}, 0\ns_sub_u32 s67, s67, s3")
def g1_prod_main(A):
    NI = 11
    g1_issue_a(A); g1_issue_a(A); g1_issue_w(A); g1_issue_a(A)
    x1_store(A)
    s2_ = srd(A, SB_, "w2", 3584*2048)
    A("s_mul_i32 s48, s2, 224\ns_mul_i32 s57, s64, 56\ns_add_u32 s48, s48, s57\ns_lshl_b32 s48, s48, 7")
    A("v_min_u32 v50, 55, v2\nv_lshlrev_b32 v50, 7, v50")
    A(f"s_lshr_b32 s49, s2, 3\ns_and_b32 s49, s49, 7\ns_add_u32 s49, s49, 2")
    A("s_add_u32 s3, s49, 6\ns_lshl_b32 s3, s3, 3\ns_and_b32 s57, s2, 1\ns_lshl_b32 s57, s57, 2\ns_add_u32 s3, s3, s57\ns_lshr_b32 s57, s2, 6\ns_add_u32 s3, s3, s57\ns_lshl_b32 s3, s3, 2\ns_add_u32 s3, s3, s64\ns_lshl_b32 s3, s3, 1")
    A("v_bfe_u32 v52, v2, 4, 1\nv_add_u32 v52, s3, v52\ns_movk_i32 s3, 7168\nv_mul_lo_u32 v52, v52, s3\nv_and_b32 v53, 15, v2\nv_min_u32 v53, 13, v53\nv_lshl_add_u32 v52, v53, 7, v52")
    A("s_lshr_b32 s50, s61, 2\ns_mul_i32 s50, s50, 1792")
    A(f"s_waitcnt vmcnt({6+NI})\ns_barrier")
    A("s_mov_b32 s59, 0")
    l = A.newlabel("ploop"); l2 = A.newlabel("pnp")
    A(f"{l}:")
    A(f"s_waitcnt vmcnt({NI})\ns_barrier")
    g1_issue_w(A); g1_issue_a(A)
    if not opt("nopf2"):
        A(f"s_cmp_lg_u32 s59, s49\ns_cbranch_scc1 {l2}")
        A(f"buffer_load_dword v53, v52, s[{SA_}:{SA_+3}], s50 offen")
        A(f"buffer_load_dword v51, v50, {s2_}, s48 offen")
        A(f"{l2}:")
    A(f"s_add_u32 s59, s59, 1\ns_cmp_lg_u32 s59, 13\ns_cbranch_scc1 {l}")
    A(f"s_waitcnt vmcnt({NI})\ns_barrier")
    A(f"s_waitcnt vmcnt(0)\ns_barrier")
    A("s_barrier")

def tr_base(A):
    A("v_lshrrev_b32 v3, 4, v2\nv_and_b32 v4, 15, v2")
    A("v_lshrrev_b32 v6, 2, v2\nv_and_b32 v6, 7, v6\nv_lshrrev_b32 v7, 1, v6\nv_lshlrev_b32 v7, 5, v7\nv_lshl_add_u32 v7, v6, 7, v7")
    A("v_and_b32 v8, 3, v2\nv_lshl_add_u32 v7, v8, 3, v7\nv_lshrrev_b32 v9, 5, v2\nv_lshl_add_u32 v7, v9, 10, v7")
def interleave(A, mf, fill, per):
    n = 0
    for m in mf:
        A(m)
        for _ in range(per(n)):
            if n < len(fill): A(fill[n]); n += 1
    while n < len(fill): A(fill[n]); n += 1

def sched(A, mf, slots):
    for n, m in enumerate(mf):
        A(m)
        for l in slots.get(n, []): A(l)
def align8(A):
    A.raw(".p2align 3")

def g1_consumer(A, st0):
    NT = 7
    tile_ids(A, 1)
    A(f"s_and_b32 s64, s{sWAVE}, 1\ns_lshr_b32 s65, s{sWAVE}, 1")
    tr_base(A)
    vA, VT, TC = 5, 10, 44
    A(f"s_lshl_b32 s3, s64, 13\ns_add_u32 s3, s3, {G1_A}\nv_lshlrev_b32 v5, 4, v2\nv_add_u32 v5, s3, v5")
    A(f"s_lshl_b32 s3, s65, 14")
    for cb in range(4):
        A(f"v_xor_b32 v{VT+cb}, {cb*32}, v7\nv_add_u32 v{VT+cb}, s3, v{VT+cb}")
    A("s_lshl_b32 s3, s65, 6")
    for e in range(2):
        A(f"v_xor_b32 v{VT+4+e}, s3, v7\nv_xor_b32 v{VT+4+e}, {e*32}, v{VT+4+e}\nv_add_u32 v{VT+4+e}, {G1_USZ}, v{VT+4+e}")
    A("v_and_b32 v9, 2, v8\nv_or_b32 v9, s65, v9\nv_and_b32 v6, 1, v3\nv_xor_b32 v9, v9, v6\nv_lshlrev_b32 v9, 4, v9")
    A(f"v_lshrrev_b32 v6, 2, v2\nv_lshl_add_u32 v9, v6, 6, v9\nv_and_b32 v6, 1, v8\nv_lshl_add_u32 v9, v6, 3, v9\nv_add_u32 v{VT+6}, {G1_HOFF}, v9")
    A(f"s_lshl_b32 s3, s65, 8\ns_add_u32 s{TC}, s62, s3")
    for cb in range(1, 4): A(f"s_add_u32 s{TC+cb}, s{TC}, {cb*32}")
    A(f"s_lshl_b32 s3, s65, 6\ns_add_u32 s{TC+4}, s62, s3\ns_add_u32 s{TC+4}, s{TC+4}, 128\ns_add_u32 s{TC+5}, s{TC+4}, 32")
    A(f"s_lshl_b32 s3, s65, 4\ns_add_u32 s{TC+6}, s63, s3")
    ACC = 20
    FA = [ACC + 16*NT, ACC + 16*NT + 16]
    FW = [FA[1] + 16, FA[1] + 16 + 4*NT]
    sb = srd(A, SA_, "b1", 7168)
    A("v_lshlrev_b32 v6, 3, v3\nv_and_b32 v9, 1, v3\nv_lshlrev_b32 v9, 3, v9\nv_lshrrev_b32 v17, 1, v3\nv_lshl_add_u32 v9, v17, 5, v9")
    for t in range(NT):
        A(f"buffer_load_dwordx2 v[{FW[1]+2*t}:{FW[1]+2*t+1}], v{6 if t < 6 else 9}, {sb}, s{TC+t} offen")
    A("s_waitcnt vmcnt(0)")
    for t in range(NT):
        a = ACC + 4*t
        lo(A, a, FW[1]+2*t); hi(A, a+1, FW[1]+2*t); lo(A, a+2, FW[1]+2*t+1); hi(A, a+3, FW[1]+2*t+1)
    for i in range(1, 4):
        for t in range(NT):
            for r in range(4): A(f"v_mov_b32 v{ACC+4*(i*NT+t)+r}, v{ACC+4*t+r}")
    def reads(ks, buf):
        aa = [f"ds_read_b128 v[{FA[buf]+4*i}:{FA[buf]+4*i+3}], v{vA} offset:{(i*2+ks)*1024}" for i in range(4)]
        ww = []
        for t in range(NT):
            o0, d = (ks*2048, 1024) if t == 6 else (ks*4096, 2048)
            ww.append(f"ds_read_b64_tr_b16 v[{FW[buf]+4*t}:{FW[buf]+4*t+1}], v{VT+t} offset:{o0}")
            ww.append(f"ds_read_b64_tr_b16 v[{FW[buf]+4*t+2}:{FW[buf]+4*t+3}], v{VT+t} offset:{o0+d}")
        return aa + ww
    A(f"s_mov_b32 s59, {G1_NST-1}\ns_mov_b32 s58, 1\ns_mov_b32 s66, {G1_ASLOT}\ns_mov_b32 s67, {G1_WSLOT}")
    A(f"s_mov_b32 s70, {-2*G1_ASLOT & 0xffffffff}\ns_mov_b32 s71, {-2*G1_WSLOT & 0xffffffff}\ns_mov_b32 s68, s66\ns_mov_b32 s69, s67")
    A("s_barrier")
    stamp(A, st0)
    for l in reads(0, 0): A(l)
    x1_store(A)
    A("s_waitcnt lgkmcnt(0)")
    align8(A)
    start = len(A.lines)
    lp = A.newlabel("cloop")
    A(f"{lp}:")
    for ks in range(2):
        rd = reads(ks ^ 1, ks ^ 1)
        mf = [f"v_mfma_f32_16x16x32_bf16 v[{ACC+4*(i*NT+t)}:{ACC+4*(i*NT+t)+3}], v[{FW[ks]+4*t}:{FW[ks]+4*t+3}], v[{FA[ks]+4*i}:{FA[ks]+4*i+3}], v[{ACC+4*(i*NT+t)}:{ACC+4*(i*NT+t)+3}]"
              for i in range(4) for t in range(NT)]
        sl = {n: [rd[n]] for n in range(18)}
        if ks == 0:
            ad = [f"v_add_u32 v{vA}, s68, v{vA}"] + [f"v_add_u32 v{VT+t}, s69, v{VT+t}" for t in range(NT)]
            for n in range(4): sl[18+n] = ad[2*n:2*n+2]
            sl[25] = ["s_waitcnt lgkmcnt(0)", "s_barrier"]
        else:
            sl[18] = ["s_add_u32 s58, s58, 1", "s_cmp_eq_u32 s58, 3"]
            sl[19] = ["s_cselect_b32 s58, 0, s58", "s_cselect_b32 s68, s70, s66"]
            sl[20] = ["s_cselect_b32 s69, s71, s67", "s_sub_u32 s59, s59, 1"]
            sl[26] = ["s_waitcnt lgkmcnt(0)", "s_nop 0"]
        sched(A, mf, sl)
    A(f"s_cbranch_scc0 {lp}")
    check_loop(A.lines[start:])
    stamp(A, st0 + 1)
    c0 = -2.0 * 1.4426950408889634 * math.sqrt(2.0 / math.pi)
    A(f"v_mov_b32 v12, {f2u(c0*0.044715):#x}\nv_mov_b32 v13, v12\nv_mov_b32 v14, {f2u(c0):#x}\nv_mov_b32 v15, v14")
    A(f"s_lshl_b32 s3, s60, 3\ns_lshl_b32 s57, s64, 2\ns_add_u32 s3, s3, s57\ns_mul_i32 s3, s3, {112*1024}\ns_add_u32 s3, s3, {WS_HF}")
    A("v_lshlrev_b32 v9, 4, v2\nv_add_u32 v7, s3, v9")
    A(f"v_lshrrev_b32 v8, 5, v2\nv_mul_u32_u24 v8, {112*1024 - 512}, v8\nv_add_u32 v8, v8, v7\ns_lshl_b32 s3, s65, 9\nv_add_u32 v8, s3, v8")
    A(f"s_lshl_b32 s{TC}, s{TC}, 4\ns_lshl_b32 s{TC+2}, s{TC+2}, 4\ns_lshl_b32 s{TC+4}, s{TC+4}, 4\ns_lshl_b32 s{TC+6}, s63, 4")
    A(f"s_lshl_b32 s66, s60, 4\ns_add_u32 s66, s66, s61\ns_lshl_b32 s66, s66, 2\ns_add_u32 s66, s66, s{sWAVE}\ns_lshl_b32 s66, s66, 7")
    A(f"s_add_u32 s67, s66, {F_S4B}\ns_add_u32 s66, s66, {F_S4A}")
    T = FA[0]; O = FW[0]
    def gelu8(srcs, o):
        pr = lambda r: f"v[{r}:{r+1}]"
        for e, a in enumerate(srcs): A(f"v_pk_mul_f32 {pr(T+2*e)}, {pr(a)}, {pr(a)}")
        for e, a in enumerate(srcs): A(f"v_pk_fma_f32 {pr(T+2*e)}, {pr(T+2*e)}, v[12:13], v[14:15]")
        for e, a in enumerate(srcs): A(f"v_pk_mul_f32 {pr(T+2*e)}, {pr(T+2*e)}, {pr(a)}")
        for e in range(8): A(f"v_exp_f32 v{T+e}, v{T+e}")
        for e in range(4): A(f"v_pk_add_f32 {pr(T+2*e)}, {pr(T+2*e)}, 1.0 op_sel_hi:[1,0]")
        for e in range(8): A(f"v_rcp_f32 v{T+e}, v{T+e}")
        for e, a in enumerate(srcs): A(f"v_pk_mul_f32 {pr(T+2*e)}, {pr(T+2*e)}, {pr(a)}")
        for e in range(4): A(f"v_cvt_pk_bf16_f32 v{o+e}, v{T+2*e}, v{T+2*e+1}")
    cnt = 0
    for pr_ in (2, 0, 1):
        for i in range(4):
            a = ACC + 4*(i*NT + 2*pr_)
            o = O + 4*(cnt % 4); cnt += 1
            gelu8([a, a+2, a+4, a+6], o)
            A(f"s_add_u32 s3, s{TC+2*pr_}, {i*112*1024}")
            A(f"buffer_store_dwordx4 v[{o}:{o+3}], v7, {WS}, s3 offen sc1")
            xstamp(A, f"ge{cnt}")
            if cnt == EARLY_AT:
                A(f"s_waitcnt vmcnt({EARLY_AT-4})")
                flag_set(A, "s66", 16, 9)
                A(f"v_mov_b32 v10, {L_CNT+12}\nv_mov_b32 v11, 1\nds_write_b32 v10, v11")
                xstamp(A, "gef")
    for i in (0, 2):
        a = ACC + 4*(i*NT + 6); b = ACC + 4*((i+1)*NT + 6)
        o = O + 4*(cnt % 4); cnt += 1
        gelu8([a, a+2, b, b+2], o)
        A(f"v_permlane32_swap_b32 v{o}, v{o+2}\nv_permlane32_swap_b32 v{o+1}, v{o+3}")
        A(f"s_add_u32 s3, s{TC+6}, {i*112*1024}")
        A(f"buffer_store_dwordx4 v[{o}:{o+3}], v8, {WS}, s3 offen sc1")
    stamp(A, st0 + 2)
EARLY_AT = 8

G2_SLOT = 32768
def g2_unit(s):
    if s < 8: return 7*(s >> 1) + (5 if s & 1 else 1), True
    if s < 24: return 7*((s-8) >> 2) + 2*((s-8) & 3), True
    return 7*(s-24) + 3, False
def g2_producer(A):
    tile_ids(A, 2)
    A(f"s_lshl_b32 s3, s60, 3\ns_lshl_b32 s57, s64, 1\ns_add_u32 s3, s3, s57\ns_mul_i32 s3, s3, {112*1024}\ns_add_u32 s3, s3, {WS_HF}")
    A(f"v_lshlrev_b32 v{PVA}, 4, v2\nv_add_u32 v{PVA}, s3, v{PVA}\nv_add_u32 v{PVA+1}, {112*1024}, v{PVA}")
    t = 212
    unit_lane_off(A, t, 2048)
    A(f"s_lshl_b32 s3, s64, 15\nv_add_u32 v{t}, s3, v{t}")
    A(f"v_add_u32 v{PVW}, s62, v{t}\nv_add_u32 v{PVW+1}, {16384-1024}, v{PVW}\nv_add_u32 v{PVW+2}, s63, v{t}\nv_add_u32 v{PVW+3}, {16384-1024}, v{PVW+2}")
    A(f"s_mul_i32 s65, s61, {28*2048}\ns_mul_i32 s66, s61, {28*131072}")
    A(f"s_lshl_b32 s67, s64, 12\ns_lshl_b32 s68, s64, 11\ns_add_u32 s68, s68, 16384")
    sw = srd(A, SA_, "w2", 3584*2048)
    def iw(s):
        u, p1 = g2_unit(s)
        A(f"s_add_u32 s69, s66, {u*131072}" if p1 else f"s_mov_b32 s69, {u*131072}")
        for un in range(2 if p1 else 1):
            A(f"s_add_u32 m0, s68, {(s & 3)*G2_SLOT + un*8192}")
            for rgi in range(2):
                A(f"buffer_load_dwordx4 v{PVW+2*un+rgi}, {sw}, s69 offen offset:{rgi*1024} lds")
        return 4 if p1 else 2
    def ia(s):
        u, p1 = g2_unit(s)
        A(f"s_add_u32 s70, s65, {u*2048}" if p1 else f"s_mov_b32 s70, {u*2048}")
        for h in range(2):
            A(f"s_add_u32 m0, s67, {(s & 3)*G2_SLOT + h*2048}")
            for ks in range(2):
                A(f"buffer_load_dwordx4 v{PVA+h}, {WS}, s70 offen offset:{ks*1024} {asc()} lds")
        return 4
    for s in range(4): iw(s)
    A(f"v_and_b32 v46, 15, v2\nv_lshlrev_b32 v46, 8, v46\nv_and_b32 v47, 31, v2\nv_lshlrev_b32 v47, 8, v47")
    A(f"s_lshl_b32 s71, s60, 13\ns_lshr_b32 s3, s64, 1\ns_lshl_b32 s3, s3, 7\ns_add_u32 s71, s71, s3\ns_lshl_b32 s3, s61, 12\ns_add_u32 s3, s3, s71\ns_add_u32 s3, s3, {F_S4A}\ns_add_u32 s71, s71, {F_S4B}")
    stamp(A, 11)
    l = A.newlabel("wef")
    A(f"v_mov_b32 v48, {L_CNT+12}")
    A(f"{l}:")
    A(f"s_sleep 2\nds_read_b32 v49, v48\ns_waitcnt lgkmcnt(0)\nv_readfirstlane_b32 s57, v49\ns_cmp_eq_u32 s57, 0\ns_cbranch_scc1 {l}")
    poll(A, 46, "s3", 48, 1)
    stamp(A, 12)
    q = []
    for s in range(4): q.append([s, ia(s)])
    def wait_for(stage):
        n = sum(c for st, c in q if st > stage)
        A(f"s_waitcnt vmcnt({n})")
    wait_for(0); A("s_barrier")
    for s in range(32):
        if s + 1 < 32: wait_for(s + 1)
        A("s_barrier")
        n = s + 4
        if n == 7:
            A(f"buffer_load_dword v48, v47, {WS}, s71 offen sc1"); q.append([6.5, 1])
        if n == 8:
            wait_for(6.5)
            d = A.newlabel("s4ok")
            A(f"v_cmp_ne_u32 vcc, s{sN}, v48\ns_nop 1\ns_cbranch_vccz {d}")
            poll(A, 47, "s71", 48)
            A(f"{d}:")
        if n < 32:
            c = iw(n) + ia(n); q.append([n, c])


def g2_consumer(A, st0):
    ACC, FA, FW, XR, GB, PR, vPL = 20, [84, 100], [116, 132], 148, 164, 172, 204
    tile_ids(A, 2)
    tr_base(A)
    vA, VT, TC = 5, 10, 44
    A(f"s_lshl_b32 s3, s64, 13\nv_lshlrev_b32 v9, 4, v2\nv_add_u32 v5, s3, v9")
    A("s_lshl_b32 s3, s65, 6")
    for e in range(2):
        A(f"v_xor_b32 v{VT+e}, s3, v7\nv_xor_b32 v{VT+e}, {e*32}, v{VT+e}\nv_add_u32 v{VT+e}, 16384, v{VT+e}")
    A(f"s_add_u32 s{TC}, s62, s3\ns_add_u32 s{TC+1}, s{TC}, 32")
    sb = srd(A, SA_, "b2", 2048)
    A("v_lshlrev_b32 v6, 3, v3\nv_lshlrev_b32 v18, 4, v3")
    for t in range(2): A(f"buffer_load_dwordx2 v[{FW[1]+2*t}:{FW[1]+2*t+1}], v6, {sb}, s{TC+t} offen")
    for t in range(2):
        A(f"s_lshl_b32 s3, s{TC+t}, 1\ns_add_u32 s3, s3, {F_MOD + 5*4096}")
        A(f"buffer_load_dwordx4 v[{GB+4*t}:{GB+4*t+3}], v18, {WS}, s3 offen sc1")
    A(f"s_xor_b32 s3, s2, 1\ns_lshl_b32 s3, s3, 2\ns_add_u32 s3, s3, s{sWAVE}\ns_lshl_b32 s46, s3, 13\ns_add_u32 s46, s46, {WS_PART}\ns_lshl_b32 s47, s3, 7\ns_add_u32 s47, s47, {F_S5}")
    A(f"s_lshl_b32 s3, s2, 2\ns_add_u32 s3, s3, s{sWAVE}\ns_lshl_b32 s48, s3, 13\ns_add_u32 s48, s48, {WS_PART}\ns_lshl_b32 s49, s3, 7\ns_add_u32 s49, s49, {F_S5}")
    A("v_mov_b32 v19, 0")
    A("s_waitcnt vmcnt(0)")
    flag_set(A, "s67", 12, 9)
    xstamp(A, "s4b")
    for t in range(2):
        a = ACC + 4*t
        lo(A, a, FW[1]+2*t); hi(A, a+1, FW[1]+2*t); lo(A, a+2, FW[1]+2*t+1); hi(A, a+3, FW[1]+2*t+1)
    for i in range(4):
        for t in range(4):
            if i == 0 and t < 2: continue
            for r in range(4): A(f"v_mov_b32 v{ACC+4*(i*4+t)+r}, " + (f"v{ACC+4*t+r}" if t < 2 else "0"))
    for e in range(8): A(f"v_cvt_pk_bf16_f32 v{GB+e}, v{GB+e}, v{GB+e}\nv_lshlrev_b32 v{GB+e}, 16, v{GB+e}")
    def reads(ks, buf, nt):
        aa = [f"ds_read_b128 v[{FA[buf]+4*i}:{FA[buf]+4*i+3}], v{vA} offset:{(i*2+ks)*1024}" for i in range(4)]
        ww = []
        for t in range(nt):
            o0 = ks*4096 + (t >> 1)*8192
            ww.append(f"ds_read_b64_tr_b16 v[{FW[buf]+4*t}:{FW[buf]+4*t+1}], v{VT+(t&1)} offset:{o0}")
            ww.append(f"ds_read_b64_tr_b16 v[{FW[buf]+4*t+2}:{FW[buf]+4*t+3}], v{VT+(t&1)} offset:{o0+2048}")
        return aa + ww
    def stage_body(nt):
        for ks in range(2):
            rd = reads(ks ^ 1, ks ^ 1, nt)
            mf = [f"v_mfma_f32_16x16x32_bf16 v[{ACC+4*(i*4+t)}:{ACC+4*(i*4+t)+3}], v[{FW[ks]+4*t}:{FW[ks]+4*t+3}], v[{FA[ks]+4*i}:{FA[ks]+4*i+3}], v[{ACC+4*(i*4+t)}:{ACC+4*(i*4+t)+3}]"
                  for i in range(4) for t in range(nt)]
            ad = [f"v_add_u32 v{vA}, s68, v{vA}", f"v_add_u32 v{VT}, s68, v{VT}", f"v_add_u32 v{VT+1}, s68, v{VT+1}", "s_nop 0"]
            sa = ["s_add_u32 s58, s58, 1", "s_and_b32 s58, s58, 3", "s_cselect_b32 s68, s66, s70", "s_sub_u32 s59, s59, 1"]
            ex = ad if ks == 0 else sa
            if nt == 4:
                sl = {0: rd[0:2], 1: rd[2:4], 2: rd[4:6], 3: rd[6:8], 4: rd[8:9], 5: rd[9:10], 6: rd[10:11], 7: rd[11:12], 8: ex[0:2], 9: ex[2:4]}
                sl[14] = ["s_waitcnt lgkmcnt(0)", "s_barrier" if ks == 0 else "s_nop 0"]
            else:
                sl = {0: rd[0:3], 1: rd[3:6], 2: rd[6:8], 3: ex[0:2], 4: ex[2:4]}
                sl[7] = ["s_waitcnt lgkmcnt(0)", "s_barrier"] if ks == 0 else ["s_waitcnt lgkmcnt(0)"]
            sched(A, mf, sl)
    A(f"s_mov_b32 s59, 23\ns_mov_b32 s58, 1\ns_mov_b32 s66, {G2_SLOT}\ns_mov_b32 s68, s66\ns_mov_b32 s70, {-3*G2_SLOT & 0xffffffff}")
    A(f"s_lshl_b32 s3, s60, 18\ns_lshl_b32 s57, s64, 17\ns_add_u32 s3, s3, s57")
    A("v_lshlrev_b32 v17, 11, v4\nv_add_u32 v17, v17, v6\nv_add_u32 v17, s3, v17")
    A("v_lshrrev_b32 v16, 1, v4\nv_lshlrev_b32 v16, 12, v16\nv_add_u32 v16, v16, v18\nv_and_b32 v15, 1, v4\nv_lshl_add_u32 v16, v15, 3, v16\nv_add_u32 v16, s3, v16")
    A("s_barrier")
    stamp(A, st0)
    for l in reads(0, 0, 4): A(l)
    A("s_waitcnt lgkmcnt(0)")
    align8(A)
    start = len(A.lines)
    lp = A.newlabel("c2a")
    A(f"{lp}:")
    stage_body(4)
    A(f"s_cbranch_scc0 {lp}")
    check_loop(A.lines[start:])
    xstamp(A, "g2p1")
    for i in range(4):
        for t in range(2):
            a = ACC + 4*(i*4+2+t); j = i*2 + t
            A(f"buffer_store_dwordx4 v[{a}:{a+3}], v9, {WS}, s46 offen offset:{(j & 3)*1024} sc1")
            if j == 3: A("s_add_u32 s46, s46, 4096")
    xstamp(A, "g2st")
    A("s_mov_b32 s59, 7")
    start = len(A.lines)
    lp = A.newlabel("c2b"); l1 = A.newlabel("c2x"); l2 = A.newlabel("c2y"); l3 = A.newlabel("c2z")
    A(f"{lp}:")
    A(f"s_cmp_lg_u32 s59, 5\ns_cbranch_scc1 {l1}")
    A("s_waitcnt vmcnt(0)")
    flag_set(A, "s47", 12, 9)
    A(f"{l1}:")
    A(f"s_cmp_lg_u32 s59, 3\ns_cbranch_scc1 {l2}")
    A(f"buffer_load_dword v{vPL}, v19, {WS}, s49 offen sc1")
    for i in range(4):
        for t in range(2):
            A(f"s_lshl_b32 s57, s{TC+t}, 1\ns_add_u32 s57, s57, {WS_X1 + i*32768}")
            A(f"buffer_load_dwordx2 v[{XR+4*i+2*t}:{XR+4*i+2*t+1}], v16, {WS}, s57 offen sc1")
    A(f"{l2}:")
    A(f"s_cmp_lg_u32 s59, 1\ns_cbranch_scc1 {l3}")
    d = A.newlabel("s5ok")
    A(f"s_waitcnt vmcnt(0)\nv_cmp_ne_u32 vcc, s{sN}, v{vPL}\ns_nop 1\ns_cbranch_vccz {d}")
    poll(A, 19, "s49", vPL)
    A(f"{d}:")
    for j in range(8):
        A(f"buffer_load_dwordx4 v[{PR+4*j}:{PR+4*j+3}], v9, {WS}, s48 offen offset:{(j & 3)*1024} sc1")
        if j == 3: A("s_add_u32 s48, s48, 4096")
    A(f"{l3}:")
    stage_body(2)
    A(f"s_cbranch_scc0 {lp}")
    check_loop(A.lines[start:])
    stamp(A, st0 + 1)
    so = srd(A, SA_, "out", 4*MB)
    T = FA[0]
    A("s_waitcnt vmcnt(0)")
    for i in range(4):
        for t in range(2):
            a = ACC + 4*(i*4+t); x = XR + 4*i + 2*t; p = PR + 4*(i*2+t)
            lo(A, T, x); hi(A, T+1, x); lo(A, T+2, x+1); hi(A, T+3, x+1)
            for r in range(4): A(f"v_add_f32 v{a+r}, v{a+r}, v{p+r}")
            for r in range(4): A(f"v_fmac_f32 v{T+r}, v{a+r}, v{GB+4*t+r}")
            A(f"v_cvt_pk_bf16_f32 v{x}, v{T}, v{T+1}\nv_cvt_pk_bf16_f32 v{x+1}, v{T+2}, v{T+3}")
            A(f"s_add_u32 s3, s{TC+t}, {i*32768}")
            A(f"buffer_store_dwordx2 v[{x}:{x+1}], v17, {so}, s3 offen " + ["", "sc1", "nt", "sc0 sc1"][opt("outpol")])

def kernel(A):
    kernel_begin(A, NAME)
    A("s_load_dwordx2 s[40:41], s[0:1], 8\ns_load_dwordx2 s[44:45], s[0:1], 16")
    A("s_load_dwordx16 s[4:19], s[0:1], 0\ns_load_dwordx16 s[20:35], s[0:1], 64")
    A("s_cmp_ge_u32 s2, 256\ns_cbranch_scc1 L_exit")
    stamp(A, 0)
    A("v_lshrrev_b32 v1, 6, v0\nv_and_b32 v2, 63, v0")
    if opt("map0"): A(f"s_and_b32 s{sTT}, s2, 15\ns_lshr_b32 s{sCT}, s2, 4")
    else: A(f"s_and_b32 s{sCT}, s2, 15\ns_lshr_b32 s{sTT}, s2, 4")
    A(f"v_readfirstlane_b32 s{sWAVE}, v1")
    A("v_lshrrev_b32 v3, 3, v2\nv_bfe_u32 v4, v2, 4, 1\nv_and_b32 v5, 7, v2\nv_xor_b32 v4, v4, v5\nv_lshlrev_b32 v4, 4, v4\nv_lshl_add_u32 v4, v3, 11, v4")
    A(f"s_lshl_b32 s3, s{sTT}, 18\ns_lshl_b32 s57, s{sCT}, 7\ns_add_u32 s3, s3, s57")
    A(f"s_lshl_b32 s57, s{sWAVE}, 15\ns_add_u32 s57, s57, s3")
    A(f"s_and_b32 s58, s{sWAVE}, 1\ns_lshl_b32 s58, s58, 6")
    A("v_xor_b32 v5, s58, v4\nv_add_u32 v5, s57, v5")
    A("v_xor_b32 v6, 32, v5")
    A("s_movk_i32 s58, 15360\nv_add_u32 v16, s58, v6")
    A("v_xor_b32 v17, 64, v5\nv_add_u32 v17, s58, v17")
    A(f"s_mov_b32 s42, {4*MB}\ns_mov_b32 s43, 0x20000\ns_mov_b32 s46, s42\ns_mov_b32 s47, s43")
    sk, sv = "s[40:43]", "s[44:47]"
    A(f"s_lshl_b32 s59, s{sWAVE}, 11\ns_add_u32 m0, s59, {L_KT+1024}")
    A("s_waitcnt lgkmcnt(0)")
    A(f"buffer_load_dwordx4 v6, {sk}, 0 offen nt lds\nbuffer_load_dwordx4 v17, {sk}, 0 offen offset:1024 nt lds")
    A(f"s_add_u32 m0, s59, {L_VT}")
    A(f"buffer_load_dwordx4 v5, {sv}, 0 offen nt lds\nbuffer_load_dwordx4 v16, {sv}, 0 offen offset:1024 nt lds")
    A(f"s_cmp_lg_u32 s{sWAVE}, 0\ns_cbranch_scc1 L_nohalo")
    A(f"s_sub_u32 s3, s3, 16384\ns_cmp_eq_u32 s{sTT}, 0\ns_cselect_b32 s3, 0x80000000, s3\nv_add_u32 v7, s3, v4")
    A(f"s_mov_b32 m0, {L_KT}")
    A(f"buffer_load_dwordx4 v7, {sk}, 0 offen nt lds")
    A("L_nohalo:")
    if opt("dbgst"): A("s_mov_b32 s6, s32\ns_mov_b32 s7, s33")
    A("v_and_b32 v8, 15, v2\nv_lshrrev_b32 v9, 4, v2\nv_lshlrev_b32 v11, 4, v2")
    vL16 = 11
    A("v_and_b32 v10, 1, v9\nv_and_b32 v14, 3, v2\nv_lshl_add_u32 v10, v10, 2, v14\nv_lshlrev_b32 v10, 3, v10")
    ss = srd(A, SC_, "shift", 8192)
    A(f"s_lshl_b32 s3, s{sWAVE}, 6\ns_lshl_b32 s57, s{sCT}, 9\ns_add_u32 s3, s3, s57")
    A(f"buffer_load_dwordx2 v[12:13], v10, {ss}, s3 offen")
    tile_ids(A, 1)
    A(f"s_lshl_b32 s{sTB}, s60, 4\ns_add_u32 s{sTB}, s{sTB}, s61\ns_lshl_b32 s{sCG}, s{sCT}, 4\ns_add_u32 s{sCG}, s{sCG}, s{sTT}")
    if opt("tb0"): A(f"s_mov_b32 s{sTB}, s2")
    A(f"s_lshl_b32 s59, s{sCT}, 7")
    A(f"s_cmp_lt_u32 s{sWAVE}, 4\ns_movk_i32 s58, {F_GVC}\ns_cselect_b32 s58, {F_S2C}, s58\ns_add_u32 s59, s59, s58")
    A(f"s_lshl_b32 s60, s{sCG}, 2\ns_add_u32 s60, s60, s{sWAVE}\ns_and_b32 s60, s60, 1023")
    A("s_lshl_b32 s63, s60, 1\ns_and_b32 s63, s63, 0x7fc")
    A(f"s_load_dword s{sN}, s[34:35], {F_E}\ns_load_dword s{sC0}, s[34:35], s59\ns_load_dword s33, s[{P['ssmD']}:{P['ssmD']+1}], s63")
    A(f"v_lshlrev_b32 v14, 2, v2\nv_add_u32 v14, {L_ST}, v14\nv_mov_b32 v15, 0\nds_write_b32 v14, v15")
    A(f"s_mov_b32 s36, s34\ns_mov_b32 s37, s35\ns_mov_b32 s38, {64*MB}\ns_mov_b32 s39, 0x20000")
    A(f"s_mul_i32 s61, s{sWAVE}, {WSZ}\ns_lshl_b32 s62, s60, 12")
    sp = srd(A, SA_, "ssmk", 4*MB); sc = srd(A, SB_, "c", 2048)
    A("s_getpc_b64 s[64:65]")
    A("L_pc:")
    A(f"s_lshr_b32 s3, s2, 3\ns_and_b32 s3, s3, 31\ns_lshl_b32 s3, s3, 10\nv_and_b32 v14, 7, v2\nv_lshlrev_b32 v14, 7, v14\nv_add_u32 v14, s3, v14\nv_min_u32 v14, L_end-L_pc-4, v14")
    A(f"v_lshlrev_b32 v15, 2, v2\ns_and_b32 s3, s{sTT}, 7\ns_lshl_b32 s3, s3, 8")
    xstamp(A, "iss")
    A("s_barrier")
    A(f"s_cmp_ge_u32 s{sWAVE}, 4\ns_cbranch_scc1 L_b0")
    A("s_add_u32 m0, s61, 32")
    for i in range(4): A(f"buffer_load_dwordx4 v{vL16}, {sp}, s62 offen offset:{i*1024} nt lds")
    A("s_branch L_c0")
    A("L_b0:")
    A(f"buffer_load_dword v220, v15, {sc}, s3 offen")
    A("global_load_dword v221, v14, s[64:65]")
    A("global_load_dword v221, v14, s[64:65]\nglobal_load_dword v221, v14, s[64:65]")
    A("L_c0:")
    A.flush_hist()

    A("v_bfe_u32 v16, v2, 2, 2\nv_and_b32 v17, 3, v2\nv_lshrrev_b32 v18, 1, v16")
    A(f"v_xor_b32 v18, s{sWAVE}, v18")
    A("v_lshrrev_b32 v19, 1, v9\nv_lshl_add_u32 v20, v19, 3, v17\nv_lshlrev_b32 v20, 10, v20\nv_lshl_add_u32 v20, v16, 7, v20")
    A(f"v_and_b32 v21, 1, v9\nv_lshl_add_u32 v20, v21, 3, v20\nv_add_u32 v20, {L_KT}, v20")
    A("v_lshlrev_b32 v22, 1, v17\nv_xor_b32 v22, v22, v18\nv_lshl_add_u32 v22, v22, 4, v20")
    A("v_add_u32 v23, 1, v17\nv_and_b32 v23, 3, v23\nv_lshlrev_b32 v23, 1, v23\nv_xor_b32 v23, v23, v18\nv_lshl_add_u32 v23, v23, 4, v20")
    A("v_lshl_add_u32 v24, v19, 3, v16\nv_sub_u32 v24, 11, v24\nv_lshlrev_b32 v24, 6, v24\nv_lshl_add_u32 v24, v17, 4, v24\nv_lshl_add_u32 v24, v21, 14, v24")
    A(f"s_lshl_b32 s3, s{sCT}, 18\ns_lshl_b32 s57, s{sWAVE}, 15\ns_add_u32 s3, s3, s57\ns_lshl_b32 s57, s{sTT}, 10\ns_sub_u32 s3, s3, s57\ns_add_u32 s58, s3, {WS_KVR + 240*64}")
    WF = 26
    A("s_waitcnt vmcnt(4)")
    xstamp(A, "kv")
    lo(A, WF, 12); hi(A, WF+1, 12); lo(A, WF+2, 13); hi(A, WF+3, 13)
    A("s_waitcnt lgkmcnt(0)")
    A(f"s_mul_i32 s{sN}, s{sN}, 0x9E3779B1\ns_add_u32 s{sN}, s{sN}, 0x7F4A7C15")
    A(f"s_lshl_b32 s59, s{sCG}, 3\ns_add_u32 s59, s59, s{sWAVE}\ns_lshl_b32 s59, s59, 7\ns_add_u32 s59, s59, {F_S1}")
    stamp(A, 1)
    A("s_barrier")
    KP, VP, KF, T, O = 32, 44, 52, 64, 72
    for e in range(2):
        A(f"ds_read_b64_tr_b16 v[{KP+6*e}:{KP+6*e+1}], v22 offset:{e*4096 + 512}")
        A(f"ds_read_b64_tr_b16 v[{KP+6*e+2}:{KP+6*e+3}], v23 offset:{e*4096 + 1024}")
        A(f"ds_read_b64_tr_b16 v[{KP+6*e+4}:{KP+6*e+5}], v23 offset:{e*4096 + 1536}")
        A(f"ds_read_b64_tr_b16 v[{VP+4*e}:{VP+4*e+1}], v22 offset:{17408 + e*4096}")
        A(f"ds_read_b64_tr_b16 v[{VP+4*e+2}:{VP+4*e+3}], v22 offset:{17408 + e*4096 + 512}")
    for e in range(2):
        A(f"s_waitcnt lgkmcnt({7 - 5*e})")
        for j in range(11):
            (hi if j % 2 == 0 else lo)(A, KF+j, KP + 6*e + (j+1)//2)
        for i in range(8): A(f"v_mul_f32 v{T+i}, v{WF+3}, v{KF+i}")
        for j in (2, 1, 0):
            for i in range(8): A(f"v_fmac_f32 v{T+i}, v{WF+j}, v{KF+i+3-j}")
        A(f"s_waitcnt lgkmcnt({5 - 5*e})")
        for i in range(8): (lo if i % 2 == 0 else hi)(A, KF+i, VP + 4*e + i//2)
        for i in range(8): A(f"v_mul_f32 v{T+i}, v{T+i}, v{KF+i}")
        for x in range(4): A(f"v_cvt_pk_bf16_f32 v{O+4*e+x}, v{T+7-2*x}, v{T+6-2*x}")
        A(f"buffer_store_dwordx4 v[{O+4*e}:{O+4*e+3}], v24, {WS}, s58 offen offset:{256*(1-e)} sc1")
    xstamp(A, "kst")
    A(f"s_and_b32 s3, s{sTT}, 7\ns_or_b32 s3, s3, s{sWAVE}\ns_cmp_lg_u32 s3, 0\ns_cbranch_scc1 L_nozero")
    A(f"s_lshr_b32 s3, s{sCG}, 3\ns_mul_i32 s3, s3, 768\ns_add_u32 s3, s3, {F_MOD}")
    A("v_mov_b32 v48, 0\nv_mov_b32 v49, 0\nv_mov_b32 v50, 0\nv_mov_b32 v51, 0")
    A("s_mov_b32 exec_lo, -1\ns_mov_b32 exec_hi, 0xffff")
    A(f"buffer_store_dwordx4 v[48:51], v{vL16}, {WS}, s3 offen sc1")
    A("s_mov_b64 exec, -1")
    A("L_nozero:")
    A.flush_hist()
    A("s_waitcnt vmcnt(0)")
    flag_set(A, "s59", 52, vL16)
    stamp(A, 2)
    A(f"s_cmp_ge_u32 s{sWAVE}, 4\ns_cbranch_scc1 L_b1")
    X, Y = 192, 208
    A(f"v_add_u32 v41, s61, v{vL16}")
    for i in range(4):
        A(f"ds_read_b128 v[{X+4*i}:{X+4*i+3}], v41 offset:{32+i*1024}")
        A(f"ds_read_b64 v[{Y+2*i}:{Y+2*i+1}], v41 offset:{48+i*1024}")
    A("v_add_u32 v42, v9, v8\nv_lshlrev_b32 v40, 1, v42\nv_add_u32 v40, s61, v40\nds_read_u16 v216, v40")
    A(f"v_cmp_lt_u32 vcc, 15, v42\nv_mul_u32_u24 v40, {PS}, v9\nv_lshl_add_u32 v40, v8, 1, v40\nv_add_u32 v40, s61, v40")
    A(f"v_mov_b32 v14, 0\nv_mov_b32 v15, 0\nv_lshlrev_b32 v13, 3, v0\nv_add_u32 v13, {L_Q+16384}, v13")
    for i in range(4):
        a = [X+4*i, X+4*i+1, X+4*i+2, X+4*i+3, Y+2*i, Y+2*i+1]
        c1 = 112 + 12*i; c2 = c1 + 4; c3 = c1 + 8
        if i == 0: A("s_waitcnt lgkmcnt(0)")
        for j in range(4): A(f"v_alignbit_b32 v{c1+j}, v{a[j+1]}, v{a[j]}, 16")
        A(f"ds_write_b128 v41, v[{c1}:{c1+3}] offset:{PS+32+i*1024}")
        for j in range(4): A(f"v_mov_b32 v{c2+j}, v{a[j+1]}")
        A(f"ds_write_b128 v41, v[{c2}:{c2+3}] offset:{2*PS+32+i*1024}")
        for j in range(4): A(f"v_alignbit_b32 v{c3+j}, v{a[j+2]}, v{a[j+1]}, 16")
        A(f"ds_write_b128 v41, v[{c3}:{c3+3}] offset:{3*PS+32+i*1024}")
    A("v_cndmask_b32 v216, 0, v216, vcc\nds_write_b16 v40, v216")
    A("ds_write_b64 v13, v[14:15]")
    A("s_and_b32 s3, s60, 1\ns_lshl_b32 s3, s3, 4\ns_lshr_b32 s33, s33, s3\ns_and_b32 s33, s33, 0xffff")
    A("v_lshl_add_u32 v48, v9, 3, v8\nv_sub_u32 v48, 15, v48\nv_and_b32 v49, 1, v48\nv_lshlrev_b32 v49, 4, v49\nv_lshlrev_b32 v49, v49, s33\nv_ashrrev_i32 v48, 1, v48")
    for e in range(4): A(f"v_cmp_eq_u32 vcc, {e}, v48\nv_cndmask_b32 v{64+e}, 0, v49, vcc")
    A(f"v_add_u32 v42, 1, v8\nv_and_b32 v43, 3, v42\nv_mul_u32_u24 v43, {PS}, v43\nv_lshrrev_b32 v42, 2, v42")
    A("v_lshl_add_u32 v43, v42, 3, v43\nv_lshl_add_u32 v43, v9, 4, v43\nv_add_u32 v43, s61, v43")
    vP, vQ, vE, vS = 43, [44, 45], 47, 46
    A("v_lshlrev_b32 v48, 1, v8\nv_sub_u32 v48, 30, v48\nv_add_u32 v48, v48, v9\nv_lshrrev_b32 v49, 2, v48")
    for rho in range(2):
        A(f"v_add_u32 v50, {rho}, v49\nv_and_b32 v50, 3, v50\nv_xor_b32 v50, s{sWAVE}, v50\nv_lshlrev_b32 v50, 4, v50\nv_lshl_add_u32 v50, v48, 6, v50\nv_add_u32 v{vQ[rho]}, {L_Q}, v50")
    A(f"s_lshr_b32 s3, s{sWAVE}, 1\nv_lshl_add_u32 v46, v9, 1, s3\nv_and_b32 v48, 7, v8\nv_xor_b32 v46, v46, v48\nv_lshlrev_b32 v46, 4, v46")
    A(f"v_lshl_add_u32 v46, v8, 7, v46\ns_and_b32 s3, s{sWAVE}, 1\ns_lshl_b32 s3, s3, 3\ns_add_u32 s3, s3, {L_YS}\nv_add_u32 v46, s3, v46")
    ACC = 80; FA = [112, 176]; FB = [144, 208]; KE = 64
    def reads(r, buf):
        La, Lb = [], []
        for i in range(8):
            Lb.append(f"ds_read_b128 v[{FB[buf]+4*i}:{FB[buf]+4*i+3}], v{vQ[r & 1]} offset:{256*r + 2048*(7-i)}")
            La.append(f"ds_read_b64 v[{FA[buf]+4*i}:{FA[buf]+4*i+1}], v{vP} offset:{512*i + 64*r}")
            La.append(f"ds_read_b64 v[{FA[buf]+4*i+2}:{FA[buf]+4*i+3}], v{vP} offset:{512*i + 64*r + 8}")
        return La, Lb
    La, Lb = reads(0, 0)
    A("s_waitcnt lgkmcnt(0)")
    for l in La: A(l)
    q_addr(A, 48)
    A("s_mov_b32 s59, 3")
    stamp(A, 3)
    A("s_waitcnt lgkmcnt(0)\ns_barrier")
    for l in Lb: A(l)
    q_issue(A, 48)
    stamp(A, 4)
    for q in range(8):
        A(f"s_waitcnt lgkmcnt({7-q if not STAMPS else 0})")
        A(f"v_mfma_f32_16x16x32_bf16 v[{ACC+4*q}:{ACC+4*q+3}], v[64:67], v[{FB[0]+4*q}:{FB[0]+4*q+3}], 0")
    align8(A)
    start = len(A.lines)
    A("L_conv:")
    for r in range(2):
        if r == 0:
            La, Lb = reads(1, 1)
            tail = [[f"v_xor_b32 v{vQ[0]}, 32, v{vQ[0]}", f"v_xor_b32 v{vQ[1]}, 32, v{vQ[1]}"],
                    [f"v_add_u32 v{vQ[0]}, 512, v{vQ[0]}"], [f"v_add_u32 v{vQ[1]}, 512, v{vQ[1]}"], [f"v_add_u32 v{vP}, 128, v{vP}"]]
        else:
            La, Lb = reads(0, 0)
            tail = [["s_sub_u32 s59, s59, 1", "s_nop 0"]]
        nxt = [[x] for x in Lb + La] + tail
        mf = [f"v_mfma_f32_16x16x32_bf16 v[{ACC+4*(i+j)}:{ACC+4*(i+j)+3}], v[{FA[r]+4*i}:{FA[r]+4*i+3}], v[{FB[r]+4*j}:{FB[r]+4*j+3}], v[{ACC+4*(i+j)}:{ACC+4*(i+j)+3}]"
              for i in range(8) for j in range(8 - i)]
        sl = {n: x for n, x in enumerate(nxt)}
        sl[34] = ["s_waitcnt lgkmcnt(0)", "s_nop 0"]
        sched(A, mf, sl)
    A("s_cbranch_scc0 L_conv")
    check_loop(A.lines[start:])
    stamp(A, 5)
    T = 48
    for q in range(8):
        e = KE + 2*q
        A(f"v_cvt_pk_bf16_f32 v{e}, v{ACC+4*q}, v{ACC+4*q+1}\nv_cvt_pk_bf16_f32 v{e+1}, v{ACC+4*q+2}, v{ACC+4*q+3}")
        A(f"ds_write_b64 v{vS}, v[{e}:{e+1}] offset:{q*2048}")
    A(f"v_mov_b32 v52, {L_CNT}\nv_mov_b32 v53, 1\ns_waitcnt lgkmcnt(0)\ns_mov_b64 exec, 1\nds_add_u32 v52, v53\ns_mov_b64 exec, -1")
    A(f"v_lshrrev_b32 v48, 3, v2\nv_and_b32 v49, 7, v2\nv_xor_b32 v50, v48, v49\nv_lshlrev_b32 v50, 4, v50\nv_lshl_add_u32 v50, v48, 7, v50")
    A(f"s_lshl_b32 s3, s{sWAVE}, 12\ns_add_u32 s3, s3, {L_YS}\nv_add_u32 v50, s3, v50")
    A("v_lshrrev_b32 v51, 2, v49\nv_lshl_add_u32 v51, v48, 1, v51\nv_lshlrev_b32 v51, 14, v51\nv_and_b32 v49, 3, v49\nv_lshl_add_u32 v51, v49, 4, v51")
    A(f"s_lshl_b32 s3, s{sWAVE}, 20\ns_lshl_b32 s57, s{sCG}, 6\ns_add_u32 s3, s3, s57\ns_add_u32 s3, s3, {WS_YB}")
    A("L_rv:")
    A("ds_read_b32 v53, v52\ns_waitcnt lgkmcnt(0)\nv_readfirstlane_b32 s57, v53\ns_cmp_lt_u32 s57, 4\ns_cbranch_scc1 L_rv")
    for i in range(4): A(f"ds_read_b128 v[{64+4*i}:{67+4*i}], v50 offset:{i*1024}")
    for i in range(4):
        A(f"s_waitcnt lgkmcnt({3-i})")
        A(f"buffer_store_dwordx4 v[{64+4*i}:{67+4*i}], v51, {WS}, s3 offen sc1")
        if i < 3: A(f"s_add_u32 s3, s3, {8*2*16384}")
    xstamp(A, "ys")
    A("s_waitcnt vmcnt(4)")
    ln0_part1(A)
    A("s_waitcnt vmcnt(0)")
    xstamp(A, "yd")
    arrive(A, F_S2C, F_S2R, L_CNT+4, 52, vL16)
    stamp(A, 6)
    A(f"s_cmp_lg_u32 s{sWAVE}, 0\ns_cbranch_scc1 L_ln")
    A(f"v_lshlrev_b32 v47, 7, v8\ns_movk_i32 s3, {F_S2R}")
    poll(A, 47, "s3", 48)
    xstamp(A, "s2p")
    A("s_branch L_ln")
    A.flush_hist()
    A("L_b1:")
    A(f"s_cmp_lg_u32 s{sWAVE}, 7\ns_cbranch_scc1 L_b1g")
    A(f"s_lshr_b32 s3, s{sTT}, 1\ns_lshl_b32 s3, s3, 7\nv_and_b32 v47, 1, v9\nv_subrev_u32 v47, 1, v47\nv_and_b32 v47, s3, v47\nv_lshl_add_u32 v47, v8, 10, v47")
    A("v_and_b32 v46, 3, v2\nv_xor_b32 v46, v46, v9\nv_lshlrev_b32 v46, 4, v46\nv_lshrrev_b32 v45, 2, v2\nv_lshl_add_u32 v46, v45, 6, v46")
    A(f"s_lshl_b32 s3, s{sCT}, 14\ns_add_u32 s3, s3, {F_S1}\ns_lshl_b32 s58, s{sCG}, 14\ns_add_u32 s58, s58, {WS_KVR}")
    poll(A, 47, "s3", 48)
    xstamp(A, "s1p")
    for w in range(4):
        A(f"s_mov_b32 m0, {L_Q + w*4096}")
        for i in range(4): A(f"buffer_load_dwordx4 v46, {WS}, s58 offen offset:{i*1024} sc1 lds")
        if w < 3: A("s_add_u32 s58, s58, 4096")
    tile_ids(A, 1)
    g1_prod_setup(A)
    q_addr(A, 48)
    A("s_lshr_b32 s58, s2, 3\ns_lshl_b32 s58, s58, 1\ns_and_b32 s57, s2, 1\ns_add_u32 s58, s58, s57\ns_mul_i32 s58, s58, 7168")
    A(f"s_lshr_b32 s57, s61, 2\ns_mul_i32 s57, s57, 1792\ns_add_u32 s58, s58, s57\ns_add_u32 s{sPF}, s{P['w1']}, s58\ns_addc_u32 s{sPF+1}, s{P['w1']+1}, 0")
    A("s_waitcnt vmcnt(0)\ns_barrier")
    A("s_sleep 8")
    q_issue(A, 48)
    if opt("pf0", 4):
        A(f"s_mov_b32 s59, {opt('pf0', 4)}")
        A("L_pf0:")
        sprefetch(A, 28, 64*7168)
        A("s_sub_u32 s59, s59, 1\ns_cmp_lg_u32 s59, 0\ns_cbranch_scc1 L_pf0")
    xstamp(A, "bp")
    A("s_waitcnt vmcnt(0)")
    ln0_part1(A)
    A("s_branch L_b1m")
    A.flush_hist()
    A("L_b1g:")
    tile_ids(A, 1)
    g1_prod_setup(A)
    A(f"s_mov_b32 s3, {f2u(-1.4426950408889634):#x}")
    lo(A, 16, 220); hi(A, 17, 220)
    for i in range(2): A(f"v_mul_f32 v{18+i}, s3, v{16+i}")
    for i in range(2): A(f"v_exp_f32 v{18+i}, v{18+i}")
    for i in range(2): A(f"v_add_f32 v{18+i}, 1.0, v{18+i}")
    for i in range(2): A(f"v_rcp_f32 v{18+i}, v{18+i}")
    for i in range(2): A(f"v_mul_f32 v{18+i}, v{18+i}, v{16+i}")
    A("v_cvt_pk_bf16_f32 v18, v18, v19")
    A(f"s_lshl_b32 s58, s64, 9\ns_add_u32 s58, s58, {L_GS}\nv_lshlrev_b32 v20, 2, v2\nv_add_u32 v21, s58, v20\nds_write_b32 v21, v18")
    A("v_lshlrev_b32 v22, 3, v9\nv_add_u32 v22, s58, v22")
    SF, GA, GW = 64, 80, 96
    for kb in range(4):
        A(f"ds_read_b64 v[{SF+4*kb}:{SF+4*kb+1}], v22 offset:{kb*64}\nds_read_b64 v[{SF+4*kb+2}:{SF+4*kb+3}], v22 offset:{kb*64+32}")
    unit_lane_off(A, 24, 12288)
    for k in range(1, 4): A(f"v_add_u32 v{24+k}, {k*(8*12288 - 1024)}, v24")
    A(f"s_and_b32 s3, s{sTT}, 7\ns_mul_i32 s3, s3, {128*12288}\ns_lshr_b32 s57, s{sCG}, 3\ns_mul_i32 s57, s57, 384\ns_add_u32 s3, s3, s57\ns_lshl_b32 s57, s64, 7\ns_add_u32 s48, s3, s57")
    A(f"s_lshl_b32 s49, s64, 14\ns_add_u32 s49, s49, {L_GW}")
    A("v_lshrrev_b32 v28, 2, v2\nv_and_b32 v28, 7, v28\nv_lshrrev_b32 v29, 1, v28\nv_lshlrev_b32 v29, 5, v29\nv_lshl_add_u32 v29, v28, 7, v29")
    A("v_and_b32 v28, 3, v2\nv_lshl_add_u32 v29, v28, 3, v29\nv_lshrrev_b32 v28, 5, v2\nv_lshl_add_u32 v29, v28, 10, v29\nv_add_u32 v29, s49, v29")
    for cb in range(4): A(f"v_xor_b32 v{56+cb}, {cb*32}, v29")
    A("v_lshlrev_b32 v23, 4, v9\nv_add_u32 v23, s58, v23")
    sw = srd(A, SB_, "wmod", 12*MB)
    A("s_mov_b32 s58, s48\ns_mov_b32 s59, s49")
    q_addr(A, 48)
    A("s_waitcnt lgkmcnt(0)\ns_barrier")
    A("s_sleep 2")
    for kb in range(4):
        A(f"s_add_u32 m0, s59, {kb*4096}")
        for k in range(4): A(f"buffer_load_dwordx4 v{24+k}, {sw}, s58 offen offset:{k*1024} nt lds")
        if kb < 3: A(f"s_add_u32 s58, s58, {32*12288}")
    q_issue(A, 48)
    xstamp(A, "bi")
    A("s_setprio 3")
    for kb in range(4):
        A(f"s_waitcnt vmcnt({16 - 4*kb})")
        for cb in range(4):
            A(f"ds_read_b64_tr_b16 v[{GW+4*cb}:{GW+4*cb+1}], v{56+cb} offset:{kb*4096}\nds_read_b64_tr_b16 v[{GW+4*cb+2}:{GW+4*cb+3}], v{56+cb} offset:{kb*4096+2048}")
        A("s_waitcnt lgkmcnt(0)")
        for cb in range(4):
            c = "0" if kb == 0 else f"v[{GA+4*cb}:{GA+4*cb+3}]"
            A(f"v_mfma_f32_16x16x32_bf16 v[{GA+4*cb}:{GA+4*cb+3}], v[{GW+4*cb}:{GW+4*cb+3}], v[{SF+4*kb}:{SF+4*kb+3}], {c}")
    xstamp(A, "bw")
    A("s_mov_b32 exec_lo, 0x00010001\ns_mov_b32 exec_hi, 0x00010001")
    for cb in range(4): A(f"ds_write_b128 v23, v[{GA+4*cb}:{GA+4*cb+3}] offset:{256 + cb*64}")
    A("s_mov_b64 exec, -1")
    A("ds_read_b32 v30, v21 offset:256")
    A(f"s_lshr_b32 s3, s{sCG}, 3\ns_mul_i32 s3, s3, 768\ns_lshl_b32 s57, s64, 8\ns_add_u32 s3, s3, s57\ns_add_u32 s3, s3, {F_MOD}")
    A("s_waitcnt lgkmcnt(0)")
    A(f"buffer_atomic_add_f32 v30, v20, {WS}, s3 offen sc1")
    xstamp(A, "ba")
    A("s_waitcnt vmcnt(1)")
    ln0_part1(A)
    A("s_waitcnt vmcnt(0)")
    xstamp(A, "bd")
    arrive(A, F_GVC, F_GVR, L_CNT+8, 52, vL16, 3)
    A("s_setprio 0")
    A("L_b1m:")
    A.flush_hist()
    stamp(A, 3)
    A(f"v_lshlrev_b32 v47, 7, v8\ns_movk_i32 s3, {F_GVR}")
    poll(A, 47, "s3", 48, 4)
    stamp(A, 4)
    A("v_and_b32 v48, 255, v0\nv_lshlrev_b32 v48, 4, v48")
    M = 64
    for j in range(5):
        A(f"s_mov_b32 s3, {F_MOD + j*4096}")
        A(f"buffer_load_dwordx4 v[{M+4*j}:{M+4*j+3}], v48, {WS}, s3 offen sc1")
    A(f"v_add_u32 v48, {L_MOD}, v48")
    A("s_waitcnt vmcnt(0)")
    for e in range(20): A(f"v_cvt_pk_bf16_f32 v{M+e}, v{M+e}, v{M+e}")
    for e in range(20): A(f"v_lshlrev_b32 v{M+e}, 16, v{M+e}")
    for j in (1, 4):
        for e in range(4): A(f"v_add_f32 v{M+4*j+e}, 1.0, v{M+4*j+e}")
        for e in range(4): A(f"v_cvt_pk_bf16_f32 v{M+4*j+e}, v{M+4*j+e}, v{M+4*j+e}")
        for e in range(4): A(f"v_lshlrev_b32 v{M+4*j+e}, 16, v{M+4*j+e}")
    for j in (0, 1):
        for e in range(4): A(f"v_mul_f32 v{M+4*j+e}, v{M+4*j+e}, v{M+8+e}")
    for n, j in enumerate((0, 1, 3, 4)): A(f"ds_write_b128 v48, v[{M+4*j}:{M+4*j+3}] offset:{n*4096}")
    A(f"s_add_u32 s3, s64, 4\ns_lshl_b32 s3, s3, 6\nv_mov_b32 v222, s3")
    A("s_lshr_b32 s3, s2, 3\ns_lshl_b32 s3, s3, 1\ns_and_b32 s57, s2, 1\ns_add_u32 s3, s3, s57\nv_add_u32 v222, s3, v222\ns_movk_i32 s3, 7168\nv_mul_lo_u32 v222, v222, s3")
    A("v_min_u32 v223, 13, v8\nv_lshl_add_u32 v222, v223, 7, v222\ns_lshr_b32 s57, s61, 2\ns_mul_i32 s57, s57, 1792\nv_add_u32 v222, s57, v222")
    stamp(A, 6)
    A("L_ln:")
    A.flush_hist()
    A("s_nop 4")
    A(f"v_lshlrev_b32 v12, 6, v{vCG}\nv_lshl_add_u32 v12, v{vHF}, 5, v12")
    A(f"v_lshlrev_b32 v15, 4, v{vCG}\nv_lshl_add_u32 v248, v{vHF}, 13, v15\nv_add_u32 v15, {L_MOD}, v15")
    A(f"s_lshl_b32 s58, s{sTB}, 14\ns_add_u32 s3, s58, {WS_YB}\ns_add_u32 s58, s58, {WS_X1}\nv_add_u32 v248, s58, v248\nv_add_u32 v249, 4096, v248")
    A("s_waitcnt lgkmcnt(0)\ns_barrier")
    stamp(A, 7)
    YR, M, H, TMP, ST = 40, 48, 72, 88, 96
    for c in range(2): A(f"buffer_load_dwordx4 v[{YR+4*c}:{YR+4*c+3}], v12, {WS}, s3 offen offset:{16*c} sc1")
    for j in range(4): A(f"ds_read_b128 v[{M+4*j}:{M+4*j+3}], v15 offset:{j*4096}")
    red_part2(A, vSTR, 0, ST)
    normalize(A, H, LX, ST, M+4, M)
    A(f"v_lshrrev_b32 v12, 3, v{vCG}\nv_and_b32 v15, 3, v{vCG}\nv_lshl_add_u32 v12, v12, 2, v15")
    A(f"v_and_b32 v15, 7, v12\nv_lshlrev_b32 v10, 2, v{vHF}\nv_xor_b32 v15, v15, v10\nv_lshlrev_b32 v15, 4, v15\nv_lshl_add_u32 v12, v12, 7, v15")
    A(f"v_and_b32 v15, 4, v{vCG}\nv_lshl_add_u32 v12, v15, 1, v12\nv_add_u32 v12, {L_MOD}, v12")
    xstamp(A, "ln_a")
    A("s_waitcnt vmcnt(0)")
    xstamp(A, "ln_b")
    if not opt("nopf1"):
        A(f"s_cmp_lt_u32 s{sWAVE}, 4\ns_cbranch_scc1 L_nopf1")
        A(f"buffer_load_dword v223, v222, s[{SA_}:{SA_+3}], 0 offen")
        A("L_nopf1:")
    for i in range(4):
        for c in range(4): (lo if i % 2 == 0 else hi)(A, TMP+c, YR+2*c+i//2)
        for c in range(0, 4, 2): A(f"v_pk_fma_f32 v[{LX+4*i+c}:{LX+4*i+c+1}], v[{H+4*i+c}:{H+4*i+c+1}], v[{TMP+c}:{TMP+c+1}], v[{LX+4*i+c}:{LX+4*i+c+1}]")
        A(f"v_cvt_pk_bf16_f32 v{QR+2*i}, v{LX+4*i}, v{LX+4*i+1}\nv_cvt_pk_bf16_f32 v{QR+2*i+1}, v{LX+4*i+2}, v{LX+4*i+3}")
        lo(A, LX+4*i, QR+2*i); hi(A, LX+4*i+1, QR+2*i); lo(A, LX+4*i+2, QR+2*i+1); hi(A, LX+4*i+3, QR+2*i+1)
    stats4(A, LX, LR)
    red_part1(A, LR, vSTW, 64)
    xstamp(A, "ln_c")
    A("s_waitcnt lgkmcnt(0)\ns_barrier")
    xstamp(A, "ln_d")
    red_part2(A, vSTR, 64, ST)
    normalize(A, H, LX, ST, M+12, M+8)
    stats4(A, H, LR)
    red_part1(A, LR, vSTW, 128)
    xstamp(A, "ln_e")
    A("s_waitcnt lgkmcnt(0)\ns_barrier")
    xstamp(A, "ln_f")
    red_part2(A, vSTR, 128, ST)
    normalize(A, H, H, ST)
    for i in range(4):
        A(f"v_cvt_pk_bf16_f32 v{YR+2*i}, v{H+4*i}, v{H+4*i+1}\nv_cvt_pk_bf16_f32 v{YR+2*i+1}, v{H+4*i+2}, v{H+4*i+3}")
        A(f"v_xor_b32 v15, {i*16}, v12")
        A(f"ds_write_b64 v15, v[{YR+2*i}:{YR+2*i+1}]")
    xstamp(A, "ln_g")
    A(f"s_cmp_ge_u32 s{sWAVE}, 4\ns_cbranch_scc1 L_b2")
    A(f"v_lshrrev_b32 v12, 3, v0\nv_and_b32 v13, 7, v0\nv_and_b32 v14, 7, v12\nv_xor_b32 v14, v14, v13\nv_lshlrev_b32 v14, 4, v14\nv_lshl_add_u32 v14, v12, 7, v14\nv_add_u32 v14, {L_MOD}, v14")
    A(f"s_lshr_b32 s3, s{sTB}, 1\ns_lshl_b32 s3, s3, 15\ns_and_b32 s57, s{sTB}, 1\ns_lshl_b32 s57, s57, 7\ns_add_u32 s3, s3, s57\ns_add_u32 s3, s3, {WS_Y2F}")
    A("v_lshlrev_b32 v15, 8, v12\nv_lshl_add_u32 v15, v13, 4, v15")
    A("s_waitcnt lgkmcnt(0)\ns_barrier")
    xstamp(A, "ln_h")
    for i in range(4): A(f"ds_read_b128 v[{64+4*i}:{67+4*i}], v14 offset:{i*4096}")
    for i in range(4):
        A(f"s_waitcnt lgkmcnt({3-i})")
        A(f"buffer_store_dwordx4 v[{64+4*i}:{67+4*i}], v15, {WS}, s3 offen sc1")
        if i < 3: A("s_add_u32 s3, s3, 8192")
    A(f"s_lshl_b32 s3, s{sTB}, 2\ns_add_u32 s3, s3, s{sWAVE}\ns_lshl_b32 s3, s3, 7\ns_add_u32 s3, s3, {F_S3}")
    A("s_waitcnt vmcnt(0)")
    flag_set(A, "s3", 52, vL16)
    xstamp(A, "ln_i")
    A("s_barrier")
    stamp(A, 8)
    g1_consumer(A, 9)
    g2_consumer(A, 12)
    if STAMPS:
        A("s_waitcnt vmcnt(0)"); stamp(A, 14)
    stamp_flush(A)
    A("s_endpgm")
    A.flush_hist()
    A("L_b2:")
    A("s_waitcnt lgkmcnt(0)\ns_barrier")
    stamp(A, 8)
    A("s_barrier")
    for _ in range(2): g1_issue_w(A)
    A(f"v_and_b32 v47, 15, v2\nv_lshlrev_b32 v47, 7, v47\ns_lshl_b32 s3, s60, 13\ns_lshl_b32 s57, s64, 11\ns_add_u32 s3, s3, s57\ns_add_u32 s3, s3, {F_S3}")
    poll(A, 47, "s3", 48)
    stamp(A, 9)
    A(f"s_or_b32 s3, s2, s64\ns_cmp_lg_u32 s3, 0\ns_cbranch_scc1 L_noepoch")
    flag_set(A, "0", 52, vL16)
    A("s_waitcnt vmcnt(0)")
    A("L_noepoch:")
    g1_prod_main(A)
    stamp(A, 10)
    g2_producer(A)
    stamp(A, 13)
    stamp_flush(A)
    A("L_exit:\ns_endpgm")
    A("L_end:")

def build():
    A = Asm()
    kernel(A)
    head = ["; generated by dev/gen6.py (single persistent kernel; see that generator for the design notes)",
            f"; @launch grid=(256,1,1) block=(512,1,1) lds={LDS_TOTAL}",
            '.amdgcn_target "amdgcn-amd-amdhsa--gfx950"', ".text"]
    tail = ['.section .rodata,"a"', ".p2align 6", descriptor(NAME, 256, 102)]
    return "\n".join(head) + "\n" + A.text() + "\n".join(tail)

if __name__ == "__main__":
    if "-stamps" in sys.argv: STAMPS = True
    for a in sys.argv:
        if a.startswith("-o="):
            for kv in a[3:].split(","):
                k, v = kv.split(":"); OPT[k] = int(v)
        if a.startswith("-xs="):
            STAMPS = True
            for n, nm in enumerate(a[4:].split(",")): XS[nm] = n + 1
    out = sys.argv[1] if len(sys.argv) > 1 and not sys.argv[1].startswith("-") else "adaLN_cond__ssm_conv_h3__mixer_channel_mlp__prompt.s"
    open(out, "w").write(build())
```

```python
import sys, math, struct
from asmgen import *

MB = 1 << 20
NAME = "adaLN_cond__ssm_conv_h3__mixer_channel_mlp__prompt_kernel"
F_E, F_S2C, F_S2R, F_GVC, F_GVR, F_MOD = 0, 0x1000, 0x3000, 0x5000, 0x7000, 0x10000
F_S3, F_S4A, F_S4B, F_S5, F_S1 = 0x20000, 0x40000, 0x60000, 0x80000, 0xA0000
WS_KVR, WS_YB, WS_X1, WS_Y2F, WS_HF, WS_PART, WS_ST = 1*MB, 5*MB, 9*MB, 13*MB, 17*MB, 32*MB, 48*MB
P = dict(q=4, k=6, v=8, shift=10, ssmk=12, ssmD=14, w1=18, b1=20, w2=22, b2=24, c=26, wmod=28, out=30, ws=34)
WS = "s[36:39]"
SA_, SB_, SC_ = 40, 44, 48
sWAVE, sN, sCT, sTT, sC0 = 52, 53, 54, 55, 56
sCG, sTB = 0, 1
sPF, sDUMMY = 16, 32
PS = 4160; WSZ = 4 * PS; L_Q = 4 * WSZ; L_GW = 102400; L_GS = L_GW + 49152
L_KT = 86016; L_VT = L_KT + 17408; L_TB = L_VT + 16384
L_YS = 86016; L_MOD = 135168; L_ST = 155648; LDS_TOTAL = 156672
L_CNT = L_ST + 192
G1_W, G1_WSLOT, G1_A = 0, 28672, 86016
QR = 240
STAMPS = False
OPT = {}
def opt(k, d=0): return OPT.get(k, d)
def asc(): return '' if opt('nosc1') else 'sc1'

def f2u(x): return struct.unpack("<I", struct.pack("<f", x))[0]
def srd(A, d, name, nbytes):
    b = P[name]
    A(f"s_mov_b32 s{d}, s{b}\ns_mov_b32 s{d+1}, s{b+1}\ns_mov_b32 s{d+2}, {nbytes}\ns_mov_b32 s{d+3}, 0x20000")
    return f"s[{d}:{d+3}]"
def lo(A, d, s): A(f"v_lshlrev_b32 v{d}, 16, v{s}")
def hi(A, d, s): A(f"v_and_b32 v{d}, 0xffff0000, v{s}")

NSLOT = 15
XS = {}
def xstamp(A, name):
    if STAMPS and name in XS: A(f"s_memrealtime s[{72+2*XS[name]}:{73+2*XS[name]}]")
    if STAMPS and "c:" + name in XS: A(f"s_memtime s[{72+2*XS['c:'+name]}:{73+2*XS['c:'+name]}]")
def stamp(A, slot):
    xstamp(A, str(slot))
    if STAMPS and (slot == 0 or not XS):
        if slot == 0:
            for i in range(1, NSLOT): A(f"s_mov_b32 s{72+2*i}, 0")
        A(f"s_memrealtime s[{72+2*slot}:{73+2*slot}]")
def stamp_flush(A):
    if not STAMPS: return
    A("s_waitcnt lgkmcnt(0)")
    A(f"s_lshl_b32 s3, s2, 9\ns_lshl_b32 s57, s{sWAVE}, 6\ns_add_u32 s3, s3, s57\ns_add_u32 s3, s3, {WS_ST}")
    A("s_mov_b64 exec, 1\nv_mov_b32 v1, 0")
    for i in range(NSLOT):
        A(f"v_mov_b32 v2, s{72+2*i}")
        A(f"buffer_store_dword v2, v1, {WS}, s3 offen offset:{4*i}")
    A("s_waitcnt vmcnt(0)")

def flag_set(A, soff, vt, vl16):
    for i in range(4): A(f"v_mov_b32 v{vt+i}, s{sN}")
    A("s_mov_b64 exec, 0xff")
    A(f"buffer_store_dwordx4 v[{vt}:{vt+3}], v{vl16}, {WS}, {soff} offen sc1")
    A("s_mov_b64 exec, -1")
def poll(A, vaddr, soff, vt, sleep=0):
    l = A.newlabel("poll"); d = A.newlabel("pdone")
    A("s_mov_b32 s57, 0")
    A(f"{l}:")
    A(f"buffer_load_dword v{vt}, v{vaddr}, {WS}, {soff} offen sc1")
    A("s_waitcnt vmcnt(0)")
    A(f"v_cmp_ne_u32 vcc, s{sN}, v{vt}")
    A("s_nop 1")
    A(f"s_cbranch_vccz {d}")
    if sleep: A(f"s_sleep {sleep}")
    A(f"s_add_u32 s57, s57, 1\ns_cmp_lt_u32 s57, 0x40000\ns_cbranch_scc1 {l}")
    A(f"{d}:")
def arrive(A, cbase, rbase, lcnt, vt, vl16, nw=4):
    d = A.newlabel("arr")
    A(f"v_mov_b32 v{vt}, 1\nv_mov_b32 v{vt+1}, {lcnt}\ns_mov_b64 exec, 1")
    A(f"ds_add_rtn_u32 v{vt+2}, v{vt+1}, v{vt}")
    A(f"s_lshl_b32 s57, s{sCT}, 7\ns_add_u32 s58, s57, {cbase}\ns_add_u32 s59, s57, {rbase}")
    A(f"s_waitcnt lgkmcnt(0)\nv_readfirstlane_b32 s57, v{vt+2}")
    A(f"s_cmp_lg_u32 s57, {nw-1}\ns_cbranch_scc1 {d}")
    A(f"buffer_atomic_add v{vt}, v{vl16}, {WS}, s58 offen sc0 sc1")
    A("s_waitcnt vmcnt(0)")
    A(f"v_readfirstlane_b32 s57, v{vt}")
    A(f"s_sub_u32 s57, s57, s{sC0}\ns_cmp_lg_u32 s57, 15\ns_cbranch_scc1 {d}")
    A("s_mov_b64 exec, -1")
    flag_set(A, "s59", vt, vl16)
    A(f"{d}:")
    A("s_mov_b64 exec, -1")

def stats4(A, X, R):
    for i in range(4):
        A(f"v_add_f32 v{R+i}, v{X+4*i}, v{X+4*i+1}")
        A(f"v_mul_f32 v{R+4+i}, v{X+4*i}, v{X+4*i}")
    for c in (2, 3):
        for i in range(4): A(f"v_add_f32 v{R+i}, v{R+i}, v{X+4*i+c}")
    for c in (1, 2, 3):
        for i in range(4): A(f"v_fmac_f32 v{R+4+i}, v{X+4*i+c}, v{X+4*i+c}")
DPPM = "row_mask:0xf bank_mask:0xf"
def red_part1(A, R, vW, off):
    for e in range(4): A(f"v_permlane32_swap_b32 v{R+e}, v{R+e+4}")
    for e in range(4): A(f"v_add_f32 v{R+e}, v{R+e}, v{R+e+4}")
    for e in range(2): A(f"v_permlane16_swap_b32 v{R+e}, v{R+e+2}")
    for e in range(2): A(f"v_add_f32 v{R+e}, v{R+e}, v{R+e+2}")
    for m in ("row_ror:8", "quad_perm:[1,0,3,2]", "quad_perm:[2,3,0,1]"):
        for e in range(2): A(f"v_add_f32_dpp v{R+e}, v{R+e}, v{R+e} {m} {DPPM}")
    A("s_mov_b32 exec_lo, 0x00110011\ns_mov_b32 exec_hi, 0x00110011")
    A(f"ds_add_f32 v{vW}, v{R} offset:{off}\nds_add_f32 v{vW}, v{R+1} offset:{off+4}")
    A("s_mov_b64 exec, -1")
def red_part2(A, vRd, off, tmp):
    A(f"ds_read2_b32 v[{tmp}:{tmp+1}], v{vRd} offset0:{off//4} offset1:{off//4 + 4}")
    A("s_waitcnt lgkmcnt(0)")
    A(f"v_mul_f32 v{tmp}, {f2u(1/1024):#x}, v{tmp}")
    A(f"v_mul_f32 v{tmp+2}, v{tmp}, v{tmp}")
    A(f"v_mul_f32 v{tmp+1}, {f2u(1/1024):#x}, v{tmp+1}")
    A(f"v_sub_f32 v{tmp+1}, v{tmp+1}, v{tmp+2}")
    A(f"v_max_f32 v{tmp+1}, 0, v{tmp+1}")
    A(f"v_add_f32 v{tmp+1}, {f2u(1e-5):#x}, v{tmp+1}")
    A(f"v_rsq_f32 v{tmp+1}, v{tmp+1}")
def qp(i): return f"quad_perm:[{i},{i},{i},{i}] {DPPM}"
def normalize(A, D, X, st, G=None, S=None):
    for i in range(4):
        for c in range(4): A(f"v_subrev_f32_dpp v{D+4*i+c}, v{st}, v{X+4*i+c} {qp(i)}")
    for i in range(4):
        for c in range(4): A(f"v_mul_f32_dpp v{D+4*i+c}, v{st+1}, v{D+4*i+c} {qp(i)}")
    if G is not None:
        for i in range(4):
            for c in range(0, 4, 2): A(f"v_pk_fma_f32 v[{D+4*i+c}:{D+4*i+c+1}], v[{D+4*i+c}:{D+4*i+c+1}], v[{G+c}:{G+c+1}], v[{S+c}:{S+c+1}]")
LX = 16
LR = 32
vSTW, vSTR, vCG, vHF = 4, 5, 6, 7
def ln_ids(A, cg, hf):
    A(f"v_lshrrev_b32 v{cg}, 3, v0\nv_and_b32 v{hf}, 3, v0\nv_lshl_add_u32 v{cg}, v{cg}, 2, v{hf}\nv_bfe_u32 v{hf}, v0, 2, 1")
def q_addr(A, vt):
    srd(A, SC_, "q", 4*MB)
    ln_ids(A, vt, vt+1)
    A(f"v_lshlrev_b32 v{vt}, 3, v{vt}\nv_lshl_add_u32 v{vt}, v{vt+1}, 13, v{vt}")
    A(f"s_lshl_b32 s3, s{sTB}, 14\nv_add_u32 v{vt}, s3, v{vt}\nv_add_u32 v{vt+1}, 4096, v{vt}")
def q_issue(A, vt):
    for i in range(4):
        A(f"buffer_load_dwordx2 v[{QR+2*i}:{QR+2*i+1}], v{vt+i//2}, s[{SC_}:{SC_+3}], 0 offen offset:{(i%2)*2048} nt")
def ln0_part1(A):
    ln_ids(A, vCG, vHF)
    A(f"v_lshrrev_b32 v{vSTW}, 4, v2\nv_lshlrev_b32 v{vSTW}, 3, v{vSTW}\nv_lshl_add_u32 v{vSTW}, v{vHF}, 5, v{vSTW}\nv_add_u32 v{vSTW}, {L_ST}, v{vSTW}")
    A(f"v_and_b32 v{vSTR}, 3, v0\nv_lshlrev_b32 v{vSTR}, 2, v{vSTR}\nv_lshl_add_u32 v{vSTR}, v{vHF}, 5, v{vSTR}\nv_add_u32 v{vSTR}, {L_ST}, v{vSTR}")
    for i in range(4):
        lo(A, LX+4*i, QR+2*i); hi(A, LX+4*i+1, QR+2*i); lo(A, LX+4*i+2, QR+2*i+1); hi(A, LX+4*i+3, QR+2*i+1)
    stats4(A, LX, LR)
    red_part1(A, LR, vSTW, 0)
def x1_store(A):
    for j in range(2): A(f"buffer_store_dwordx4 v[{QR+4*j}:{QR+4*j+3}], v{248+j}, {WS}, 0 offen sc1")
def sprefetch(A, n, adv):
    for k in range(n): A(f"s_load_dword s{sDUMMY}, s[{sPF}:{sPF+1}], {k*64}")
    A(f"s_add_u32 s{sPF}, s{sPF}, {adv}\ns_addc_u32 s{sPF+1}, s{sPF+1}, 0")

def tile_ids(A, which):
    A("s_and_b32 s57, s2, 7\ns_lshr_b32 s58, s2, 3")
    if which == 1:
        A("s_and_b32 s60, s57, 1\ns_lshl_b32 s60, s60, 3\ns_and_b32 s3, s58, 7\ns_add_u32 s60, s60, s3")
        A("s_lshr_b32 s61, s57, 1\ns_lshl_b32 s61, s61, 2\ns_lshr_b32 s3, s58, 3\ns_add_u32 s61, s61, s3")
        A("s_mul_i32 s62, s61, 448\ns_and_b32 s3, s61, 1\ns_cmp_eq_u32 s3, 0")
        A("s_cselect_b32 s63, 384, 0\ns_cselect_b32 s3, 0, 64\ns_add_u32 s63, s63, s62\ns_add_u32 s62, s62, s3")
    else:
        A("s_lshr_b32 s60, s57, 1\ns_lshl_b32 s60, s60, 2\ns_and_b32 s3, s58, 3\ns_add_u32 s60, s60, s3")
        A("s_and_b32 s61, s57, 1\ns_lshr_b32 s62, s58, 2\ns_lshl_b32 s62, s62, 8\ns_lshl_b32 s3, s61, 7\ns_add_u32 s62, s62, s3\ns_xor_b32 s63, s62, 128")

G1_NST = 16
G1_ASLOT, G1_USZ, G1_HOFF = 16384, 8192, 24576
PVA, PVW = 200, 204
def unit_lane_off(A, t, rs):
    A(f"v_lshrrev_b32 v{t}, 3, v2\nv_lshrrev_b32 v{t+1}, 1, v{t}\nv_lshlrev_b32 v{t+1}, 1, v{t+1}\nv_and_b32 v{t+2}, 7, v2\nv_xor_b32 v{t+1}, v{t+1}, v{t+2}\nv_lshlrev_b32 v{t+1}, 4, v{t+1}")
    A(f"s_movk_i32 s3, {rs}\nv_mul_lo_u32 v{t}, v{t}, s3\nv_add_u32 v{t}, v{t}, v{t+1}")
def g1_prod_setup(A):
    RS = 7168
    A(f"s_sub_u32 s64, s{sWAVE}, 4")
    A(f"s_lshl_b32 s3, s60, 3\ns_lshl_b32 s57, s64, 1\ns_add_u32 s3, s3, s57\ns_lshl_b32 s3, s3, 15\ns_add_u32 s3, s3, {WS_Y2F}")
    A(f"v_lshlrev_b32 v{PVA}, 4, v2\nv_add_u32 v{PVA}, s3, v{PVA}\nv_add_u32 v{PVA+1}, {32*1024}, v{PVA}")
    t = 212
    unit_lane_off(A, t, RS)
    A(f"s_mul_i32 s3, s64, {16*RS}\ns_add_u32 s3, s3, s62\nv_add_u32 v{t}, s3, v{t}")
    for u in range(3):
        for rgi in range(2):
            A(f"v_add_u32 v{PVW+u*2+rgi}, {u*128 + rgi*8*RS - rgi*1024}, v{t}")
    A(f"v_lshrrev_b32 v{t}, 2, v2\nv_bfe_u32 v{t+1}, v2, 4, 1\nv_and_b32 v{t+2}, 3, v2\nv_xor_b32 v{t+1}, v{t+1}, v{t+2}\nv_lshlrev_b32 v{t+1}, 4, v{t+1}")
    A(f"s_movk_i32 s3, {RS}\nv_mul_lo_u32 v{t}, v{t}, s3\nv_add_u32 v{t}, v{t}, v{t+1}")
    A(f"s_mul_i32 s3, s64, {16*RS}\ns_add_u32 s3, s3, s63\nv_add_u32 v{PVW+6}, s3, v{t}")
    A("s_mov_b32 s65, 0\ns_mov_b32 s66, 0")
    A(f"s_lshl_b32 s67, s64, 12\ns_add_u32 s67, s67, {G1_A}")
    A(f"s_lshl_b32 s68, s64, 11")
    A(f"s_lshl_b32 s69, s64, 10\ns_sub_u32 s69, {G1_HOFF}, s69")
    A(f"s_add_u32 s70, s67, {3*G1_ASLOT}\ns_add_u32 s71, s68, {3*G1_WSLOT}")
    srd(A, SA_, "w1", 1024*7168)
def g1_issue_w(A):
    for u in range(3):
        A(f"s_add_u32 m0, s68, {u*G1_USZ}")
        for rgi in range(2):
            A(f"buffer_load_dwordx4 v{PVW+u*2+rgi}, s[{SA_}:{SA_+3}], s66 offen offset:{rgi*1024} lds")
    A("s_add_u32 m0, s68, s69")
    A(f"buffer_load_dwordx4 v{PVW+6}, s[{SA_}:{SA_+3}], s66 offen lds")
    A(f"s_add_u32 s66, s66, {64*7168}")
    A(f"s_add_u32 s68, s68, {G1_WSLOT}\ns_cmp_eq_u32 s68, s71\ns_cselect_b32 s3, {3*G1_WSLOT}, 0\ns_sub_u32 s68, s68, s3")
def g1_issue_a(A):
    for h in range(2):
        A(f"s_add_u32 m0, s67, {h*2048}")
        for ks in range(2):
            A(f"buffer_load_dwordx4 v{PVA+h}, {WS}, s65 offen offset:{ks*1024} {asc()} lds")
    A("s_add_u32 s65, s65, 2048")
    A(f"s_add_u32 s67, s67, {G1_ASLOT}\ns_cmp_eq_u32 s67, s70\ns_cselect_b32 s3, {3*G1_ASLOT}, 0\ns_sub_u32 s67, s67, s3")
def g1_prod_main(A):
    NI = 11
    g1_issue_a(A); g1_issue_a(A); g1_issue_w(A); g1_issue_a(A)
    x1_store(A)
    s2_ = srd(A, SB_, "w2", 3584*2048)
    A("s_mul_i32 s48, s2, 224\ns_mul_i32 s57, s64, 56\ns_add_u32 s48, s48, s57\ns_lshl_b32 s48, s48, 7")
    A("v_min_u32 v50, 55, v2\nv_lshlrev_b32 v50, 7, v50")
    A(f"s_lshr_b32 s49, s2, 3\ns_and_b32 s49, s49, 7\ns_add_u32 s49, s49, 2")
    A("s_add_u32 s3, s49, 6\ns_lshl_b32 s3, s3, 3\ns_and_b32 s57, s2, 1\ns_lshl_b32 s57, s57, 2\ns_add_u32 s3, s3, s57\ns_lshr_b32 s57, s2, 6\ns_add_u32 s3, s3, s57\ns_lshl_b32 s3, s3, 2\ns_add_u32 s3, s3, s64\ns_lshl_b32 s3, s3, 1")
    A("v_bfe_u32 v52, v2, 4, 1\nv_add_u32 v52, s3, v52\ns_movk_i32 s3, 7168\nv_mul_lo_u32 v52, v52, s3\nv_and_b32 v53, 15, v2\nv_min_u32 v53, 13, v53\nv_lshl_add_u32 v52, v53, 7, v52")
    A("s_lshr_b32 s50, s61, 2\ns_mul_i32 s50, s50, 1792")
    A(f"s_waitcnt vmcnt({6+NI})\ns_barrier")
    A("s_mov_b32 s59, 0")
    l = A.newlabel("ploop"); l2 = A.newlabel("pnp")
    A(f"{l}:")
    A(f"s_waitcnt vmcnt({NI})\ns_barrier")
    g1_issue_w(A); g1_issue_a(A)
    if not opt("nopf2"):
        A(f"s_cmp_lg_u32 s59, s49\ns_cbranch_scc1 {l2}")
        A(f"buffer_load_dword v53, v52, s[{SA_}:{SA_+3}], s50 offen")
        A(f"buffer_load_dword v51, v50, {s2_}, s48 offen")
        A(f"{l2}:")
    A(f"s_add_u32 s59, s59, 1\ns_cmp_lg_u32 s59, 13\ns_cbranch_scc1 {l}")
    A(f"s_waitcnt vmcnt({NI})\ns_barrier")
    A(f"s_waitcnt vmcnt(0)\ns_barrier")
    A("s_barrier")

def tr_base(A):
    A("v_lshrrev_b32 v3, 4, v2\nv_and_b32 v4, 15, v2")
    A("v_lshrrev_b32 v6, 2, v2\nv_and_b32 v6, 7, v6\nv_lshrrev_b32 v7, 1, v6\nv_lshlrev_b32 v7, 5, v7\nv_lshl_add_u32 v7, v6, 7, v7")
    A("v_and_b32 v8, 3, v2\nv_lshl_add_u32 v7, v8, 3, v7\nv_lshrrev_b32 v9, 5, v2\nv_lshl_add_u32 v7, v9, 10, v7")
def interleave(A, mf, fill, per):
    n = 0
    for m in mf:
        A(m)
        for _ in range(per(n)):
            if n < len(fill): A(fill[n]); n += 1
    while n < len(fill): A(fill[n]); n += 1

def sched(A, mf, slots):
    for n, m in enumerate(mf):
        A(m)
        for l in slots.get(n, []): A(l)
def align8(A):
    A.raw(".p2align 3")

def g1_consumer(A, st0):
    NT = 7
    tile_ids(A, 1)
    A(f"s_and_b32 s64, s{sWAVE}, 1\ns_lshr_b32 s65, s{sWAVE}, 1")
    tr_base(A)
    vA, VT, TC = 5, 10, 44
    A(f"s_lshl_b32 s3, s64, 13\ns_add_u32 s3, s3, {G1_A}\nv_lshlrev_b32 v5, 4, v2\nv_add_u32 v5, s3, v5")
    A(f"s_lshl_b32 s3, s65, 14")
    for cb in range(4):
        A(f"v_xor_b32 v{VT+cb}, {cb*32}, v7\nv_add_u32 v{VT+cb}, s3, v{VT+cb}")
    A("s_lshl_b32 s3, s65, 6")
    for e in range(2):
        A(f"v_xor_b32 v{VT+4+e}, s3, v7\nv_xor_b32 v{VT+4+e}, {e*32}, v{VT+4+e}\nv_add_u32 v{VT+4+e}, {G1_USZ}, v{VT+4+e}")
    A("v_and_b32 v9, 2, v8\nv_or_b32 v9, s65, v9\nv_and_b32 v6, 1, v3\nv_xor_b32 v9, v9, v6\nv_lshlrev_b32 v9, 4, v9")
    A(f"v_lshrrev_b32 v6, 2, v2\nv_lshl_add_u32 v9, v6, 6, v9\nv_and_b32 v6, 1, v8\nv_lshl_add_u32 v9, v6, 3, v9\nv_add_u32 v{VT+6}, {G1_HOFF}, v9")
    A(f"s_lshl_b32 s3, s65, 8\ns_add_u32 s{TC}, s62, s3")
    for cb in range(1, 4): A(f"s_add_u32 s{TC+cb}, s{TC}, {cb*32}")
    A(f"s_lshl_b32 s3, s65, 6\ns_add_u32 s{TC+4}, s62, s3\ns_add_u32 s{TC+4}, s{TC+4}, 128\ns_add_u32 s{TC+5}, s{TC+4}, 32")
    A(f"s_lshl_b32 s3, s65, 4\ns_add_u32 s{TC+6}, s63, s3")
    ACC = 20
    FA = [ACC + 16*NT, ACC + 16*NT + 16]
    FW = [FA[1] + 16, FA[1] + 16 + 4*NT]
    sb = srd(A, SA_, "b1", 7168)
    A("v_lshlrev_b32 v6, 3, v3\nv_and_b32 v9, 1, v3\nv_lshlrev_b32 v9, 3, v9\nv_lshrrev_b32 v17, 1, v3\nv_lshl_add_u32 v9, v17, 5, v9")
    for t in range(NT):
        A(f"buffer_load_dwordx2 v[{FW[1]+2*t}:{FW[1]+2*t+1}], v{6 if t < 6 else 9}, {sb}, s{TC+t} offen")
    A("s_waitcnt vmcnt(0)")
    for t in range(NT):
        a = ACC + 4*t
        lo(A, a, FW[1]+2*t); hi(A, a+1, FW[1]+2*t); lo(A, a+2, FW[1]+2*t+1); hi(A, a+3, FW[1]+2*t+1)
    for i in range(1, 4):
        for t in range(NT):
            for r in range(4): A(f"v_mov_b32 v{ACC+4*(i*NT+t)+r}, v{ACC+4*t+r}")
    def reads(ks, buf):
        aa = [f"ds_read_b128 v[{FA[buf]+4*i}:{FA[buf]+4*i+3}], v{vA} offset:{(i*2+ks)*1024}" for i in range(4)]
        ww = []
        for t in range(NT):
            o0, d = (ks*2048, 1024) if t == 6 else (ks*4096, 2048)
            ww.append(f"ds_read_b64_tr_b16 v[{FW[buf]+4*t}:{FW[buf]+4*t+1}], v{VT+t} offset:{o0}")
            ww.append(f"ds_read_b64_tr_b16 v[{FW[buf]+4*t+2}:{FW[buf]+4*t+3}], v{VT+t} offset:{o0+d}")
        return aa + ww
    A(f"s_mov_b32 s59, {G1_NST-1}\ns_mov_b32 s58, 1\ns_mov_b32 s66, {G1_ASLOT}\ns_mov_b32 s67, {G1_WSLOT}")
    A(f"s_mov_b32 s70, {-2*G1_ASLOT & 0xffffffff}\ns_mov_b32 s71, {-2*G1_WSLOT & 0xffffffff}\ns_mov_b32 s68, s66\ns_mov_b32 s69, s67")
    A("s_barrier")
    stamp(A, st0)
    for l in reads(0, 0): A(l)
    x1_store(A)
    A("s_waitcnt lgkmcnt(0)")
    align8(A)
    start = len(A.lines)
    lp = A.newlabel("cloop")
    A(f"{lp}:")
    for ks in range(2):
        rd = reads(ks ^ 1, ks ^ 1)
        mf = [f"v_mfma_f32_16x16x32_bf16 v[{ACC+4*(i*NT+t)}:{ACC+4*(i*NT+t)+3}], v[{FW[ks]+4*t}:{FW[ks]+4*t+3}], v[{FA[ks]+4*i}:{FA[ks]+4*i+3}], v[{ACC+4*(i*NT+t)}:{ACC+4*(i*NT+t)+3}]"
              for i in range(4) for t in range(NT)]
        sl = {n: [rd[n]] for n in range(18)}
        if ks == 0:
            ad = [f"v_add_u32 v{vA}, s68, v{vA}"] + [f"v_add_u32 v{VT+t}, s69, v{VT+t}" for t in range(NT)]
            for n in range(4): sl[18+n] = ad[2*n:2*n+2]
            sl[25] = ["s_waitcnt lgkmcnt(0)", "s_barrier"]
        else:
            sl[18] = ["s_add_u32 s58, s58, 1", "s_cmp_eq_u32 s58, 3"]
            sl[19] = ["s_cselect_b32 s58, 0, s58", "s_cselect_b32 s68, s70, s66"]
            sl[20] = ["s_cselect_b32 s69, s71, s67", "s_sub_u32 s59, s59, 1"]
            sl[26] = ["s_waitcnt lgkmcnt(0)", "s_nop 0"]
        sched(A, mf, sl)
    A(f"s_cbranch_scc0 {lp}")
    check_loop(A.lines[start:])
    stamp(A, st0 + 1)
    c0 = -2.0 * 1.4426950408889634 * math.sqrt(2.0 / math.pi)
    A(f"v_mov_b32 v12, {f2u(c0*0.044715):#x}\nv_mov_b32 v13, v12\nv_mov_b32 v14, {f2u(c0):#x}\nv_mov_b32 v15, v14")
    A(f"s_lshl_b32 s3, s60, 3\ns_lshl_b32 s57, s64, 2\ns_add_u32 s3, s3, s57\ns_mul_i32 s3, s3, {112*1024}\ns_add_u32 s3, s3, {WS_HF}")
    A("v_lshlrev_b32 v9, 4, v2\nv_add_u32 v7, s3, v9")
    A(f"v_lshrrev_b32 v8, 5, v2\nv_mul_u32_u24 v8, {112*1024 - 512}, v8\nv_add_u32 v8, v8, v7\ns_lshl_b32 s3, s65, 9\nv_add_u32 v8, s3, v8")
    A(f"s_lshl_b32 s{TC}, s{TC}, 4\ns_lshl_b32 s{TC+2}, s{TC+2}, 4\ns_lshl_b32 s{TC+4}, s{TC+4}, 4\ns_lshl_b32 s{TC+6}, s63, 4")
    A(f"s_lshl_b32 s66, s60, 4\ns_add_u32 s66, s66, s61\ns_lshl_b32 s66, s66, 2\ns_add_u32 s66, s66, s{sWAVE}\ns_lshl_b32 s66, s66, 7")
    A(f"s_add_u32 s67, s66, {F_S4B}\ns_add_u32 s66, s66, {F_S4A}")
    T = FA[0]; O = FW[0]
    def gelu8(srcs, o):
        pr = lambda r: f"v[{r}:{r+1}]"
        for e, a in enumerate(srcs): A(f"v_pk_mul_f32 {pr(T+2*e)}, {pr(a)}, {pr(a)}")
        for e, a in enumerate(srcs): A(f"v_pk_fma_f32 {pr(T+2*e)}, {pr(T+2*e)}, v[12:13], v[14:15]")
        for e, a in enumerate(srcs): A(f"v_pk_mul_f32 {pr(T+2*e)}, {pr(T+2*e)}, {pr(a)}")
        for e in range(8): A(f"v_exp_f32 v{T+e}, v{T+e}")
        for e in range(4): A(f"v_pk_add_f32 {pr(T+2*e)}, {pr(T+2*e)}, 1.0 op_sel_hi:[1,0]")
        for e in range(8): A(f"v_rcp_f32 v{T+e}, v{T+e}")
        for e, a in enumerate(srcs): A(f"v_pk_mul_f32 {pr(T+2*e)}, {pr(T+2*e)}, {pr(a)}")
        for e in range(4): A(f"v_cvt_pk_bf16_f32 v{o+e}, v{T+2*e}, v{T+2*e+1}")
    cnt = 0
    for pr_ in (2, 0, 1):
        for i in range(4):
            a = ACC + 4*(i*NT + 2*pr_)
            o = O + 4*(cnt % 4); cnt += 1
            gelu8([a, a+2, a+4, a+6], o)
            A(f"s_add_u32 s3, s{TC+2*pr_}, {i*112*1024}")
            A(f"buffer_store_dwordx4 v[{o}:{o+3}], v7, {WS}, s3 offen sc1")
            xstamp(A, f"ge{cnt}")
            if cnt == EARLY_AT:
                A(f"s_waitcnt vmcnt({EARLY_AT-4})")
                flag_set(A, "s66", 16, 9)
                A(f"v_mov_b32 v10, {L_CNT+12}\nv_mov_b32 v11, 1\nds_write_b32 v10, v11")
                xstamp(A, "gef")
    for i in (0, 2):
        a = ACC + 4*(i*NT + 6); b = ACC + 4*((i+1)*NT + 6)
        o = O + 4*(cnt % 4); cnt += 1
        gelu8([a, a+2, b, b+2], o)
        A(f"v_permlane32_swap_b32 v{o}, v{o+2}\nv_permlane32_swap_b32 v{o+1}, v{o+3}")
        A(f"s_add_u32 s3, s{TC+6}, {i*112*1024}")
        A(f"buffer_store_dwordx4 v[{o}:{o+3}], v8, {WS}, s3 offen sc1")
    stamp(A, st0 + 2)
EARLY_AT = 8

G2_SLOT = 32768
def g2_unit(s):
    if s < 8: return 7*(s >> 1) + (5 if s & 1 else 1), True
    if s < 24: return 7*((s-8) >> 2) + 2*((s-8) & 3), True
    return 7*(s-24) + 3, False
def g2_producer(A):
    tile_ids(A, 2)
    A(f"s_lshl_b32 s3, s60, 3\ns_lshl_b32 s57, s64, 1\ns_add_u32 s3, s3, s57\ns_mul_i32 s3, s3, {112*1024}\ns_add_u32 s3, s3, {WS_HF}")
    A(f"v_lshlrev_b32 v{PVA}, 4, v2\nv_add_u32 v{PVA}, s3, v{PVA}\nv_add_u32 v{PVA+1}, {112*1024}, v{PVA}")
    t = 212
    unit_lane_off(A, t, 2048)
    A(f"s_lshl_b32 s3, s64, 15\nv_add_u32 v{t}, s3, v{t}")
    A(f"v_add_u32 v{PVW}, s62, v{t}\nv_add_u32 v{PVW+1}, {16384-1024}, v{PVW}\nv_add_u32 v{PVW+2}, s63, v{t}\nv_add_u32 v{PVW+3}, {16384-1024}, v{PVW+2}")
    A(f"s_mul_i32 s65, s61, {28*2048}\ns_mul_i32 s66, s61, {28*131072}")
    A(f"s_lshl_b32 s67, s64, 12\ns_lshl_b32 s68, s64, 11\ns_add_u32 s68, s68, 16384")
    sw = srd(A, SA_, "w2", 3584*2048)
    def iw(s):
        u, p1 = g2_unit(s)
        A(f"s_add_u32 s69, s66, {u*131072}" if p1 else f"s_mov_b32 s69, {u*131072}")
        for un in range(2 if p1 else 1):
            A(f"s_add_u32 m0, s68, {(s & 3)*G2_SLOT + un*8192}")
            for rgi in range(2):
                A(f"buffer_load_dwordx4 v{PVW+2*un+rgi}, {sw}, s69 offen offset:{rgi*1024} lds")
        return 4 if p1 else 2
    def ia(s):
        u, p1 = g2_unit(s)
        A(f"s_add_u32 s70, s65, {u*2048}" if p1 else f"s_mov_b32 s70, {u*2048}")
        for h in range(2):
            A(f"s_add_u32 m0, s67, {(s & 3)*G2_SLOT + h*2048}")
            for ks in range(2):
                A(f"buffer_load_dwordx4 v{PVA+h}, {WS}, s70 offen offset:{ks*1024} {asc()} lds")
        return 4
    for s in range(4): iw(s)
    A(f"v_and_b32 v46, 15, v2\nv_lshlrev_b32 v46, 8, v46\nv_and_b32 v47, 31, v2\nv_lshlrev_b32 v47, 8, v47")
    A(f"s_lshl_b32 s71, s60, 13\ns_lshr_b32 s3, s64, 1\ns_lshl_b32 s3, s3, 7\ns_add_u32 s71, s71, s3\ns_lshl_b32 s3, s61, 12\ns_add_u32 s3, s3, s71\ns_add_u32 s3, s3, {F_S4A}\ns_add_u32 s71, s71, {F_S4B}")
    stamp(A, 11)
    l = A.newlabel("wef")
    A(f"v_mov_b32 v48, {L_CNT+12}")
    A(f"{l}:")
    A(f"s_sleep 2\nds_read_b32 v49, v48\ns_waitcnt lgkmcnt(0)\nv_readfirstlane_b32 s57, v49\ns_cmp_eq_u32 s57, 0\ns_cbranch_scc1 {l}")
    poll(A, 46, "s3", 48, 1)
    stamp(A, 12)
    q = []
    for s in range(4): q.append([s, ia(s)])
    def wait_for(stage):
        n = sum(c for st, c in q if st > stage)
        A(f"s_waitcnt vmcnt({n})")
    wait_for(0); A("s_barrier")
    for s in range(32):
        if s + 1 < 32: wait_for(s + 1)
        A("s_barrier")
        n = s + 4
        if n == 7:
            A(f"buffer_load_dword v48, v47, {WS}, s71 offen sc1"); q.append([6.5, 1])
        if n == 8:
            wait_for(6.5)
            d = A.newlabel("s4ok")
            A(f"v_cmp_ne_u32 vcc, s{sN}, v48\ns_nop 1\ns_cbranch_vccz {d}")
            poll(A, 47, "s71", 48)
            A(f"{d}:")
        if n < 32:
            c = iw(n) + ia(n); q.append([n, c])


def g2_consumer(A, st0):
    ACC, FA, FW, XR, GB, PR, vPL = 20, [84, 100], [116, 132], 148, 164, 172, 204
    tile_ids(A, 2)
    tr_base(A)
    vA, VT, TC = 5, 10, 44
    A(f"s_lshl_b32 s3, s64, 13\nv_lshlrev_b32 v9, 4, v2\nv_add_u32 v5, s3, v9")
    A("s_lshl_b32 s3, s65, 6")
    for e in range(2):
        A(f"v_xor_b32 v{VT+e}, s3, v7\nv_xor_b32 v{VT+e}, {e*32}, v{VT+e}\nv_add_u32 v{VT+e}, 16384, v{VT+e}")
    A(f"s_add_u32 s{TC}, s62, s3\ns_add_u32 s{TC+1}, s{TC}, 32")
    sb = srd(A, SA_, "b2", 2048)
    A("v_lshlrev_b32 v6, 3, v3\nv_lshlrev_b32 v18, 4, v3")
    for t in range(2): A(f"buffer_load_dwordx2 v[{FW[1]+2*t}:{FW[1]+2*t+1}], v6, {sb}, s{TC+t} offen")
    for t in range(2):
        A(f"s_lshl_b32 s3, s{TC+t}, 1\ns_add_u32 s3, s3, {F_MOD + 5*4096}")
        A(f"buffer_load_dwordx4 v[{GB+4*t}:{GB+4*t+3}], v18, {WS}, s3 offen sc1")
    A(f"s_xor_b32 s3, s2, 1\ns_lshl_b32 s3, s3, 2\ns_add_u32 s3, s3, s{sWAVE}\ns_lshl_b32 s46, s3, 13\ns_add_u32 s46, s46, {WS_PART}\ns_lshl_b32 s47, s3, 7\ns_add_u32 s47, s47, {F_S5}")
    A(f"s_lshl_b32 s3, s2, 2\ns_add_u32 s3, s3, s{sWAVE}\ns_lshl_b32 s48, s3, 13\ns_add_u32 s48, s48, {WS_PART}\ns_lshl_b32 s49, s3, 7\ns_add_u32 s49, s49, {F_S5}")
    A("v_mov_b32 v19, 0")
    A("s_waitcnt vmcnt(0)")
    flag_set(A, "s67", 12, 9)
    xstamp(A, "s4b")
    for t in range(2):
        a = ACC + 4*t
        lo(A, a, FW[1]+2*t); hi(A, a+1, FW[1]+2*t); lo(A, a+2, FW[1]+2*t+1); hi(A, a+3, FW[1]+2*t+1)
    for i in range(4):
        for t in range(4):
            if i == 0 and t < 2: continue
            for r in range(4): A(f"v_mov_b32 v{ACC+4*(i*4+t)+r}, " + (f"v{ACC+4*t+r}" if t < 2 else "0"))
    for e in range(8): A(f"v_cvt_pk_bf16_f32 v{GB+e}, v{GB+e}, v{GB+e}\nv_lshlrev_b32 v{GB+e}, 16, v{GB+e}")
    def reads(ks, buf, nt):
        aa = [f"ds_read_b128 v[{FA[buf]+4*i}:{FA[buf]+4*i+3}], v{vA} offset:{(i*2+ks)*1024}" for i in range(4)]
        ww = []
        for t in range(nt):
            o0 = ks*4096 + (t >> 1)*8192
            ww.append(f"ds_read_b64_tr_b16 v[{FW[buf]+4*t}:{FW[buf]+4*t+1}], v{VT+(t&1)} offset:{o0}")
            ww.append(f"ds_read_b64_tr_b16 v[{FW[buf]+4*t+2}:{FW[buf]+4*t+3}], v{VT+(t&1)} offset:{o0+2048}")
        return aa + ww
    def stage_body(nt):
        for ks in range(2):
            rd = reads(ks ^ 1, ks ^ 1, nt)
            mf = [f"v_mfma_f32_16x16x32_bf16 v[{ACC+4*(i*4+t)}:{ACC+4*(i*4+t)+3}], v[{FW[ks]+4*t}:{FW[ks]+4*t+3}], v[{FA[ks]+4*i}:{FA[ks]+4*i+3}], v[{ACC+4*(i*4+t)}:{ACC+4*(i*4+t)+3}]"
                  for i in range(4) for t in range(nt)]
            ad = [f"v_add_u32 v{vA}, s68, v{vA}", f"v_add_u32 v{VT}, s68, v{VT}", f"v_add_u32 v{VT+1}, s68, v{VT+1}", "s_nop 0"]
            sa = ["s_add_u32 s58, s58, 1", "s_and_b32 s58, s58, 3", "s_cselect_b32 s68, s66, s70", "s_sub_u32 s59, s59, 1"]
            ex = ad if ks == 0 else sa
            if nt == 4:
                sl = {0: rd[0:2], 1: rd[2:4], 2: rd[4:6], 3: rd[6:8], 4: rd[8:9], 5: rd[9:10], 6: rd[10:11], 7: rd[11:12], 8: ex[0:2], 9: ex[2:4]}
                sl[14] = ["s_waitcnt lgkmcnt(0)", "s_barrier" if ks == 0 else "s_nop 0"]
            else:
                sl = {0: rd[0:3], 1: rd[3:6], 2: rd[6:8], 3: ex[0:2], 4: ex[2:4]}
                sl[7] = ["s_waitcnt lgkmcnt(0)", "s_barrier"] if ks == 0 else ["s_waitcnt lgkmcnt(0)"]
            sched(A, mf, sl)
    A(f"s_mov_b32 s59, 23\ns_mov_b32 s58, 1\ns_mov_b32 s66, {G2_SLOT}\ns_mov_b32 s68, s66\ns_mov_b32 s70, {-3*G2_SLOT & 0xffffffff}")
    A(f"s_lshl_b32 s3, s60, 18\ns_lshl_b32 s57, s64, 17\ns_add_u32 s3, s3, s57")
    A("v_lshlrev_b32 v17, 11, v4\nv_add_u32 v17, v17, v6\nv_add_u32 v17, s3, v17")
    A("v_lshrrev_b32 v16, 1, v4\nv_lshlrev_b32 v16, 12, v16\nv_add_u32 v16, v16, v18\nv_and_b32 v15, 1, v4\nv_lshl_add_u32 v16, v15, 3, v16\nv_add_u32 v16, s3, v16")
    A("s_barrier")
    stamp(A, st0)
    for l in reads(0, 0, 4): A(l)
    A("s_waitcnt lgkmcnt(0)")
    align8(A)
    start = len(A.lines)
    lp = A.newlabel("c2a")
    A(f"{lp}:")
    stage_body(4)
    A(f"s_cbranch_scc0 {lp}")
    check_loop(A.lines[start:])
    xstamp(A, "g2p1")
    for i in range(4):
        for t in range(2):
            a = ACC + 4*(i*4+2+t); j = i*2 + t
            A(f"buffer_store_dwordx4 v[{a}:{a+3}], v9, {WS}, s46 offen offset:{(j & 3)*1024} sc1")
            if j == 3: A("s_add_u32 s46, s46, 4096")
    xstamp(A, "g2st")
    A("s_mov_b32 s59, 7")
    start = len(A.lines)
    lp = A.newlabel("c2b"); l1 = A.newlabel("c2x"); l2 = A.newlabel("c2y"); l3 = A.newlabel("c2z")
    A(f"{lp}:")
    A(f"s_cmp_lg_u32 s59, 5\ns_cbranch_scc1 {l1}")
    A("s_waitcnt vmcnt(0)")
    flag_set(A, "s47", 12, 9)
    A(f"{l1}:")
    A(f"s_cmp_lg_u32 s59, 3\ns_cbranch_scc1 {l2}")
    A(f"buffer_load_dword v{vPL}, v19, {WS}, s49 offen sc1")
    for i in range(4):
        for t in range(2):
            A(f"s_lshl_b32 s57, s{TC+t}, 1\ns_add_u32 s57, s57, {WS_X1 + i*32768}")
            A(f"buffer_load_dwordx2 v[{XR+4*i+2*t}:{XR+4*i+2*t+1}], v16, {WS}, s57 offen sc1")
    A(f"{l2}:")
    A(f"s_cmp_lg_u32 s59, 1\ns_cbranch_scc1 {l3}")
    d = A.newlabel("s5ok")
    A(f"s_waitcnt vmcnt(0)\nv_cmp_ne_u32 vcc, s{sN}, v{vPL}\ns_nop 1\ns_cbranch_vccz {d}")
    poll(A, 19, "s49", vPL)
    A(f"{d}:")
    for j in range(8):
        A(f"buffer_load_dwordx4 v[{PR+4*j}:{PR+4*j+3}], v9, {WS}, s48 offen offset:{(j & 3)*1024} sc1")
        if j == 3: A("s_add_u32 s48, s48, 4096")
    A(f"{l3}:")
    stage_body(2)
    A(f"s_cbranch_scc0 {lp}")
    check_loop(A.lines[start:])
    stamp(A, st0 + 1)
    so = srd(A, SA_, "out", 4*MB)
    T = FA[0]
    A("s_waitcnt vmcnt(0)")
    for i in range(4):
        for t in range(2):
            a = ACC + 4*(i*4+t); x = XR + 4*i + 2*t; p = PR + 4*(i*2+t)
            lo(A, T, x); hi(A, T+1, x); lo(A, T+2, x+1); hi(A, T+3, x+1)
            for r in range(4): A(f"v_add_f32 v{a+r}, v{a+r}, v{p+r}")
            for r in range(4): A(f"v_fmac_f32 v{T+r}, v{a+r}, v{GB+4*t+r}")
            A(f"v_cvt_pk_bf16_f32 v{x}, v{T}, v{T+1}\nv_cvt_pk_bf16_f32 v{x+1}, v{T+2}, v{T+3}")
            A(f"s_add_u32 s3, s{TC+t}, {i*32768}")
            A(f"buffer_store_dwordx2 v[{x}:{x+1}], v17, {so}, s3 offen")

def kernel(A):
    kernel_begin(A, NAME)
    A("s_load_dwordx2 s[40:41], s[0:1], 8\ns_load_dwordx2 s[44:45], s[0:1], 16")
    A("s_load_dwordx16 s[4:19], s[0:1], 0\ns_load_dwordx16 s[20:35], s[0:1], 64")
    A("s_cmp_ge_u32 s2, 256\ns_cbranch_scc1 L_exit")
    stamp(A, 0)
    A("v_lshrrev_b32 v1, 6, v0\nv_and_b32 v2, 63, v0")
    if opt("map0"): A(f"s_and_b32 s{sTT}, s2, 15\ns_lshr_b32 s{sCT}, s2, 4")
    else: A(f"s_and_b32 s{sCT}, s2, 15\ns_lshr_b32 s{sTT}, s2, 4")
    A(f"v_readfirstlane_b32 s{sWAVE}, v1")
    A("v_lshrrev_b32 v3, 3, v2\nv_bfe_u32 v4, v2, 4, 1\nv_and_b32 v5, 7, v2\nv_xor_b32 v4, v4, v5\nv_lshlrev_b32 v4, 4, v4\nv_lshl_add_u32 v4, v3, 11, v4")
    A(f"s_lshl_b32 s3, s{sTT}, 18\ns_lshl_b32 s57, s{sCT}, 7\ns_add_u32 s3, s3, s57")
    A(f"s_lshl_b32 s57, s{sWAVE}, 15\ns_add_u32 s57, s57, s3")
    A(f"s_and_b32 s58, s{sWAVE}, 1\ns_lshl_b32 s58, s58, 6")
    A("v_xor_b32 v5, s58, v4\nv_add_u32 v5, s57, v5")
    A("v_xor_b32 v6, 32, v5")
    A("s_movk_i32 s58, 15360\nv_add_u32 v16, s58, v6")
    A("v_xor_b32 v17, 64, v5\nv_add_u32 v17, s58, v17")
    A(f"s_mov_b32 s42, {4*MB}\ns_mov_b32 s43, 0x20000\ns_mov_b32 s46, s42\ns_mov_b32 s47, s43")
    sk, sv = "s[40:43]", "s[44:47]"
    A(f"s_lshl_b32 s59, s{sWAVE}, 11\ns_add_u32 m0, s59, {L_KT+1024}")
    A("s_waitcnt lgkmcnt(0)")
    A(f"buffer_load_dwordx4 v6, {sk}, 0 offen nt lds\nbuffer_load_dwordx4 v17, {sk}, 0 offen offset:1024 nt lds")
    A(f"s_add_u32 m0, s59, {L_VT}")
    A(f"buffer_load_dwordx4 v5, {sv}, 0 offen nt lds\nbuffer_load_dwordx4 v16, {sv}, 0 offen offset:1024 nt lds")
    A(f"s_cmp_lg_u32 s{sWAVE}, 0\ns_cbranch_scc1 L_nohalo")
    A(f"s_sub_u32 s3, s3, 16384\ns_cmp_eq_u32 s{sTT}, 0\ns_cselect_b32 s3, 0x80000000, s3\nv_add_u32 v7, s3, v4")
    A(f"s_mov_b32 m0, {L_KT}")
    A(f"buffer_load_dwordx4 v7, {sk}, 0 offen nt lds")
    A("L_nohalo:")
    A("v_and_b32 v8, 15, v2\nv_lshrrev_b32 v9, 4, v2\nv_lshlrev_b32 v11, 4, v2")
    vL16 = 11
    A("v_and_b32 v10, 1, v9\nv_and_b32 v14, 3, v2\nv_lshl_add_u32 v10, v10, 2, v14\nv_lshlrev_b32 v10, 3, v10")
    ss = srd(A, SC_, "shift", 8192)
    A(f"s_lshl_b32 s3, s{sWAVE}, 6\ns_lshl_b32 s57, s{sCT}, 9\ns_add_u32 s3, s3, s57")
    A(f"buffer_load_dwordx2 v[12:13], v10, {ss}, s3 offen")
    tile_ids(A, 1)
    A(f"s_lshl_b32 s{sTB}, s60, 4\ns_add_u32 s{sTB}, s{sTB}, s61\ns_lshl_b32 s{sCG}, s{sCT}, 4\ns_add_u32 s{sCG}, s{sCG}, s{sTT}")
    if opt("tb0"): A(f"s_mov_b32 s{sTB}, s2")
    A(f"s_lshl_b32 s59, s{sCT}, 7")
    A(f"s_cmp_lt_u32 s{sWAVE}, 4\ns_movk_i32 s58, {F_GVC}\ns_cselect_b32 s58, {F_S2C}, s58\ns_add_u32 s59, s59, s58")
    A(f"s_lshl_b32 s60, s{sCG}, 2\ns_add_u32 s60, s60, s{sWAVE}\ns_and_b32 s60, s60, 1023")
    A("s_lshl_b32 s63, s60, 1\ns_and_b32 s63, s63, 0x7fc")
    A(f"s_load_dword s{sN}, s[34:35], {F_E}\ns_load_dword s{sC0}, s[34:35], s59\ns_load_dword s33, s[{P['ssmD']}:{P['ssmD']+1}], s63")
    A(f"v_lshlrev_b32 v14, 2, v2\nv_add_u32 v14, {L_ST}, v14\nv_mov_b32 v15, 0\nds_write_b32 v14, v15")
    A(f"s_mov_b32 s36, s34\ns_mov_b32 s37, s35\ns_mov_b32 s38, {64*MB}\ns_mov_b32 s39, 0x20000")
    A(f"s_mul_i32 s61, s{sWAVE}, {WSZ}\ns_lshl_b32 s62, s60, 12")
    sp = srd(A, SA_, "ssmk", 4*MB); sc = srd(A, SB_, "c", 2048)
    A("s_getpc_b64 s[64:65]")
    A("L_pc:")
    A(f"s_lshr_b32 s3, s2, 3\ns_and_b32 s3, s3, 31\ns_lshl_b32 s3, s3, 10\nv_and_b32 v14, 7, v2\nv_lshlrev_b32 v14, 7, v14\nv_add_u32 v14, s3, v14\nv_min_u32 v14, L_end-L_pc-4, v14")
    A(f"v_lshlrev_b32 v15, 2, v2\ns_and_b32 s3, s{sTT}, 7\ns_lshl_b32 s3, s3, 8")
    xstamp(A, "iss")
    A("s_barrier")
    A(f"s_cmp_ge_u32 s{sWAVE}, 4\ns_cbranch_scc1 L_b0")
    A("s_add_u32 m0, s61, 32")
    for i in range(4): A(f"buffer_load_dwordx4 v{vL16}, {sp}, s62 offen offset:{i*1024} nt lds")
    A("s_branch L_c0")
    A("L_b0:")
    A(f"buffer_load_dword v220, v15, {sc}, s3 offen")
    A("global_load_dword v221, v14, s[64:65]")
    A("global_load_dword v221, v14, s[64:65]\nglobal_load_dword v221, v14, s[64:65]")
    A("L_c0:")
    A.flush_hist()

    A("v_bfe_u32 v16, v2, 2, 2\nv_and_b32 v17, 3, v2\nv_lshrrev_b32 v18, 1, v16")
    A(f"v_xor_b32 v18, s{sWAVE}, v18")
    A("v_lshrrev_b32 v19, 1, v9\nv_lshl_add_u32 v20, v19, 3, v17\nv_lshlrev_b32 v20, 10, v20\nv_lshl_add_u32 v20, v16, 7, v20")
    A(f"v_and_b32 v21, 1, v9\nv_lshl_add_u32 v20, v21, 3, v20\nv_add_u32 v20, {L_KT}, v20")
    A("v_lshlrev_b32 v22, 1, v17\nv_xor_b32 v22, v22, v18\nv_lshl_add_u32 v22, v22, 4, v20")
    A("v_add_u32 v23, 1, v17\nv_and_b32 v23, 3, v23\nv_lshlrev_b32 v23, 1, v23\nv_xor_b32 v23, v23, v18\nv_lshl_add_u32 v23, v23, 4, v20")
    A("v_lshl_add_u32 v24, v19, 3, v16\nv_sub_u32 v24, 11, v24\nv_lshlrev_b32 v24, 6, v24\nv_lshl_add_u32 v24, v17, 4, v24\nv_lshl_add_u32 v24, v21, 14, v24")
    A(f"s_lshl_b32 s3, s{sCT}, 18\ns_lshl_b32 s57, s{sWAVE}, 15\ns_add_u32 s3, s3, s57\ns_lshl_b32 s57, s{sTT}, 10\ns_sub_u32 s3, s3, s57\ns_add_u32 s58, s3, {WS_KVR + 240*64}")
    WF = 26
    A("s_waitcnt vmcnt(4)")
    xstamp(A, "kv")
    lo(A, WF, 12); hi(A, WF+1, 12); lo(A, WF+2, 13); hi(A, WF+3, 13)
    A("s_waitcnt lgkmcnt(0)")
    A(f"s_mul_i32 s{sN}, s{sN}, 0x9E3779B1\ns_add_u32 s{sN}, s{sN}, 0x7F4A7C15")
    A(f"s_lshl_b32 s59, s{sCG}, 3\ns_add_u32 s59, s59, s{sWAVE}\ns_lshl_b32 s59, s59, 7\ns_add_u32 s59, s59, {F_S1}")
    stamp(A, 1)
    A("s_barrier")
    KP, VP, KF, T, O = 32, 44, 52, 64, 72
    for e in range(2):
        A(f"ds_read_b64_tr_b16 v[{KP+6*e}:{KP+6*e+1}], v22 offset:{e*4096 + 512}")
        A(f"ds_read_b64_tr_b16 v[{KP+6*e+2}:{KP+6*e+3}], v23 offset:{e*4096 + 1024}")
        A(f"ds_read_b64_tr_b16 v[{KP+6*e+4}:{KP+6*e+5}], v23 offset:{e*4096 + 1536}")
        A(f"ds_read_b64_tr_b16 v[{VP+4*e}:{VP+4*e+1}], v22 offset:{17408 + e*4096}")
        A(f"ds_read_b64_tr_b16 v[{VP+4*e+2}:{VP+4*e+3}], v22 offset:{17408 + e*4096 + 512}")
    for e in range(2):
        A(f"s_waitcnt lgkmcnt({7 - 5*e})")
        for j in range(11):
            (hi if j % 2 == 0 else lo)(A, KF+j, KP + 6*e + (j+1)//2)
        for i in range(8): A(f"v_mul_f32 v{T+i}, v{WF+3}, v{KF+i}")
        for j in (2, 1, 0):
            for i in range(8): A(f"v_fmac_f32 v{T+i}, v{WF+j}, v{KF+i+3-j}")
        A(f"s_waitcnt lgkmcnt({5 - 5*e})")
        for i in range(8): (lo if i % 2 == 0 else hi)(A, KF+i, VP + 4*e + i//2)
        for i in range(8): A(f"v_mul_f32 v{T+i}, v{T+i}, v{KF+i}")
        for x in range(4): A(f"v_cvt_pk_bf16_f32 v{O+4*e+x}, v{T+7-2*x}, v{T+6-2*x}")
        A(f"buffer_store_dwordx4 v[{O+4*e}:{O+4*e+3}], v24, {WS}, s58 offen offset:{256*(1-e)} sc1")
    xstamp(A, "kst")
    A(f"s_and_b32 s3, s{sTT}, 7\ns_or_b32 s3, s3, s{sWAVE}\ns_cmp_lg_u32 s3, 0\ns_cbranch_scc1 L_nozero")
    A(f"s_lshr_b32 s3, s{sCG}, 3\ns_mul_i32 s3, s3, 768\ns_add_u32 s3, s3, {F_MOD}")
    A("v_mov_b32 v48, 0\nv_mov_b32 v49, 0\nv_mov_b32 v50, 0\nv_mov_b32 v51, 0")
    A("s_mov_b32 exec_lo, -1\ns_mov_b32 exec_hi, 0xffff")
    A(f"buffer_store_dwordx4 v[48:51], v{vL16}, {WS}, s3 offen sc1")
    A("s_mov_b64 exec, -1")
    A("L_nozero:")
    A.flush_hist()
    A("s_waitcnt vmcnt(0)")
    flag_set(A, "s59", 52, vL16)
    stamp(A, 2)
    A(f"s_cmp_ge_u32 s{sWAVE}, 4\ns_cbranch_scc1 L_b1")
    X, Y = 192, 208
    A(f"v_add_u32 v41, s61, v{vL16}")
    for i in range(4):
        A(f"ds_read_b128 v[{X+4*i}:{X+4*i+3}], v41 offset:{32+i*1024}")
        A(f"ds_read_b64 v[{Y+2*i}:{Y+2*i+1}], v41 offset:{48+i*1024}")
    A("v_add_u32 v42, v9, v8\nv_lshlrev_b32 v40, 1, v42\nv_add_u32 v40, s61, v40\nds_read_u16 v216, v40")
    A(f"v_cmp_lt_u32 vcc, 15, v42\nv_mul_u32_u24 v40, {PS}, v9\nv_lshl_add_u32 v40, v8, 1, v40\nv_add_u32 v40, s61, v40")
    A(f"v_mov_b32 v14, 0\nv_mov_b32 v15, 0\nv_lshlrev_b32 v13, 3, v0\nv_add_u32 v13, {L_Q+16384}, v13")
    for i in range(4):
        a = [X+4*i, X+4*i+1, X+4*i+2, X+4*i+3, Y+2*i, Y+2*i+1]
        c1 = 112 + 12*i; c2 = c1 + 4; c3 = c1 + 8
        if i == 0: A("s_waitcnt lgkmcnt(0)")
        for j in range(4): A(f"v_alignbit_b32 v{c1+j}, v{a[j+1]}, v{a[j]}, 16")
        A(f"ds_write_b128 v41, v[{c1}:{c1+3}] offset:{PS+32+i*1024}")
        for j in range(4): A(f"v_mov_b32 v{c2+j}, v{a[j+1]}")
        A(f"ds_write_b128 v41, v[{c2}:{c2+3}] offset:{2*PS+32+i*1024}")
        for j in range(4): A(f"v_alignbit_b32 v{c3+j}, v{a[j+2]}, v{a[j+1]}, 16")
        A(f"ds_write_b128 v41, v[{c3}:{c3+3}] offset:{3*PS+32+i*1024}")
    A("v_cndmask_b32 v216, 0, v216, vcc\nds_write_b16 v40, v216")
    A("ds_write_b64 v13, v[14:15]")
    A("s_and_b32 s3, s60, 1\ns_lshl_b32 s3, s3, 4\ns_lshr_b32 s33, s33, s3\ns_and_b32 s33, s33, 0xffff")
    A("v_lshl_add_u32 v48, v9, 3, v8\nv_sub_u32 v48, 15, v48\nv_and_b32 v49, 1, v48\nv_lshlrev_b32 v49, 4, v49\nv_lshlrev_b32 v49, v49, s33\nv_ashrrev_i32 v48, 1, v48")
    for e in range(4): A(f"v_cmp_eq_u32 vcc, {e}, v48\nv_cndmask_b32 v{64+e}, 0, v49, vcc")
    A(f"v_add_u32 v42, 1, v8\nv_and_b32 v43, 3, v42\nv_mul_u32_u24 v43, {PS}, v43\nv_lshrrev_b32 v42, 2, v42")
    A("v_lshl_add_u32 v43, v42, 3, v43\nv_lshl_add_u32 v43, v9, 4, v43\nv_add_u32 v43, s61, v43")
    vP, vQ, vE, vS = 43, [44, 45], 47, 46
    A("v_lshlrev_b32 v48, 1, v8\nv_sub_u32 v48, 30, v48\nv_add_u32 v48, v48, v9\nv_lshrrev_b32 v49, 2, v48")
    for rho in range(2):
        A(f"v_add_u32 v50, {rho}, v49\nv_and_b32 v50, 3, v50\nv_xor_b32 v50, s{sWAVE}, v50\nv_lshlrev_b32 v50, 4, v50\nv_lshl_add_u32 v50, v48, 6, v50\nv_add_u32 v{vQ[rho]}, {L_Q}, v50")
    A(f"s_lshr_b32 s3, s{sWAVE}, 1\nv_lshl_add_u32 v46, v9, 1, s3\nv_and_b32 v48, 7, v8\nv_xor_b32 v46, v46, v48\nv_lshlrev_b32 v46, 4, v46")
    A(f"v_lshl_add_u32 v46, v8, 7, v46\ns_and_b32 s3, s{sWAVE}, 1\ns_lshl_b32 s3, s3, 3\ns_add_u32 s3, s3, {L_YS}\nv_add_u32 v46, s3, v46")
    ACC = 80; FA = [112, 176]; FB = [144, 208]; KE = 64
    def reads(r, buf):
        La, Lb = [], []
        for i in range(8):
            Lb.append(f"ds_read_b128 v[{FB[buf]+4*i}:{FB[buf]+4*i+3}], v{vQ[r & 1]} offset:{256*r + 2048*(7-i)}")
            La.append(f"ds_read_b64 v[{FA[buf]+4*i}:{FA[buf]+4*i+1}], v{vP} offset:{512*i + 64*r}")
            La.append(f"ds_read_b64 v[{FA[buf]+4*i+2}:{FA[buf]+4*i+3}], v{vP} offset:{512*i + 64*r + 8}")
        return La, Lb
    La, Lb = reads(0, 0)
    A("s_waitcnt lgkmcnt(0)")
    for l in La: A(l)
    q_addr(A, 48)
    A("s_mov_b32 s59, 3")
    stamp(A, 3)
    A("s_waitcnt lgkmcnt(0)\ns_barrier")
    for l in Lb: A(l)
    q_issue(A, 48)
    stamp(A, 4)
    for q in range(8):
        A(f"s_waitcnt lgkmcnt({7-q if not STAMPS else 0})")
        A(f"v_mfma_f32_16x16x32_bf16 v[{ACC+4*q}:{ACC+4*q+3}], v[64:67], v[{FB[0]+4*q}:{FB[0]+4*q+3}], 0")
    align8(A)
    start = len(A.lines)
    A("L_conv:")
    for r in range(2):
        if r == 0:
            La, Lb = reads(1, 1)
            tail = [[f"v_xor_b32 v{vQ[0]}, 32, v{vQ[0]}", f"v_xor_b32 v{vQ[1]}, 32, v{vQ[1]}"],
                    [f"v_add_u32 v{vQ[0]}, 512, v{vQ[0]}"], [f"v_add_u32 v{vQ[1]}, 512, v{vQ[1]}"], [f"v_add_u32 v{vP}, 128, v{vP}"]]
        else:
            La, Lb = reads(0, 0)
            tail = [["s_sub_u32 s59, s59, 1", "s_nop 0"]]
        nxt = [[x] for x in Lb + La] + tail
        mf = [f"v_mfma_f32_16x16x32_bf16 v[{ACC+4*(i+j)}:{ACC+4*(i+j)+3}], v[{FA[r]+4*i}:{FA[r]+4*i+3}], v[{FB[r]+4*j}:{FB[r]+4*j+3}], v[{ACC+4*(i+j)}:{ACC+4*(i+j)+3}]"
              for i in range(8) for j in range(8 - i)]
        sl = {n: x for n, x in enumerate(nxt)}
        sl[34] = ["s_waitcnt lgkmcnt(0)", "s_nop 0"]
        sched(A, mf, sl)
    A("s_cbranch_scc0 L_conv")
    check_loop(A.lines[start:])
    stamp(A, 5)
    T = 48
    for q in range(8):
        e = KE + 2*q
        A(f"v_cvt_pk_bf16_f32 v{e}, v{ACC+4*q}, v{ACC+4*q+1}\nv_cvt_pk_bf16_f32 v{e+1}, v{ACC+4*q+2}, v{ACC+4*q+3}")
        A(f"ds_write_b64 v{vS}, v[{e}:{e+1}] offset:{q*2048}")
    A(f"v_mov_b32 v52, {L_CNT}\nv_mov_b32 v53, 1\ns_waitcnt lgkmcnt(0)\ns_mov_b64 exec, 1\nds_add_u32 v52, v53\ns_mov_b64 exec, -1")
    A(f"v_lshrrev_b32 v48, 3, v2\nv_and_b32 v49, 7, v2\nv_xor_b32 v50, v48, v49\nv_lshlrev_b32 v50, 4, v50\nv_lshl_add_u32 v50, v48, 7, v50")
    A(f"s_lshl_b32 s3, s{sWAVE}, 12\ns_add_u32 s3, s3, {L_YS}\nv_add_u32 v50, s3, v50")
    A("v_lshrrev_b32 v51, 2, v49\nv_lshl_add_u32 v51, v48, 1, v51\nv_lshlrev_b32 v51, 14, v51\nv_and_b32 v49, 3, v49\nv_lshl_add_u32 v51, v49, 4, v51")
    A(f"s_lshl_b32 s3, s{sWAVE}, 20\ns_lshl_b32 s57, s{sCG}, 6\ns_add_u32 s3, s3, s57\ns_add_u32 s3, s3, {WS_YB}")
    A("L_rv:")
    A("ds_read_b32 v53, v52\ns_waitcnt lgkmcnt(0)\nv_readfirstlane_b32 s57, v53\ns_cmp_lt_u32 s57, 4\ns_cbranch_scc1 L_rv")
    for i in range(4): A(f"ds_read_b128 v[{64+4*i}:{67+4*i}], v50 offset:{i*1024}")
    for i in range(4):
        A(f"s_waitcnt lgkmcnt({3-i})")
        A(f"buffer_store_dwordx4 v[{64+4*i}:{67+4*i}], v51, {WS}, s3 offen sc1")
        if i < 3: A(f"s_add_u32 s3, s3, {8*2*16384}")
    xstamp(A, "ys")
    A("s_waitcnt vmcnt(4)")
    ln0_part1(A)
    A("s_waitcnt vmcnt(0)")
    xstamp(A, "yd")
    arrive(A, F_S2C, F_S2R, L_CNT+4, 52, vL16)
    stamp(A, 6)
    A(f"s_cmp_lg_u32 s{sWAVE}, 0\ns_cbranch_scc1 L_ln")
    A(f"v_lshlrev_b32 v47, 7, v8\ns_movk_i32 s3, {F_S2R}")
    poll(A, 47, "s3", 48)
    xstamp(A, "s2p")
    A("s_branch L_ln")
    A.flush_hist()
    A("L_b1:")
    A(f"s_cmp_lg_u32 s{sWAVE}, 7\ns_cbranch_scc1 L_b1g")
    A(f"s_lshr_b32 s3, s{sTT}, 1\ns_lshl_b32 s3, s3, 7\nv_and_b32 v47, 1, v9\nv_subrev_u32 v47, 1, v47\nv_and_b32 v47, s3, v47\nv_lshl_add_u32 v47, v8, 10, v47")
    A("v_and_b32 v46, 3, v2\nv_xor_b32 v46, v46, v9\nv_lshlrev_b32 v46, 4, v46\nv_lshrrev_b32 v45, 2, v2\nv_lshl_add_u32 v46, v45, 6, v46")
    A(f"s_lshl_b32 s3, s{sCT}, 14\ns_add_u32 s3, s3, {F_S1}\ns_lshl_b32 s58, s{sCG}, 14\ns_add_u32 s58, s58, {WS_KVR}")
    poll(A, 47, "s3", 48)
    xstamp(A, "s1p")
    for w in range(4):
        A(f"s_mov_b32 m0, {L_Q + w*4096}")
        for i in range(4): A(f"buffer_load_dwordx4 v46, {WS}, s58 offen offset:{i*1024} sc1 lds")
        if w < 3: A("s_add_u32 s58, s58, 4096")
    tile_ids(A, 1)
    g1_prod_setup(A)
    q_addr(A, 48)
    A("s_lshr_b32 s58, s2, 3\ns_lshl_b32 s58, s58, 1\ns_and_b32 s57, s2, 1\ns_add_u32 s58, s58, s57\ns_mul_i32 s58, s58, 7168")
    A(f"s_lshr_b32 s57, s61, 2\ns_mul_i32 s57, s57, 1792\ns_add_u32 s58, s58, s57\ns_add_u32 s{sPF}, s{P['w1']}, s58\ns_addc_u32 s{sPF+1}, s{P['w1']+1}, 0")
    A("s_waitcnt vmcnt(0)\ns_barrier")
    A("s_sleep 8")
    q_issue(A, 48)
    if opt("pf0", 4):
        A(f"s_mov_b32 s59, {opt('pf0', 4)}")
        A("L_pf0:")
        sprefetch(A, 28, 64*7168)
        A("s_sub_u32 s59, s59, 1\ns_cmp_lg_u32 s59, 0\ns_cbranch_scc1 L_pf0")
    xstamp(A, "bp")
    A("s_waitcnt vmcnt(0)")
    ln0_part1(A)
    A("s_branch L_b1m")
    A.flush_hist()
    A("L_b1g:")
    tile_ids(A, 1)
    g1_prod_setup(A)
    A(f"s_mov_b32 s3, {f2u(-1.4426950408889634):#x}")
    lo(A, 16, 220); hi(A, 17, 220)
    for i in range(2): A(f"v_mul_f32 v{18+i}, s3, v{16+i}")
    for i in range(2): A(f"v_exp_f32 v{18+i}, v{18+i}")
    for i in range(2): A(f"v_add_f32 v{18+i}, 1.0, v{18+i}")
    for i in range(2): A(f"v_rcp_f32 v{18+i}, v{18+i}")
    for i in range(2): A(f"v_mul_f32 v{18+i}, v{18+i}, v{16+i}")
    A("v_cvt_pk_bf16_f32 v18, v18, v19")
    A(f"s_lshl_b32 s58, s64, 9\ns_add_u32 s58, s58, {L_GS}\nv_lshlrev_b32 v20, 2, v2\nv_add_u32 v21, s58, v20\nds_write_b32 v21, v18")
    A("v_lshlrev_b32 v22, 3, v9\nv_add_u32 v22, s58, v22")
    SF, GA, GW = 64, 80, 96
    for kb in range(4):
        A(f"ds_read_b64 v[{SF+4*kb}:{SF+4*kb+1}], v22 offset:{kb*64}\nds_read_b64 v[{SF+4*kb+2}:{SF+4*kb+3}], v22 offset:{kb*64+32}")
    unit_lane_off(A, 24, 12288)
    for k in range(1, 4): A(f"v_add_u32 v{24+k}, {k*(8*12288 - 1024)}, v24")
    A(f"s_and_b32 s3, s{sTT}, 7\ns_mul_i32 s3, s3, {128*12288}\ns_lshr_b32 s57, s{sCG}, 3\ns_mul_i32 s57, s57, 384\ns_add_u32 s3, s3, s57\ns_lshl_b32 s57, s64, 7\ns_add_u32 s48, s3, s57")
    A(f"s_lshl_b32 s49, s64, 14\ns_add_u32 s49, s49, {L_GW}")
    A("v_lshrrev_b32 v28, 2, v2\nv_and_b32 v28, 7, v28\nv_lshrrev_b32 v29, 1, v28\nv_lshlrev_b32 v29, 5, v29\nv_lshl_add_u32 v29, v28, 7, v29")
    A("v_and_b32 v28, 3, v2\nv_lshl_add_u32 v29, v28, 3, v29\nv_lshrrev_b32 v28, 5, v2\nv_lshl_add_u32 v29, v28, 10, v29\nv_add_u32 v29, s49, v29")
    for cb in range(4): A(f"v_xor_b32 v{56+cb}, {cb*32}, v29")
    A("v_lshlrev_b32 v23, 4, v9\nv_add_u32 v23, s58, v23")
    sw = srd(A, SB_, "wmod", 12*MB)
    A("s_mov_b32 s58, s48\ns_mov_b32 s59, s49")
    q_addr(A, 48)
    A("s_waitcnt lgkmcnt(0)\ns_barrier")
    A("s_sleep 2")
    for kb in range(4):
        A(f"s_add_u32 m0, s59, {kb*4096}")
        for k in range(4): A(f"buffer_load_dwordx4 v{24+k}, {sw}, s58 offen offset:{k*1024} nt lds")
        if kb < 3: A(f"s_add_u32 s58, s58, {32*12288}")
    q_issue(A, 48)
    xstamp(A, "bi")
    A("s_setprio 3")
    for kb in range(4):
        A(f"s_waitcnt vmcnt({16 - 4*kb})")
        for cb in range(4):
            A(f"ds_read_b64_tr_b16 v[{GW+4*cb}:{GW+4*cb+1}], v{56+cb} offset:{kb*4096}\nds_read_b64_tr_b16 v[{GW+4*cb+2}:{GW+4*cb+3}], v{56+cb} offset:{kb*4096+2048}")
        A("s_waitcnt lgkmcnt(0)")
        for cb in range(4):
            c = "0" if kb == 0 else f"v[{GA+4*cb}:{GA+4*cb+3}]"
            A(f"v_mfma_f32_16x16x32_bf16 v[{GA+4*cb}:{GA+4*cb+3}], v[{GW+4*cb}:{GW+4*cb+3}], v[{SF+4*kb}:{SF+4*kb+3}], {c}")
    xstamp(A, "bw")
    A("s_mov_b32 exec_lo, 0x00010001\ns_mov_b32 exec_hi, 0x00010001")
    for cb in range(4): A(f"ds_write_b128 v23, v[{GA+4*cb}:{GA+4*cb+3}] offset:{256 + cb*64}")
    A("s_mov_b64 exec, -1")
    A("ds_read_b32 v30, v21 offset:256")
    A(f"s_lshr_b32 s3, s{sCG}, 3\ns_mul_i32 s3, s3, 768\ns_lshl_b32 s57, s64, 8\ns_add_u32 s3, s3, s57\ns_add_u32 s3, s3, {F_MOD}")
    A("s_waitcnt lgkmcnt(0)")
    A(f"buffer_atomic_add_f32 v30, v20, {WS}, s3 offen sc1")
    xstamp(A, "ba")
    A("s_waitcnt vmcnt(1)")
    ln0_part1(A)
    A("s_waitcnt vmcnt(0)")
    xstamp(A, "bd")
    arrive(A, F_GVC, F_GVR, L_CNT+8, 52, vL16, 3)
    A("s_setprio 0")
    A("L_b1m:")
    A.flush_hist()
    stamp(A, 3)
    A(f"v_lshlrev_b32 v47, 7, v8\ns_movk_i32 s3, {F_GVR}")
    poll(A, 47, "s3", 48, 4)
    stamp(A, 4)
    A("v_and_b32 v48, 255, v0\nv_lshlrev_b32 v48, 4, v48")
    M = 64
    for j in range(5):
        A(f"s_mov_b32 s3, {F_MOD + j*4096}")
        A(f"buffer_load_dwordx4 v[{M+4*j}:{M+4*j+3}], v48, {WS}, s3 offen sc1")
    A(f"v_add_u32 v48, {L_MOD}, v48")
    A("s_waitcnt vmcnt(0)")
    for e in range(20): A(f"v_cvt_pk_bf16_f32 v{M+e}, v{M+e}, v{M+e}")
    for e in range(20): A(f"v_lshlrev_b32 v{M+e}, 16, v{M+e}")
    for j in (1, 4):
        for e in range(4): A(f"v_add_f32 v{M+4*j+e}, 1.0, v{M+4*j+e}")
        for e in range(4): A(f"v_cvt_pk_bf16_f32 v{M+4*j+e}, v{M+4*j+e}, v{M+4*j+e}")
        for e in range(4): A(f"v_lshlrev_b32 v{M+4*j+e}, 16, v{M+4*j+e}")
    for j in (0, 1):
        for e in range(4): A(f"v_mul_f32 v{M+4*j+e}, v{M+4*j+e}, v{M+8+e}")
    for n, j in enumerate((0, 1, 3, 4)): A(f"ds_write_b128 v48, v[{M+4*j}:{M+4*j+3}] offset:{n*4096}")
    A(f"s_add_u32 s3, s64, 4\ns_lshl_b32 s3, s3, 6\nv_mov_b32 v222, s3")
    A("s_lshr_b32 s3, s2, 3\ns_lshl_b32 s3, s3, 1\ns_and_b32 s57, s2, 1\ns_add_u32 s3, s3, s57\nv_add_u32 v222, s3, v222\ns_movk_i32 s3, 7168\nv_mul_lo_u32 v222, v222, s3")
    A("v_min_u32 v223, 13, v8\nv_lshl_add_u32 v222, v223, 7, v222\ns_lshr_b32 s57, s61, 2\ns_mul_i32 s57, s57, 1792\nv_add_u32 v222, s57, v222")
    stamp(A, 6)
    A("L_ln:")
    A.flush_hist()
    A("s_nop 4")
    A(f"v_lshlrev_b32 v12, 6, v{vCG}\nv_lshl_add_u32 v12, v{vHF}, 5, v12")
    A(f"v_lshlrev_b32 v15, 4, v{vCG}\nv_lshl_add_u32 v248, v{vHF}, 13, v15\nv_add_u32 v15, {L_MOD}, v15")
    A(f"s_lshl_b32 s58, s{sTB}, 14\ns_add_u32 s3, s58, {WS_YB}\ns_add_u32 s58, s58, {WS_X1}\nv_add_u32 v248, s58, v248\nv_add_u32 v249, 4096, v248")
    A("s_waitcnt lgkmcnt(0)\ns_barrier")
    stamp(A, 7)
    YR, M, H, TMP, ST = 40, 48, 72, 88, 96
    for c in range(2): A(f"buffer_load_dwordx4 v[{YR+4*c}:{YR+4*c+3}], v12, {WS}, s3 offen offset:{16*c} sc1")
    for j in range(4): A(f"ds_read_b128 v[{M+4*j}:{M+4*j+3}], v15 offset:{j*4096}")
    red_part2(A, vSTR, 0, ST)
    normalize(A, H, LX, ST, M+4, M)
    A(f"v_lshrrev_b32 v12, 3, v{vCG}\nv_and_b32 v15, 3, v{vCG}\nv_lshl_add_u32 v12, v12, 2, v15")
    A(f"v_and_b32 v15, 7, v12\nv_lshlrev_b32 v10, 2, v{vHF}\nv_xor_b32 v15, v15, v10\nv_lshlrev_b32 v15, 4, v15\nv_lshl_add_u32 v12, v12, 7, v15")
    A(f"v_and_b32 v15, 4, v{vCG}\nv_lshl_add_u32 v12, v15, 1, v12\nv_add_u32 v12, {L_MOD}, v12")
    xstamp(A, "ln_a")
    A("s_waitcnt vmcnt(0)")
    xstamp(A, "ln_b")
    if not opt("nopf1"):
        A(f"s_cmp_lt_u32 s{sWAVE}, 4\ns_cbranch_scc1 L_nopf1")
        A(f"buffer_load_dword v223, v222, s[{SA_}:{SA_+3}], 0 offen")
        A("L_nopf1:")
    for i in range(4):
        for c in range(4): (lo if i % 2 == 0 else hi)(A, TMP+c, YR+2*c+i//2)
        for c in range(0, 4, 2): A(f"v_pk_fma_f32 v[{LX+4*i+c}:{LX+4*i+c+1}], v[{H+4*i+c}:{H+4*i+c+1}], v[{TMP+c}:{TMP+c+1}], v[{LX+4*i+c}:{LX+4*i+c+1}]")
        A(f"v_cvt_pk_bf16_f32 v{QR+2*i}, v{LX+4*i}, v{LX+4*i+1}\nv_cvt_pk_bf16_f32 v{QR+2*i+1}, v{LX+4*i+2}, v{LX+4*i+3}")
        lo(A, LX+4*i, QR+2*i); hi(A, LX+4*i+1, QR+2*i); lo(A, LX+4*i+2, QR+2*i+1); hi(A, LX+4*i+3, QR+2*i+1)
    stats4(A, LX, LR)
    red_part1(A, LR, vSTW, 64)
    xstamp(A, "ln_c")
    A("s_waitcnt lgkmcnt(0)\ns_barrier")
    xstamp(A, "ln_d")
    red_part2(A, vSTR, 64, ST)
    normalize(A, H, LX, ST, M+12, M+8)
    stats4(A, H, LR)
    red_part1(A, LR, vSTW, 128)
    xstamp(A, "ln_e")
    A("s_waitcnt lgkmcnt(0)\ns_barrier")
    xstamp(A, "ln_f")
    red_part2(A, vSTR, 128, ST)
    normalize(A, H, H, ST)
    for i in range(4):
        A(f"v_cvt_pk_bf16_f32 v{YR+2*i}, v{H+4*i}, v{H+4*i+1}\nv_cvt_pk_bf16_f32 v{YR+2*i+1}, v{H+4*i+2}, v{H+4*i+3}")
        A(f"v_xor_b32 v15, {i*16}, v12")
        A(f"ds_write_b64 v15, v[{YR+2*i}:{YR+2*i+1}]")
    xstamp(A, "ln_g")
    A(f"s_cmp_ge_u32 s{sWAVE}, 4\ns_cbranch_scc1 L_b2")
    A(f"v_lshrrev_b32 v12, 3, v0\nv_and_b32 v13, 7, v0\nv_and_b32 v14, 7, v12\nv_xor_b32 v14, v14, v13\nv_lshlrev_b32 v14, 4, v14\nv_lshl_add_u32 v14, v12, 7, v14\nv_add_u32 v14, {L_MOD}, v14")
    A(f"s_lshr_b32 s3, s{sTB}, 1\ns_lshl_b32 s3, s3, 15\ns_and_b32 s57, s{sTB}, 1\ns_lshl_b32 s57, s57, 7\ns_add_u32 s3, s3, s57\ns_add_u32 s3, s3, {WS_Y2F}")
    A("v_lshlrev_b32 v15, 8, v12\nv_lshl_add_u32 v15, v13, 4, v15")
    A("s_waitcnt lgkmcnt(0)\ns_barrier")
    xstamp(A, "ln_h")
    for i in range(4): A(f"ds_read_b128 v[{64+4*i}:{67+4*i}], v14 offset:{i*4096}")
    for i in range(4):
        A(f"s_waitcnt lgkmcnt({3-i})")
        A(f"buffer_store_dwordx4 v[{64+4*i}:{67+4*i}], v15, {WS}, s3 offen sc1")
        if i < 3: A("s_add_u32 s3, s3, 8192")
    A(f"s_lshl_b32 s3, s{sTB}, 2\ns_add_u32 s3, s3, s{sWAVE}\ns_lshl_b32 s3, s3, 7\ns_add_u32 s3, s3, {F_S3}")
    A("s_waitcnt vmcnt(0)")
    flag_set(A, "s3", 52, vL16)
    xstamp(A, "ln_i")
    A("s_barrier")
    stamp(A, 8)
    g1_consumer(A, 9)
    g2_consumer(A, 12)
    if STAMPS:
        A("s_waitcnt vmcnt(0)"); stamp(A, 14)
    stamp_flush(A)
    A("s_endpgm")
    A.flush_hist()
    A("L_b2:")
    A("s_waitcnt lgkmcnt(0)\ns_barrier")
    stamp(A, 8)
    A("s_barrier")
    for _ in range(2): g1_issue_w(A)
    A(f"v_and_b32 v47, 15, v2\nv_lshlrev_b32 v47, 7, v47\ns_lshl_b32 s3, s60, 13\ns_lshl_b32 s57, s64, 11\ns_add_u32 s3, s3, s57\ns_add_u32 s3, s3, {F_S3}")
    poll(A, 47, "s3", 48)
    stamp(A, 9)
    A(f"s_or_b32 s3, s2, s64\ns_cmp_lg_u32 s3, 0\ns_cbranch_scc1 L_noepoch")
    flag_set(A, "0", 52, vL16)
    A("s_waitcnt vmcnt(0)")
    A("L_noepoch:")
    g1_prod_main(A)
    stamp(A, 10)
    g2_producer(A)
    stamp(A, 13)
    stamp_flush(A)
    A("L_exit:\ns_endpgm")
    A("L_end:")

def build():
    A = Asm()
    kernel(A)
    head = ["; generated by dev/gen6.py (single persistent kernel; see that generator for the design notes)",
            f"; @launch grid=(256,1,1) block=(512,1,1) lds={LDS_TOTAL}",
            '.amdgcn_target "amdgcn-amd-amdhsa--gfx950"', ".text"]
    tail = ['.section .rodata,"a"', ".p2align 6", descriptor(NAME, 256, 102)]
    return "\n".join(head) + "\n" + A.text() + "\n".join(tail)

if __name__ == "__main__":
    if "-stamps" in sys.argv: STAMPS = True
    for a in sys.argv:
        if a.startswith("-o="):
            for kv in a[3:].split(","):
                k, v = kv.split(":"); OPT[k] = int(v)
        if a.startswith("-xs="):
            STAMPS = True
            for n, nm in enumerate(a[4:].split(",")): XS[nm] = n + 1
    out = sys.argv[1] if len(sys.argv) > 1 and not sys.argv[1].startswith("-") else "adaLN_cond__ssm_conv_h3__mixer_channel_mlp__prompt.s"
    open(out, "w").write(build())
```

```python
import sys, math, struct
from asmgen import *

MB = 1 << 20
NAME = "adaLN_cond__ssm_conv_h3__mixer_channel_mlp__prompt_kernel"
F_E, F_S2C, F_S2R, F_GVC, F_GVR, F_MOD = 0, 0x1000, 0x3000, 0x5000, 0x7000, 0x10000
F_S3, F_S4A, F_S4B, F_S5, F_S1 = 0x20000, 0x40000, 0x60000, 0x80000, 0xA0000
WS_KVR, WS_YB, WS_X1, WS_Y2F, WS_HF, WS_PART, WS_ST = 1*MB, 5*MB, 9*MB, 13*MB, 17*MB, 32*MB, 48*MB
P = dict(q=4, k=6, v=8, shift=10, ssmk=12, ssmD=14, w1=18, b1=20, w2=22, b2=24, c=26, wmod=28, out=30, ws=34)
WS = "s[36:39]"
SA_, SB_, SC_ = 40, 44, 48
sWAVE, sN, sCT, sTT, sC0 = 52, 53, 54, 55, 56
sCG, sTB = 0, 1
sPF, sDUMMY = 16, 32
PS = 4160; WSZ = 4 * PS; L_Q = 4 * WSZ; L_GW = 102400; L_GS = L_GW + 49152
L_KT = 86016; L_VT = L_KT + 17408; L_TB = L_VT + 16384
L_YS = 86016; L_MOD = 135168; L_ST = 155648; LDS_TOTAL = 156672
L_CNT = L_ST + 192
G1_W, G1_WSLOT, G1_A = 0, 28672, 86016
QR = 240
STAMPS = False
OPT = {}
def opt(k, d=0): return OPT.get(k, d)
def wpol(): return ['', 'nt', 'sc1'][opt('wpol')]
def asc(): return '' if opt('nosc1') else 'sc1'

def f2u(x): return struct.unpack("<I", struct.pack("<f", x))[0]
def srd(A, d, name, nbytes):
    b = P[name]
    A(f"s_mov_b32 s{d}, s{b}\ns_mov_b32 s{d+1}, s{b+1}\ns_mov_b32 s{d+2}, {nbytes}\ns_mov_b32 s{d+3}, 0x20000")
    return f"s[{d}:{d+3}]"
def lo(A, d, s): A(f"v_lshlrev_b32 v{d}, 16, v{s}")
def hi(A, d, s): A(f"v_and_b32 v{d}, 0xffff0000, v{s}")

NSLOT = 15
XS = {}
def xstamp(A, name):
    if STAMPS and name in XS: A(f"s_memrealtime s[{72+2*XS[name]}:{73+2*XS[name]}]")
    if STAMPS and "c:" + name in XS: A(f"s_memtime s[{72+2*XS['c:'+name]}:{73+2*XS['c:'+name]}]")
def stamp(A, slot):
    xstamp(A, str(slot))
    if STAMPS and (slot == 0 or not XS):
        if slot == 0:
            for i in range(1, NSLOT): A(f"s_mov_b32 s{72+2*i}, 0")
        A(f"s_memrealtime s[{72+2*slot}:{73+2*slot}]")
def stamp_flush(A):
    if not STAMPS: return
    A("s_waitcnt lgkmcnt(0)")
    if opt("xcc"):
        l = A.newlabel("nopad"); l2 = A.newlabel("padl")
        A(f"s_cmp_lg_u32 s{sWAVE}, 0\ns_cbranch_scc1 {l}")
        A("s_getreg_b32 s42, hwreg(HW_REG_XCC_ID)\ns_sub_u32 s42, s42, s2\ns_and_b32 s42, s42, 7")
        if opt("xcc") == 2: A("s_sub_u32 s42, 7, s42")
        A("s_mul_i32 s42, s42, 1000\ns_add_u32 s42, s42, 10000")
        A(f"{l2}:")
        A(f"s_memrealtime s[40:41]\ns_waitcnt lgkmcnt(0)\ns_sub_u32 s40, s40, s72\ns_cmp_lt_u32 s40, s42\ns_cbranch_scc1 {l2}")
        A(f"{l}:")
        return
    if opt("pb"):
        l = A.newlabel("nopad"); l2 = A.newlabel("padl")
        A(f"s_cmp_lg_u32 s2, {opt('dbgwg', 37)}\ns_cbranch_scc1 {l}\ns_cmp_lg_u32 s{sWAVE}, 0\ns_cbranch_scc1 {l}")
        A(f"s_sub_u32 s42, s{72+2*opt('pb')}, s{72+2*opt('pa')}\ns_add_u32 s42, s42, 10000")
        A(f"{l2}:")
        A(f"s_memrealtime s[40:41]\ns_waitcnt lgkmcnt(0)\ns_sub_u32 s40, s40, s72\ns_cmp_lt_u32 s40, s42\ns_cbranch_scc1 {l2}")
        A(f"{l}:")
        return
    if opt("pad", -1) >= 0:
        l = A.newlabel("nopad"); l2 = A.newlabel("padl")
        A(f"s_cmp_lg_u32 s2, {opt('dbgwg', 37)}\ns_cbranch_scc1 {l}\ns_cmp_lg_u32 s{sWAVE}, 0\ns_cbranch_scc1 {l}")
        A(f"{l2}:")
        A(f"s_memrealtime s[40:41]\ns_waitcnt lgkmcnt(0)\ns_sub_u32 s40, s40, s{72+2*opt('pad')}\ns_cmp_lt_u32 s40, {opt('padt', 10000)}\ns_cbranch_scc1 {l2}")
        A(f"{l}:")
        return
    if opt("dbgst"):
        l = A.newlabel("nodbg")
        A(f"s_cmp_lg_u32 s2, {opt('dbgwg', 37)}\ns_cbranch_scc1 {l}\ns_cmp_lg_u32 s{sWAVE}, {opt('dbgst')-1}\ns_cbranch_scc1 {l}")
        A("s_mov_b32 s40, s6\ns_mov_b32 s41, s7\ns_mov_b32 s42, 256\ns_mov_b32 s43, 0x20000")
        A("s_mov_b64 exec, 1\nv_mov_b32 v1, 0")
        for i in range(NSLOT):
            A(f"s_sub_u32 s3, s{72+2*i}, s72\nv_mov_b32 v2, s3")
            A(f"buffer_store_dword v2, v1, s[40:43], 0 offen offset:{4*i}")
        A("s_waitcnt vmcnt(0)")
        A(f"{l}:")
        return
    A(f"s_lshl_b32 s3, s2, 9\ns_lshl_b32 s57, s{sWAVE}, 6\ns_add_u32 s3, s3, s57\ns_add_u32 s3, s3, {WS_ST}")
    A("s_mov_b64 exec, 1\nv_mov_b32 v1, 0")
    for i in range(NSLOT):
        A(f"v_mov_b32 v2, s{72+2*i}")
        A(f"buffer_store_dword v2, v1, {WS}, s3 offen offset:{4*i}")
    A("s_waitcnt vmcnt(0)")

def flag_set(A, soff, vt, vl16):
    for i in range(4): A(f"v_mov_b32 v{vt+i}, s{sN}")
    A("s_mov_b64 exec, 0xff")
    A(f"buffer_store_dwordx4 v[{vt}:{vt+3}], v{vl16}, {WS}, {soff} offen sc1")
    A("s_mov_b64 exec, -1")
def poll(A, vaddr, soff, vt, sleep=0):
    l = A.newlabel("poll"); d = A.newlabel("pdone")
    A("s_mov_b32 s57, 0")
    A(f"{l}:")
    A(f"buffer_load_dword v{vt}, v{vaddr}, {WS}, {soff} offen sc1")
    A("s_waitcnt vmcnt(0)")
    A(f"v_cmp_ne_u32 vcc, s{sN}, v{vt}")
    A("s_nop 1")
    A(f"s_cbranch_vccz {d}")
    if sleep: A(f"s_sleep {sleep}")
    A(f"s_add_u32 s57, s57, 1\ns_cmp_lt_u32 s57, 0x40000\ns_cbranch_scc1 {l}")
    A(f"{d}:")
def arrive(A, cbase, rbase, lcnt, vt, vl16, nw=4):
    d = A.newlabel("arr")
    A(f"v_mov_b32 v{vt}, 1\nv_mov_b32 v{vt+1}, {lcnt}\ns_mov_b64 exec, 1")
    A(f"ds_add_rtn_u32 v{vt+2}, v{vt+1}, v{vt}")
    A(f"s_lshl_b32 s57, s{sCT}, 7\ns_add_u32 s58, s57, {cbase}\ns_add_u32 s59, s57, {rbase}")
    A(f"s_waitcnt lgkmcnt(0)\nv_readfirstlane_b32 s57, v{vt+2}")
    A(f"s_cmp_lg_u32 s57, {nw-1}\ns_cbranch_scc1 {d}")
    A(f"buffer_atomic_add v{vt}, v{vl16}, {WS}, s58 offen sc0 sc1")
    A("s_waitcnt vmcnt(0)")
    A(f"v_readfirstlane_b32 s57, v{vt}")
    A(f"s_sub_u32 s57, s57, s{sC0}\ns_cmp_lg_u32 s57, 15\ns_cbranch_scc1 {d}")
    A("s_mov_b64 exec, -1")
    flag_set(A, "s59", vt, vl16)
    A(f"{d}:")
    A("s_mov_b64 exec, -1")

def stats4(A, X, R):
    for i in range(4):
        A(f"v_add_f32 v{R+i}, v{X+4*i}, v{X+4*i+1}")
        A(f"v_mul_f32 v{R+4+i}, v{X+4*i}, v{X+4*i}")
    for c in (2, 3):
        for i in range(4): A(f"v_add_f32 v{R+i}, v{R+i}, v{X+4*i+c}")
    for c in (1, 2, 3):
        for i in range(4): A(f"v_fmac_f32 v{R+4+i}, v{X+4*i+c}, v{X+4*i+c}")
DPPM = "row_mask:0xf bank_mask:0xf"
def red_part1(A, R, vW, off):
    for e in range(4): A(f"v_permlane32_swap_b32 v{R+e}, v{R+e+4}")
    for e in range(4): A(f"v_add_f32 v{R+e}, v{R+e}, v{R+e+4}")
    for e in range(2): A(f"v_permlane16_swap_b32 v{R+e}, v{R+e+2}")
    for e in range(2): A(f"v_add_f32 v{R+e}, v{R+e}, v{R+e+2}")
    for m in ("row_ror:8", "quad_perm:[1,0,3,2]", "quad_perm:[2,3,0,1]"):
        for e in range(2): A(f"v_add_f32_dpp v{R+e}, v{R+e}, v{R+e} {m} {DPPM}")
    A("s_mov_b32 exec_lo, 0x00110011\ns_mov_b32 exec_hi, 0x00110011")
    A(f"ds_add_f32 v{vW}, v{R} offset:{off}\nds_add_f32 v{vW}, v{R+1} offset:{off+4}")
    A("s_mov_b64 exec, -1")
def red_part2(A, vRd, off, tmp):
    A(f"ds_read2_b32 v[{tmp}:{tmp+1}], v{vRd} offset0:{off//4} offset1:{off//4 + 4}")
    A("s_waitcnt lgkmcnt(0)")
    A(f"v_mul_f32 v{tmp}, {f2u(1/1024):#x}, v{tmp}")
    A(f"v_mul_f32 v{tmp+2}, v{tmp}, v{tmp}")
    A(f"v_mul_f32 v{tmp+1}, {f2u(1/1024):#x}, v{tmp+1}")
    A(f"v_sub_f32 v{tmp+1}, v{tmp+1}, v{tmp+2}")
    A(f"v_max_f32 v{tmp+1}, 0, v{tmp+1}")
    A(f"v_add_f32 v{tmp+1}, {f2u(1e-5):#x}, v{tmp+1}")
    A(f"v_rsq_f32 v{tmp+1}, v{tmp+1}")
def qp(i): return f"quad_perm:[{i},{i},{i},{i}] {DPPM}"
def normalize(A, D, X, st, G=None, S=None):
    for i in range(4):
        for c in range(4): A(f"v_subrev_f32_dpp v{D+4*i+c}, v{st}, v{X+4*i+c} {qp(i)}")
    for i in range(4):
        for c in range(4): A(f"v_mul_f32_dpp v{D+4*i+c}, v{st+1}, v{D+4*i+c} {qp(i)}")
    if G is not None:
        for i in range(4):
            for c in range(0, 4, 2): A(f"v_pk_fma_f32 v[{D+4*i+c}:{D+4*i+c+1}], v[{D+4*i+c}:{D+4*i+c+1}], v[{G+c}:{G+c+1}], v[{S+c}:{S+c+1}]")
LX = 16
LR = 32
vSTW, vSTR, vCG, vHF = 4, 5, 6, 7
def ln_ids(A, cg, hf):
    A(f"v_lshrrev_b32 v{cg}, 3, v0\nv_and_b32 v{hf}, 3, v0\nv_lshl_add_u32 v{cg}, v{cg}, 2, v{hf}\nv_bfe_u32 v{hf}, v0, 2, 1")
def q_addr(A, vt):
    srd(A, SC_, "q", 4*MB)
    ln_ids(A, vt, vt+1)
    A(f"v_lshlrev_b32 v{vt}, 3, v{vt}\nv_lshl_add_u32 v{vt}, v{vt+1}, 13, v{vt}")
    A(f"s_lshl_b32 s3, s{sTB}, 14\nv_add_u32 v{vt}, s3, v{vt}\nv_add_u32 v{vt+1}, 4096, v{vt}")
def q_issue(A, vt):
    for i in range(4):
        A(f"buffer_load_dwordx2 v[{QR+2*i}:{QR+2*i+1}], v{vt+i//2}, s[{SC_}:{SC_+3}], 0 offen offset:{(i%2)*2048} nt")
def ln0_part1(A):
    ln_ids(A, vCG, vHF)
    A(f"v_lshrrev_b32 v{vSTW}, 4, v2\nv_lshlrev_b32 v{vSTW}, 3, v{vSTW}\nv_lshl_add_u32 v{vSTW}, v{vHF}, 5, v{vSTW}\nv_add_u32 v{vSTW}, {L_ST}, v{vSTW}")
    A(f"v_and_b32 v{vSTR}, 3, v0\nv_lshlrev_b32 v{vSTR}, 2, v{vSTR}\nv_lshl_add_u32 v{vSTR}, v{vHF}, 5, v{vSTR}\nv_add_u32 v{vSTR}, {L_ST}, v{vSTR}")
    for i in range(4):
        lo(A, LX+4*i, QR+2*i); hi(A, LX+4*i+1, QR+2*i); lo(A, LX+4*i+2, QR+2*i+1); hi(A, LX+4*i+3, QR+2*i+1)
    stats4(A, LX, LR)
    red_part1(A, LR, vSTW, 0)
def x1_store(A):
    if opt("nox1"):
        for j in range(2): A(f"buffer_load_dword v250, v2, {WS}, 0 offen")
        return
    for j in range(2): A(f"buffer_store_dwordx4 v[{QR+4*j}:{QR+4*j+3}], v{248+j}, {WS}, 0 offen sc1")
def sprefetch(A, n, adv):
    for k in range(n): A(f"s_load_dword s{sDUMMY}, s[{sPF}:{sPF+1}], {k*64}")
    A(f"s_add_u32 s{sPF}, s{sPF}, {adv}\ns_addc_u32 s{sPF+1}, s{sPF+1}, 0")

def tile_ids(A, which):
    A("s_and_b32 s57, s2, 7\ns_lshr_b32 s58, s2, 3")
    if opt("loc"):
        A("s_and_b32 s60, s2, 15")
        if which == 1:
            A("s_lshr_b32 s61, s2, 4")
            A("s_mul_i32 s62, s61, 448\ns_and_b32 s3, s61, 1\ns_cmp_eq_u32 s3, 0")
            A("s_cselect_b32 s63, 384, 0\ns_cselect_b32 s3, 0, 64\ns_add_u32 s63, s63, s62\ns_add_u32 s62, s62, s3")
        else:
            A("s_bfe_u32 s61, s2, 0x10004\ns_lshr_b32 s62, s2, 5\ns_lshl_b32 s62, s62, 8\ns_lshl_b32 s3, s61, 7\ns_add_u32 s62, s62, s3\ns_xor_b32 s63, s62, 128")
    elif which == 1:
        A("s_and_b32 s60, s57, 1\ns_lshl_b32 s60, s60, 3\ns_and_b32 s3, s58, 7\ns_add_u32 s60, s60, s3")
        A("s_lshr_b32 s61, s57, 1\ns_lshl_b32 s61, s61, 2\ns_lshr_b32 s3, s58, 3\ns_add_u32 s61, s61, s3")
        A("s_mul_i32 s62, s61, 448\ns_and_b32 s3, s61, 1\ns_cmp_eq_u32 s3, 0")
        A("s_cselect_b32 s63, 384, 0\ns_cselect_b32 s3, 0, 64\ns_add_u32 s63, s63, s62\ns_add_u32 s62, s62, s3")
    else:
        A("s_lshr_b32 s60, s57, 1\ns_lshl_b32 s60, s60, 2\ns_and_b32 s3, s58, 3\ns_add_u32 s60, s60, s3")
        A("s_and_b32 s61, s57, 1\ns_lshr_b32 s62, s58, 2\ns_lshl_b32 s62, s62, 8\ns_lshl_b32 s3, s61, 7\ns_add_u32 s62, s62, s3\ns_xor_b32 s63, s62, 128")

G1_NST = 16
G1_ASLOT, G1_USZ, G1_HOFF = 16384, 8192, 24576
PVA, PVW = 200, 204
def unit_lane_off(A, t, rs):
    A(f"v_lshrrev_b32 v{t}, 3, v2\nv_lshrrev_b32 v{t+1}, 1, v{t}\nv_lshlrev_b32 v{t+1}, 1, v{t+1}\nv_and_b32 v{t+2}, 7, v2\nv_xor_b32 v{t+1}, v{t+1}, v{t+2}\nv_lshlrev_b32 v{t+1}, 4, v{t+1}")
    A(f"s_movk_i32 s3, {rs}\nv_mul_lo_u32 v{t}, v{t}, s3\nv_add_u32 v{t}, v{t}, v{t+1}")
def g1_prod_setup(A):
    RS = 7168
    A(f"s_sub_u32 s64, s{sWAVE}, 4")
    A(f"s_lshl_b32 s3, s60, 3\ns_lshl_b32 s57, s64, 1\ns_add_u32 s3, s3, s57\ns_lshl_b32 s3, s3, 15\ns_add_u32 s3, s3, {WS_Y2F}")
    A(f"v_lshlrev_b32 v{PVA}, 4, v2\nv_add_u32 v{PVA}, s3, v{PVA}\nv_add_u32 v{PVA+1}, {32*1024}, v{PVA}")
    t = 212
    unit_lane_off(A, t, RS)
    A(f"s_mul_i32 s3, s64, {16*RS}\ns_add_u32 s3, s3, s62\nv_add_u32 v{t}, s3, v{t}")
    for u in range(3):
        for rgi in range(2):
            A(f"v_add_u32 v{PVW+u*2+rgi}, {u*128 + rgi*8*RS - rgi*1024}, v{t}")
    A(f"v_lshrrev_b32 v{t}, 2, v2\nv_bfe_u32 v{t+1}, v2, 4, 1\nv_and_b32 v{t+2}, 3, v2\nv_xor_b32 v{t+1}, v{t+1}, v{t+2}\nv_lshlrev_b32 v{t+1}, 4, v{t+1}")
    A(f"s_movk_i32 s3, {RS}\nv_mul_lo_u32 v{t}, v{t}, s3\nv_add_u32 v{t}, v{t}, v{t+1}")
    A(f"s_mul_i32 s3, s64, {16*RS}\ns_add_u32 s3, s3, s63\nv_add_u32 v{PVW+6}, s3, v{t}")
    A("s_mov_b32 s65, 0\ns_mov_b32 s66, 0")
    A(f"s_lshl_b32 s67, s64, 12\ns_add_u32 s67, s67, {G1_A}")
    A(f"s_lshl_b32 s68, s64, 11")
    A(f"s_lshl_b32 s69, s64, 10\ns_sub_u32 s69, {G1_HOFF}, s69")
    A(f"s_add_u32 s70, s67, {3*G1_ASLOT}\ns_add_u32 s71, s68, {3*G1_WSLOT}")
    srd(A, SA_, "w1", 1024*7168)
def g1_issue_w(A):
    for u in range(3):
        A(f"s_add_u32 m0, s68, {u*G1_USZ}")
        for rgi in range(2):
            A(f"buffer_load_dwordx4 v{PVW+u*2+rgi}, s[{SA_}:{SA_+3}], s66 offen offset:{rgi*1024} {wpol()} lds")
    A("s_add_u32 m0, s68, s69")
    A(f"buffer_load_dwordx4 v{PVW+6}, s[{SA_}:{SA_+3}], s66 offen {wpol()} lds")
    A(f"s_add_u32 s66, s66, {64*7168}")
    A(f"s_add_u32 s68, s68, {G1_WSLOT}\ns_cmp_eq_u32 s68, s71\ns_cselect_b32 s3, {3*G1_WSLOT}, 0\ns_sub_u32 s68, s68, s3")
def g1_issue_a(A):
    for h in range(2):
        A(f"s_add_u32 m0, s67, {h*2048}")
        for ks in range(2):
            A(f"buffer_load_dwordx4 v{PVA+h}, {WS}, s65 offen offset:{ks*1024} {asc()} lds")
    A("s_add_u32 s65, s65, 2048")
    A(f"s_add_u32 s67, s67, {G1_ASLOT}\ns_cmp_eq_u32 s67, s70\ns_cselect_b32 s3, {3*G1_ASLOT}, 0\ns_sub_u32 s67, s67, s3")
def g1_prod_main(A):
    NI = 11
    g1_issue_a(A); g1_issue_a(A); g1_issue_w(A); g1_issue_a(A)
    x1_store(A)
    s2_ = srd(A, SB_, "w2", 3584*2048)
    A("s_mul_i32 s48, s2, 224\ns_mul_i32 s57, s64, 56\ns_add_u32 s48, s48, s57\ns_lshl_b32 s48, s48, 7")
    A("v_min_u32 v50, 55, v2\nv_lshlrev_b32 v50, 7, v50")
    A(f"s_lshr_b32 s49, s2, 3\ns_and_b32 s49, s49, 7\ns_add_u32 s49, s49, {opt('evat', 2)}")
    A(f"s_add_u32 s3, s49, {8 - opt('evat', 2)}\ns_lshl_b32 s3, s3, 3\ns_and_b32 s57, s2, 1\ns_lshl_b32 s57, s57, 2\ns_add_u32 s3, s3, s57\ns_lshr_b32 s57, s2, 6\ns_add_u32 s3, s3, s57\ns_lshl_b32 s3, s3, 2\ns_add_u32 s3, s3, s64\ns_lshl_b32 s3, s3, 1")
    A("v_bfe_u32 v52, v2, 4, 1\nv_add_u32 v52, s3, v52\ns_movk_i32 s3, 7168\nv_mul_lo_u32 v52, v52, s3\nv_and_b32 v53, 15, v2\nv_min_u32 v53, 13, v53\nv_lshl_add_u32 v52, v53, 7, v52")
    A("s_bfe_u32 s50, s2, 0x20001\ns_mul_i32 s50, s50, 1792")
    A(f"s_waitcnt vmcnt({6+NI})\ns_barrier")
    A("s_mov_b32 s59, 0")
    l = A.newlabel("ploop"); l2 = A.newlabel("pnp")
    A(f"{l}:")
    A(f"s_waitcnt vmcnt({NI})\ns_barrier")
    g1_issue_w(A); g1_issue_a(A)
    if not opt("nopf2"):
        A(f"s_cmp_lg_u32 s59, s49\ns_cbranch_scc1 {l2}")
        if not opt("nopf3"): A(f"buffer_load_dword v53, v52, s[{SA_}:{SA_+3}], s50 offen")
        A(f"buffer_load_dword v51, v50, {s2_}, s48 offen")
        A(f"{l2}:")
    A(f"s_add_u32 s59, s59, 1\ns_cmp_lg_u32 s59, 13\ns_cbranch_scc1 {l}")
    A(f"s_waitcnt vmcnt({NI})\ns_barrier")
    A(f"s_waitcnt vmcnt(0)\ns_barrier")
    A("s_barrier")

def tr_base(A):
    A("v_lshrrev_b32 v3, 4, v2\nv_and_b32 v4, 15, v2")
    A("v_lshrrev_b32 v6, 2, v2\nv_and_b32 v6, 7, v6\nv_lshrrev_b32 v7, 1, v6\nv_lshlrev_b32 v7, 5, v7\nv_lshl_add_u32 v7, v6, 7, v7")
    A("v_and_b32 v8, 3, v2\nv_lshl_add_u32 v7, v8, 3, v7\nv_lshrrev_b32 v9, 5, v2\nv_lshl_add_u32 v7, v9, 10, v7")
def interleave(A, mf, fill, per):
    n = 0
    for m in mf:
        A(m)
        for _ in range(per(n)):
            if n < len(fill): A(fill[n]); n += 1
    while n < len(fill): A(fill[n]); n += 1

def sched(A, mf, slots):
    for n, m in enumerate(mf):
        A(m)
        for l in slots.get(n, []): A(l)
def align8(A):
    A.raw(".p2align 3")

def g1_consumer(A, st0):
    NT = 7
    tile_ids(A, 1)
    A(f"s_and_b32 s64, s{sWAVE}, 1\ns_lshr_b32 s65, s{sWAVE}, 1")
    tr_base(A)
    vA, VT, TC = 5, 10, 44
    A(f"s_lshl_b32 s3, s64, 13\ns_add_u32 s3, s3, {G1_A}\nv_lshlrev_b32 v5, 4, v2\nv_add_u32 v5, s3, v5")
    A(f"s_lshl_b32 s3, s65, 14")
    for cb in range(4):
        A(f"v_xor_b32 v{VT+cb}, {cb*32}, v7\nv_add_u32 v{VT+cb}, s3, v{VT+cb}")
    A("s_lshl_b32 s3, s65, 6")
    for e in range(2):
        A(f"v_xor_b32 v{VT+4+e}, s3, v7\nv_xor_b32 v{VT+4+e}, {e*32}, v{VT+4+e}\nv_add_u32 v{VT+4+e}, {G1_USZ}, v{VT+4+e}")
    A("v_and_b32 v9, 2, v8\nv_or_b32 v9, s65, v9\nv_and_b32 v6, 1, v3\nv_xor_b32 v9, v9, v6\nv_lshlrev_b32 v9, 4, v9")
    A(f"v_lshrrev_b32 v6, 2, v2\nv_lshl_add_u32 v9, v6, 6, v9\nv_and_b32 v6, 1, v8\nv_lshl_add_u32 v9, v6, 3, v9\nv_add_u32 v{VT+6}, {G1_HOFF}, v9")
    A(f"s_lshl_b32 s3, s65, 8\ns_add_u32 s{TC}, s62, s3")
    for cb in range(1, 4): A(f"s_add_u32 s{TC+cb}, s{TC}, {cb*32}")
    A(f"s_lshl_b32 s3, s65, 6\ns_add_u32 s{TC+4}, s62, s3\ns_add_u32 s{TC+4}, s{TC+4}, 128\ns_add_u32 s{TC+5}, s{TC+4}, 32")
    A(f"s_lshl_b32 s3, s65, 4\ns_add_u32 s{TC+6}, s63, s3")
    ACC = 20
    FA = [ACC + 16*NT, ACC + 16*NT + 16]
    FW = [FA[1] + 16, FA[1] + 16 + 4*NT]
    sb = srd(A, SA_, "b1", 7168)
    A("v_lshlrev_b32 v6, 3, v3\nv_and_b32 v9, 1, v3\nv_lshlrev_b32 v9, 3, v9\nv_lshrrev_b32 v17, 1, v3\nv_lshl_add_u32 v9, v17, 5, v9")
    for t in range(NT):
        A(f"buffer_load_dwordx2 v[{FW[1]+2*t}:{FW[1]+2*t+1}], v{6 if t < 6 else 9}, {sb}, s{TC+t} offen")
    A("s_waitcnt vmcnt(0)")
    for t in range(NT):
        a = ACC + 4*t
        lo(A, a, FW[1]+2*t); hi(A, a+1, FW[1]+2*t); lo(A, a+2, FW[1]+2*t+1); hi(A, a+3, FW[1]+2*t+1)
    for i in range(1, 4):
        for t in range(NT):
            for r in range(4): A(f"v_mov_b32 v{ACC+4*(i*NT+t)+r}, v{ACC+4*t+r}")
    def reads(ks, buf):
        aa = [f"ds_read_b128 v[{FA[buf]+4*i}:{FA[buf]+4*i+3}], v{vA} offset:{(i*2+ks)*1024}" for i in range(4)]
        ww = []
        for t in range(NT):
            o0, d = (ks*2048, 1024) if t == 6 else (ks*4096, 2048)
            ww.append(f"ds_read_b64_tr_b16 v[{FW[buf]+4*t}:{FW[buf]+4*t+1}], v{VT+t} offset:{o0}")
            ww.append(f"ds_read_b64_tr_b16 v[{FW[buf]+4*t+2}:{FW[buf]+4*t+3}], v{VT+t} offset:{o0+d}")
        return aa + ww
    A(f"s_mov_b32 s59, {G1_NST-1}\ns_mov_b32 s58, 1\ns_mov_b32 s66, {G1_ASLOT}\ns_mov_b32 s67, {G1_WSLOT}")
    A(f"s_mov_b32 s70, {-2*G1_ASLOT & 0xffffffff}\ns_mov_b32 s71, {-2*G1_WSLOT & 0xffffffff}\ns_mov_b32 s68, s66\ns_mov_b32 s69, s67")
    A("s_barrier")
    stamp(A, st0)
    for l in reads(0, 0): A(l)
    x1_store(A)
    A("s_waitcnt lgkmcnt(0)")
    align8(A)
    start = len(A.lines)
    lp = A.newlabel("cloop")
    A(f"{lp}:")
    for ks in range(2):
        rd = reads(ks ^ 1, ks ^ 1)
        mf = [f"v_mfma_f32_16x16x32_bf16 v[{ACC+4*(i*NT+t)}:{ACC+4*(i*NT+t)+3}], v[{FW[ks]+4*t}:{FW[ks]+4*t+3}], v[{FA[ks]+4*i}:{FA[ks]+4*i+3}], v[{ACC+4*(i*NT+t)}:{ACC+4*(i*NT+t)+3}]"
              for i in range(4) for t in range(NT)]
        sl = {n: [rd[n]] for n in range(18)}
        if ks == 0:
            ad = [f"v_add_u32 v{vA}, s68, v{vA}"] + [f"v_add_u32 v{VT+t}, s69, v{VT+t}" for t in range(NT)]
            for n in range(4): sl[18+n] = ad[2*n:2*n+2]
            sl[25] = ["s_waitcnt lgkmcnt(0)", "s_barrier"]
        else:
            sl[18] = ["s_add_u32 s58, s58, 1", "s_cmp_eq_u32 s58, 3"]
            sl[19] = ["s_cselect_b32 s58, 0, s58", "s_cselect_b32 s68, s70, s66"]
            sl[20] = ["s_cselect_b32 s69, s71, s67", "s_sub_u32 s59, s59, 1"]
            sl[26] = ["s_waitcnt lgkmcnt(0)", "s_nop 0"]
        sched(A, mf, sl)
    A(f"s_cbranch_scc0 {lp}")
    check_loop(A.lines[start:])
    stamp(A, st0 + 1)
    c0 = -2.0 * 1.4426950408889634 * math.sqrt(2.0 / math.pi)
    A(f"v_mov_b32 v12, {f2u(c0*0.044715):#x}\nv_mov_b32 v13, v12\nv_mov_b32 v14, {f2u(c0):#x}\nv_mov_b32 v15, v14")
    A(f"s_lshl_b32 s3, s60, 3\ns_lshl_b32 s57, s64, 2\ns_add_u32 s3, s3, s57\ns_mul_i32 s3, s3, {112*1024}\ns_add_u32 s3, s3, {WS_HF}")
    A("v_lshlrev_b32 v9, 4, v2\nv_add_u32 v7, s3, v9")
    A(f"v_lshrrev_b32 v8, 5, v2\nv_mul_u32_u24 v8, {112*1024 - 512}, v8\nv_add_u32 v8, v8, v7\ns_lshl_b32 s3, s65, 9\nv_add_u32 v8, s3, v8")
    A(f"s_lshl_b32 s{TC}, s{TC}, 4\ns_lshl_b32 s{TC+2}, s{TC+2}, 4\ns_lshl_b32 s{TC+4}, s{TC+4}, 4\ns_lshl_b32 s{TC+6}, s63, 4")
    A(f"s_lshl_b32 s66, s60, 4\ns_add_u32 s66, s66, s61\ns_lshl_b32 s66, s66, 2\ns_add_u32 s66, s66, s{sWAVE}\ns_lshl_b32 s66, s66, 7")
    A(f"s_add_u32 s67, s66, {F_S4B}\ns_add_u32 s66, s66, {F_S4A}")
    T = FA[0]; O = FW[0]
    def gelu8(srcs, o):
        pr = lambda r: f"v[{r}:{r+1}]"
        for e, a in enumerate(srcs): A(f"v_pk_mul_f32 {pr(T+2*e)}, {pr(a)}, {pr(a)}")
        for e, a in enumerate(srcs): A(f"v_pk_fma_f32 {pr(T+2*e)}, {pr(T+2*e)}, v[12:13], v[14:15]")
        for e, a in enumerate(srcs): A(f"v_pk_mul_f32 {pr(T+2*e)}, {pr(T+2*e)}, {pr(a)}")
        for e in range(8): A(f"v_exp_f32 v{T+e}, v{T+e}")
        for e in range(4): A(f"v_pk_add_f32 {pr(T+2*e)}, {pr(T+2*e)}, 1.0 op_sel_hi:[1,0]")
        for e in range(8): A(f"v_rcp_f32 v{T+e}, v{T+e}")
        for e, a in enumerate(srcs): A(f"v_pk_mul_f32 {pr(T+2*e)}, {pr(T+2*e)}, {pr(a)}")
        for e in range(4): A(f"v_cvt_pk_bf16_f32 v{o+e}, v{T+2*e}, v{T+2*e+1}")
    cnt = 0
    for pr_ in (2, 0, 1):
        for i in range(4):
            a = ACC + 4*(i*NT + 2*pr_)
            o = O + 4*(cnt % 4); cnt += 1
            gelu8([a, a+2, a+4, a+6], o)
            A(f"s_add_u32 s3, s{TC+2*pr_}, {i*112*1024}")
            A(f"buffer_store_dwordx4 v[{o}:{o+3}], v7, {WS}, s3 offen sc1")
            xstamp(A, f"ge{cnt}")
            if cnt == EARLY_AT:
                A(f"s_waitcnt vmcnt({EARLY_AT-4})")
                flag_set(A, "s66", 16, 9)
                A(f"v_mov_b32 v10, {L_CNT+12}\nv_mov_b32 v11, 1\nds_write_b32 v10, v11")
                xstamp(A, "gef")
    for i in (0, 2):
        a = ACC + 4*(i*NT + 6); b = ACC + 4*((i+1)*NT + 6)
        o = O + 4*(cnt % 4); cnt += 1
        gelu8([a, a+2, b, b+2], o)
        A(f"v_permlane32_swap_b32 v{o}, v{o+2}\nv_permlane32_swap_b32 v{o+1}, v{o+3}")
        A(f"s_add_u32 s3, s{TC+6}, {i*112*1024}")
        A(f"buffer_store_dwordx4 v[{o}:{o+3}], v8, {WS}, s3 offen sc1")
    stamp(A, st0 + 2)
EARLY_AT = 8

G2_SLOT = 32768
def g2_unit(s):
    if s < 8: return 7*(s >> 1) + (5 if s & 1 else 1), True
    if s < 24: return 7*((s-8) >> 2) + 2*((s-8) & 3), True
    return 7*(s-24) + 3, False
def g2_producer(A):
    tile_ids(A, 2)
    A(f"s_lshl_b32 s3, s60, 3\ns_lshl_b32 s57, s64, 1\ns_add_u32 s3, s3, s57\ns_mul_i32 s3, s3, {112*1024}\ns_add_u32 s3, s3, {WS_HF}")
    A(f"v_lshlrev_b32 v{PVA}, 4, v2\nv_add_u32 v{PVA}, s3, v{PVA}\nv_add_u32 v{PVA+1}, {112*1024}, v{PVA}")
    t = 212
    unit_lane_off(A, t, 2048)
    A(f"s_lshl_b32 s3, s64, 15\nv_add_u32 v{t}, s3, v{t}")
    A(f"v_add_u32 v{PVW}, s62, v{t}\nv_add_u32 v{PVW+1}, {16384-1024}, v{PVW}\nv_add_u32 v{PVW+2}, s63, v{t}\nv_add_u32 v{PVW+3}, {16384-1024}, v{PVW+2}")
    A(f"s_mul_i32 s65, s61, {28*2048}\ns_mul_i32 s66, s61, {28*131072}")
    A(f"s_lshl_b32 s67, s64, 12\ns_lshl_b32 s68, s64, 11\ns_add_u32 s68, s68, 16384")
    sw = srd(A, SA_, "w2", 3584*2048)
    def iw(s):
        u, p1 = g2_unit(s)
        A(f"s_add_u32 s69, s66, {u*131072}" if p1 else f"s_mov_b32 s69, {u*131072}")
        for un in range(2 if p1 else 1):
            A(f"s_add_u32 m0, s68, {(s & 3)*G2_SLOT + un*8192}")
            for rgi in range(2):
                A(f"buffer_load_dwordx4 v{PVW+2*un+rgi}, {sw}, s69 offen offset:{rgi*1024} {wpol()} lds")
        return 4 if p1 else 2
    def ia(s):
        u, p1 = g2_unit(s)
        A(f"s_add_u32 s70, s65, {u*2048}" if p1 else f"s_mov_b32 s70, {u*2048}")
        for h in range(2):
            A(f"s_add_u32 m0, s67, {(s & 3)*G2_SLOT + h*2048}")
            for ks in range(2):
                A(f"buffer_load_dwordx4 v{PVA+h}, {WS}, s70 offen offset:{ks*1024} {asc()} lds")
        return 4
    for s in range(4): iw(s)
    A(f"v_and_b32 v46, 15, v2\nv_lshlrev_b32 v46, 8, v46\nv_and_b32 v47, 31, v2\nv_lshlrev_b32 v47, 8, v47")
    A(f"s_lshl_b32 s71, s60, 13\ns_lshr_b32 s3, s64, 1\ns_lshl_b32 s3, s3, 7\ns_add_u32 s71, s71, s3\ns_lshl_b32 s3, s61, 12\ns_add_u32 s3, s3, s71\ns_add_u32 s3, s3, {F_S4A}\ns_add_u32 s71, s71, {F_S4B}")
    stamp(A, 11)
    l = A.newlabel("wef")
    A(f"v_mov_b32 v48, {L_CNT+12}")
    A(f"{l}:")
    A(f"s_sleep 2\nds_read_b32 v49, v48\ns_waitcnt lgkmcnt(0)\nv_readfirstlane_b32 s57, v49\ns_cmp_eq_u32 s57, 0\ns_cbranch_scc1 {l}")
    poll(A, 46, "s3", 48, 1)
    stamp(A, 12)
    q = []
    for s in range(4): q.append([s, ia(s)])
    def wait_for(stage):
        n = sum(c for st, c in q if st > stage)
        A(f"s_waitcnt vmcnt({n})")
    wait_for(0); A("s_barrier")
    for s in range(32):
        if s + 1 < 32: wait_for(s + 1)
        A("s_barrier")
        n = s + 4
        if n == 7:
            A(f"buffer_load_dword v48, v47, {WS}, s71 offen sc1"); q.append([6.5, 1])
        if n == 8:
            wait_for(6.5)
            d = A.newlabel("s4ok")
            A(f"v_cmp_ne_u32 vcc, s{sN}, v48\ns_nop 1\ns_cbranch_vccz {d}")
            poll(A, 47, "s71", 48)
            A(f"{d}:")
        if n < 32:
            c = iw(n) + ia(n); q.append([n, c])


def g2_consumer(A, st0):
    ACC, FA, FW, XR, GB, PR, vPL = 20, [84, 100], [116, 132], 148, 164, 172, 204
    tile_ids(A, 2)
    tr_base(A)
    vA, VT, TC = 5, 10, 44
    A(f"s_lshl_b32 s3, s64, 13\nv_lshlrev_b32 v9, 4, v2\nv_add_u32 v5, s3, v9")
    A("s_lshl_b32 s3, s65, 6")
    for e in range(2):
        A(f"v_xor_b32 v{VT+e}, s3, v7\nv_xor_b32 v{VT+e}, {e*32}, v{VT+e}\nv_add_u32 v{VT+e}, 16384, v{VT+e}")
    A(f"s_add_u32 s{TC}, s62, s3\ns_add_u32 s{TC+1}, s{TC}, 32")
    sb = srd(A, SA_, "b2", 2048)
    A("v_lshlrev_b32 v6, 3, v3\nv_lshlrev_b32 v18, 4, v3")
    for t in range(2): A(f"buffer_load_dwordx2 v[{FW[1]+2*t}:{FW[1]+2*t+1}], v6, {sb}, s{TC+t} offen")
    for t in range(2):
        A(f"s_lshl_b32 s3, s{TC+t}, 1\ns_add_u32 s3, s3, {F_MOD + 5*4096}")
        A(f"buffer_load_dwordx4 v[{GB+4*t}:{GB+4*t+3}], v18, {WS}, s3 offen sc1")
    A(f"s_xor_b32 s3, s2, {16 if opt('loc') else 1}\ns_lshl_b32 s3, s3, 2\ns_add_u32 s3, s3, s{sWAVE}\ns_lshl_b32 s46, s3, 13\ns_add_u32 s46, s46, {WS_PART}\ns_lshl_b32 s47, s3, 7\ns_add_u32 s47, s47, {F_S5}")
    A(f"s_lshl_b32 s3, s2, 2\ns_add_u32 s3, s3, s{sWAVE}\ns_lshl_b32 s48, s3, 13\ns_add_u32 s48, s48, {WS_PART}\ns_lshl_b32 s49, s3, 7\ns_add_u32 s49, s49, {F_S5}")
    A("v_mov_b32 v19, 0")
    A("s_waitcnt vmcnt(0)")
    flag_set(A, "s67", 12, 9)
    xstamp(A, "s4b")
    for t in range(2):
        a = ACC + 4*t
        lo(A, a, FW[1]+2*t); hi(A, a+1, FW[1]+2*t); lo(A, a+2, FW[1]+2*t+1); hi(A, a+3, FW[1]+2*t+1)
    for i in range(4):
        for t in range(4):
            if i == 0 and t < 2: continue
            for r in range(4): A(f"v_mov_b32 v{ACC+4*(i*4+t)+r}, " + (f"v{ACC+4*t+r}" if t < 2 else "0"))
    for e in range(8): A(f"v_cvt_pk_bf16_f32 v{GB+e}, v{GB+e}, v{GB+e}\nv_lshlrev_b32 v{GB+e}, 16, v{GB+e}")
    def reads(ks, buf, nt):
        aa = [f"ds_read_b128 v[{FA[buf]+4*i}:{FA[buf]+4*i+3}], v{vA} offset:{(i*2+ks)*1024}" for i in range(4)]
        ww = []
        for t in range(nt):
            o0 = ks*4096 + (t >> 1)*8192
            ww.append(f"ds_read_b64_tr_b16 v[{FW[buf]+4*t}:{FW[buf]+4*t+1}], v{VT+(t&1)} offset:{o0}")
            ww.append(f"ds_read_b64_tr_b16 v[{FW[buf]+4*t+2}:{FW[buf]+4*t+3}], v{VT+(t&1)} offset:{o0+2048}")
        return aa + ww
    def stage_body(nt):
        for ks in range(2):
            rd = reads(ks ^ 1, ks ^ 1, nt)
            mf = [f"v_mfma_f32_16x16x32_bf16 v[{ACC+4*(i*4+t)}:{ACC+4*(i*4+t)+3}], v[{FW[ks]+4*t}:{FW[ks]+4*t+3}], v[{FA[ks]+4*i}:{FA[ks]+4*i+3}], v[{ACC+4*(i*4+t)}:{ACC+4*(i*4+t)+3}]"
                  for i in range(4) for t in range(nt)]
            ad = [f"v_add_u32 v{vA}, s68, v{vA}", f"v_add_u32 v{VT}, s68, v{VT}", f"v_add_u32 v{VT+1}, s68, v{VT+1}", "s_nop 0"]
            sa = ["s_add_u32 s58, s58, 1", "s_and_b32 s58, s58, 3", "s_cselect_b32 s68, s66, s70", "s_sub_u32 s59, s59, 1"]
            ex = ad if ks == 0 else sa
            if nt == 4:
                sl = {0: rd[0:2], 1: rd[2:4], 2: rd[4:6], 3: rd[6:8], 4: rd[8:9], 5: rd[9:10], 6: rd[10:11], 7: rd[11:12], 8: ex[0:2], 9: ex[2:4]}
                sl[14] = ["s_waitcnt lgkmcnt(0)", "s_barrier" if ks == 0 else "s_nop 0"]
            else:
                sl = {0: rd[0:3], 1: rd[3:6], 2: rd[6:8], 3: ex[0:2], 4: ex[2:4]}
                sl[7] = ["s_waitcnt lgkmcnt(0)", "s_barrier"] if ks == 0 else ["s_waitcnt lgkmcnt(0)"]
            sched(A, mf, sl)
    A(f"s_mov_b32 s59, 23\ns_mov_b32 s58, 1\ns_mov_b32 s66, {G2_SLOT}\ns_mov_b32 s68, s66\ns_mov_b32 s70, {-3*G2_SLOT & 0xffffffff}")
    A(f"s_lshl_b32 s3, s60, 18\ns_lshl_b32 s57, s64, 17\ns_add_u32 s3, s3, s57")
    A("v_lshlrev_b32 v17, 11, v4\nv_add_u32 v17, v17, v6\nv_add_u32 v17, s3, v17")
    A("v_lshrrev_b32 v16, 1, v4\nv_lshlrev_b32 v16, 12, v16\nv_add_u32 v16, v16, v18\nv_and_b32 v15, 1, v4\nv_lshl_add_u32 v16, v15, 3, v16\nv_add_u32 v16, s3, v16")
    A("s_barrier")
    stamp(A, st0)
    for l in reads(0, 0, 4): A(l)
    A("s_waitcnt lgkmcnt(0)")
    align8(A)
    start = len(A.lines)
    lp = A.newlabel("c2a")
    A(f"{lp}:")
    stage_body(4)
    A(f"s_cbranch_scc0 {lp}")
    check_loop(A.lines[start:])
    xstamp(A, "g2p1")
    for i in range(4):
        for t in range(2):
            a = ACC + 4*(i*4+2+t); j = i*2 + t
            A(f"buffer_store_dwordx4 v[{a}:{a+3}], v9, {WS}, s46 offen offset:{(j & 3)*1024} sc1")
            if j == 3: A("s_add_u32 s46, s46, 4096")
    xstamp(A, "g2st")
    A("s_mov_b32 s59, 7")
    start = len(A.lines)
    lp = A.newlabel("c2b"); l1 = A.newlabel("c2x"); l2 = A.newlabel("c2y"); l3 = A.newlabel("c2z")
    A(f"{lp}:")
    A(f"s_cmp_lg_u32 s59, 5\ns_cbranch_scc1 {l1}")
    A("s_waitcnt vmcnt(0)")
    flag_set(A, "s47", 12, 9)
    A(f"{l1}:")
    A(f"s_cmp_lg_u32 s59, 3\ns_cbranch_scc1 {l2}")
    A(f"buffer_load_dword v{vPL}, v19, {WS}, s49 offen sc1")
    for i in range(4):
        for t in range(2):
            A(f"s_lshl_b32 s57, s{TC+t}, 1\ns_add_u32 s57, s57, {WS_X1 + i*32768}")
            A(f"buffer_load_dwordx2 v[{XR+4*i+2*t}:{XR+4*i+2*t+1}], v16, {WS}, s57 offen sc1")
    A(f"{l2}:")
    A(f"s_cmp_lg_u32 s59, 1\ns_cbranch_scc1 {l3}")
    d = A.newlabel("s5ok")
    A(f"s_waitcnt vmcnt(0)\nv_cmp_ne_u32 vcc, s{sN}, v{vPL}\ns_nop 1\ns_cbranch_vccz {d}")
    poll(A, 19, "s49", vPL)
    A(f"{d}:")
    for j in range(8):
        A(f"buffer_load_dwordx4 v[{PR+4*j}:{PR+4*j+3}], v9, {WS}, s48 offen offset:{(j & 3)*1024} sc1")
        if j == 3: A("s_add_u32 s48, s48, 4096")
    A(f"{l3}:")
    stage_body(2)
    A(f"s_cbranch_scc0 {lp}")
    check_loop(A.lines[start:])
    stamp(A, st0 + 1)
    so = srd(A, SA_, "out", 4*MB)
    T = FA[0]
    A("s_waitcnt vmcnt(0)")
    for i in range(4):
        for t in range(2):
            a = ACC + 4*(i*4+t); x = XR + 4*i + 2*t; p = PR + 4*(i*2+t)
            lo(A, T, x); hi(A, T+1, x); lo(A, T+2, x+1); hi(A, T+3, x+1)
            for r in range(4): A(f"v_add_f32 v{a+r}, v{a+r}, v{p+r}")
            for r in range(4): A(f"v_fmac_f32 v{T+r}, v{a+r}, v{GB+4*t+r}")
            A(f"v_cvt_pk_bf16_f32 v{x}, v{T}, v{T+1}\nv_cvt_pk_bf16_f32 v{x+1}, v{T+2}, v{T+3}")
            A(f"s_add_u32 s3, s{TC+t}, {i*32768}")
            A(f"buffer_store_dwordx2 v[{x}:{x+1}], v17, {so}, s3 offen " + ["", "sc1", "nt", "sc0 sc1"][opt("outpol")])

def kernel(A):
    kernel_begin(A, NAME)
    A("s_load_dwordx2 s[40:41], s[0:1], 8\ns_load_dwordx2 s[44:45], s[0:1], 16")
    A("s_load_dwordx16 s[4:19], s[0:1], 0\ns_load_dwordx16 s[20:35], s[0:1], 64")
    A("s_cmp_ge_u32 s2, 256\ns_cbranch_scc1 L_exit")
    stamp(A, 0)
    A("v_lshrrev_b32 v1, 6, v0\nv_and_b32 v2, 63, v0")
    if opt("map0"): A(f"s_and_b32 s{sTT}, s2, 15\ns_lshr_b32 s{sCT}, s2, 4")
    else: A(f"s_and_b32 s{sCT}, s2, 15\ns_lshr_b32 s{sTT}, s2, 4")
    A(f"v_readfirstlane_b32 s{sWAVE}, v1")
    A("v_lshrrev_b32 v3, 3, v2\nv_bfe_u32 v4, v2, 4, 1\nv_and_b32 v5, 7, v2\nv_xor_b32 v4, v4, v5\nv_lshlrev_b32 v4, 4, v4\nv_lshl_add_u32 v4, v3, 11, v4")
    A(f"s_lshl_b32 s3, s{sTT}, 18\ns_lshl_b32 s57, s{sCT}, 7\ns_add_u32 s3, s3, s57")
    A(f"s_lshl_b32 s57, s{sWAVE}, 15\ns_add_u32 s57, s57, s3")
    A(f"s_and_b32 s58, s{sWAVE}, 1\ns_lshl_b32 s58, s58, 6")
    A("v_xor_b32 v5, s58, v4\nv_add_u32 v5, s57, v5")
    A("v_xor_b32 v6, 32, v5")
    A("s_movk_i32 s58, 15360\nv_add_u32 v16, s58, v6")
    A("v_xor_b32 v17, 64, v5\nv_add_u32 v17, s58, v17")
    A(f"s_mov_b32 s42, {4*MB}\ns_mov_b32 s43, 0x20000\ns_mov_b32 s46, s42\ns_mov_b32 s47, s43")
    sk, sv = "s[40:43]", "s[44:47]"
    A(f"s_lshl_b32 s59, s{sWAVE}, 11\ns_add_u32 m0, s59, {L_KT+1024}")
    A("s_waitcnt lgkmcnt(0)")
    A(f"buffer_load_dwordx4 v6, {sk}, 0 offen nt lds\nbuffer_load_dwordx4 v17, {sk}, 0 offen offset:1024 nt lds")
    A(f"s_add_u32 m0, s59, {L_VT}")
    A(f"buffer_load_dwordx4 v5, {sv}, 0 offen nt lds\nbuffer_load_dwordx4 v16, {sv}, 0 offen offset:1024 nt lds")
    A(f"s_cmp_lg_u32 s{sWAVE}, 0\ns_cbranch_scc1 L_nohalo")
    A(f"s_sub_u32 s3, s3, 16384\ns_cmp_eq_u32 s{sTT}, 0\ns_cselect_b32 s3, 0x80000000, s3\nv_add_u32 v7, s3, v4")
    A(f"s_mov_b32 m0, {L_KT}")
    A(f"buffer_load_dwordx4 v7, {sk}, 0 offen nt lds")
    A("L_nohalo:")
    if opt("dbgst"): A("s_mov_b32 s6, s32\ns_mov_b32 s7, s33")
    A("v_and_b32 v8, 15, v2\nv_lshrrev_b32 v9, 4, v2\nv_lshlrev_b32 v11, 4, v2")
    vL16 = 11
    A("v_and_b32 v10, 1, v9\nv_and_b32 v14, 3, v2\nv_lshl_add_u32 v10, v10, 2, v14\nv_lshlrev_b32 v10, 3, v10")
    ss = srd(A, SC_, "shift", 8192)
    A(f"s_lshl_b32 s3, s{sWAVE}, 6\ns_lshl_b32 s57, s{sCT}, 9\ns_add_u32 s3, s3, s57")
    A(f"buffer_load_dwordx2 v[12:13], v10, {ss}, s3 offen")
    tile_ids(A, 1)
    A(f"s_lshl_b32 s{sTB}, s60, 4\ns_add_u32 s{sTB}, s{sTB}, s61\ns_lshl_b32 s{sCG}, s{sCT}, 4\ns_add_u32 s{sCG}, s{sCG}, s{sTT}")
    if opt("tb0"): A(f"s_mov_b32 s{sTB}, s2")
    A(f"s_lshl_b32 s59, s{sCT}, 7")
    A(f"s_cmp_lt_u32 s{sWAVE}, 4\ns_movk_i32 s58, {F_GVC}\ns_cselect_b32 s58, {F_S2C}, s58\ns_add_u32 s59, s59, s58")
    A(f"s_lshl_b32 s60, s{sCG}, 2\ns_add_u32 s60, s60, s{sWAVE}\ns_and_b32 s60, s60, 1023")
    A("s_lshl_b32 s63, s60, 1\ns_and_b32 s63, s63, 0x7fc")
    A(f"s_load_dword s{sN}, s[34:35], {F_E}\ns_load_dword s{sC0}, s[34:35], s59\ns_load_dword s33, s[{P['ssmD']}:{P['ssmD']+1}], s63")
    A(f"v_lshlrev_b32 v14, 2, v2\nv_add_u32 v14, {L_ST}, v14\nv_mov_b32 v15, 0\nds_write_b32 v14, v15")
    A(f"s_mov_b32 s36, s34\ns_mov_b32 s37, s35\ns_mov_b32 s38, {64*MB}\ns_mov_b32 s39, 0x20000")
    A(f"s_mul_i32 s61, s{sWAVE}, {WSZ}\ns_lshl_b32 s62, s60, 12")
    sp = srd(A, SA_, "ssmk", 4*MB); sc = srd(A, SB_, "c", 2048)
    A("s_getpc_b64 s[64:65]")
    A("L_pc:")
    A(f"s_lshr_b32 s3, s2, 3\ns_and_b32 s3, s3, 31\ns_lshl_b32 s3, s3, 10\nv_and_b32 v14, 7, v2\nv_lshlrev_b32 v14, 7, v14\nv_add_u32 v14, s3, v14\nv_min_u32 v14, L_end-L_pc-4, v14")
    A(f"v_lshlrev_b32 v15, 2, v2\ns_and_b32 s3, s{sTT}, 7\ns_lshl_b32 s3, s3, 8")
    xstamp(A, "iss")
    A("s_barrier")
    A(f"s_cmp_ge_u32 s{sWAVE}, 4\ns_cbranch_scc1 L_b0")
    A("s_add_u32 m0, s61, 32")
    for i in range(4): A(f"buffer_load_dwordx4 v{vL16}, {sp}, s62 offen offset:{i*1024} nt lds")
    A("s_branch L_c0")
    A("L_b0:")
    A(f"buffer_load_dword v220, v15, {sc}, s3 offen")
    A("global_load_dword v221, v14, s[64:65]")
    A("global_load_dword v221, v14, s[64:65]\nglobal_load_dword v221, v14, s[64:65]")
    A("L_c0:")
    A.flush_hist()

    A("v_bfe_u32 v16, v2, 2, 2\nv_and_b32 v17, 3, v2\nv_lshrrev_b32 v18, 1, v16")
    A(f"v_xor_b32 v18, s{sWAVE}, v18")
    A("v_lshrrev_b32 v19, 1, v9\nv_lshl_add_u32 v20, v19, 3, v17\nv_lshlrev_b32 v20, 10, v20\nv_lshl_add_u32 v20, v16, 7, v20")
    A(f"v_and_b32 v21, 1, v9\nv_lshl_add_u32 v20, v21, 3, v20\nv_add_u32 v20, {L_KT}, v20")
    A("v_lshlrev_b32 v22, 1, v17\nv_xor_b32 v22, v22, v18\nv_lshl_add_u32 v22, v22, 4, v20")
    A("v_add_u32 v23, 1, v17\nv_and_b32 v23, 3, v23\nv_lshlrev_b32 v23, 1, v23\nv_xor_b32 v23, v23, v18\nv_lshl_add_u32 v23, v23, 4, v20")
    A("v_lshl_add_u32 v24, v19, 3, v16\nv_sub_u32 v24, 11, v24\nv_lshlrev_b32 v24, 6, v24\nv_lshl_add_u32 v24, v17, 4, v24\nv_lshl_add_u32 v24, v21, 14, v24")
    A(f"s_lshl_b32 s3, s{sCT}, 18\ns_lshl_b32 s57, s{sWAVE}, 15\ns_add_u32 s3, s3, s57\ns_lshl_b32 s57, s{sTT}, 10\ns_sub_u32 s3, s3, s57\ns_add_u32 s58, s3, {WS_KVR + 240*64}")
    WF = 26
    A("s_waitcnt vmcnt(4)")
    xstamp(A, "kv")
    lo(A, WF, 12); hi(A, WF+1, 12); lo(A, WF+2, 13); hi(A, WF+3, 13)
    A("s_waitcnt lgkmcnt(0)")
    A(f"s_mul_i32 s{sN}, s{sN}, 0x9E3779B1\ns_add_u32 s{sN}, s{sN}, 0x7F4A7C15")
    A(f"s_lshl_b32 s59, s{sCG}, 3\ns_add_u32 s59, s59, s{sWAVE}\ns_lshl_b32 s59, s59, 7\ns_add_u32 s59, s59, {F_S1}")
    stamp(A, 1)
    A("s_barrier")
    KP, VP, KF, T, O = 32, 44, 52, 64, 72
    for e in range(2):
        A(f"ds_read_b64_tr_b16 v[{KP+6*e}:{KP+6*e+1}], v22 offset:{e*4096 + 512}")
        A(f"ds_read_b64_tr_b16 v[{KP+6*e+2}:{KP+6*e+3}], v23 offset:{e*4096 + 1024}")
        A(f"ds_read_b64_tr_b16 v[{KP+6*e+4}:{KP+6*e+5}], v23 offset:{e*4096 + 1536}")
        A(f"ds_read_b64_tr_b16 v[{VP+4*e}:{VP+4*e+1}], v22 offset:{17408 + e*4096}")
        A(f"ds_read_b64_tr_b16 v[{VP+4*e+2}:{VP+4*e+3}], v22 offset:{17408 + e*4096 + 512}")
    for e in range(2):
        A(f"s_waitcnt lgkmcnt({7 - 5*e})")
        for j in range(11):
            (hi if j % 2 == 0 else lo)(A, KF+j, KP + 6*e + (j+1)//2)
        for i in range(8): A(f"v_mul_f32 v{T+i}, v{WF+3}, v{KF+i}")
        for j in (2, 1, 0):
            for i in range(8): A(f"v_fmac_f32 v{T+i}, v{WF+j}, v{KF+i+3-j}")
        A(f"s_waitcnt lgkmcnt({5 - 5*e})")
        for i in range(8): (lo if i % 2 == 0 else hi)(A, KF+i, VP + 4*e + i//2)
        for i in range(8): A(f"v_mul_f32 v{T+i}, v{T+i}, v{KF+i}")
        for x in range(4): A(f"v_cvt_pk_bf16_f32 v{O+4*e+x}, v{T+7-2*x}, v{T+6-2*x}")
        A(f"buffer_store_dwordx4 v[{O+4*e}:{O+4*e+3}], v24, {WS}, s58 offen offset:{256*(1-e)} sc1")
    xstamp(A, "kst")
    A(f"s_and_b32 s3, s{sTT}, 7\ns_or_b32 s3, s3, s{sWAVE}\ns_cmp_lg_u32 s3, 0\ns_cbranch_scc1 L_nozero")
    A(f"s_lshr_b32 s3, s{sCG}, 3\ns_mul_i32 s3, s3, 768\ns_add_u32 s3, s3, {F_MOD}")
    A("v_mov_b32 v48, 0\nv_mov_b32 v49, 0\nv_mov_b32 v50, 0\nv_mov_b32 v51, 0")
    A("s_mov_b32 exec_lo, -1\ns_mov_b32 exec_hi, 0xffff")
    A(f"buffer_store_dwordx4 v[48:51], v{vL16}, {WS}, s3 offen sc1")
    A("s_mov_b64 exec, -1")
    A("L_nozero:")
    A.flush_hist()
    A("s_waitcnt vmcnt(0)")
    flag_set(A, "s59", 52, vL16)
    stamp(A, 2)
    A(f"s_cmp_ge_u32 s{sWAVE}, 4\ns_cbranch_scc1 L_b1")
    X, Y = 192, 208
    A(f"v_add_u32 v41, s61, v{vL16}")
    for i in range(4):
        A(f"ds_read_b128 v[{X+4*i}:{X+4*i+3}], v41 offset:{32+i*1024}")
        A(f"ds_read_b64 v[{Y+2*i}:{Y+2*i+1}], v41 offset:{48+i*1024}")
    A("v_add_u32 v42, v9, v8\nv_lshlrev_b32 v40, 1, v42\nv_add_u32 v40, s61, v40\nds_read_u16 v216, v40")
    A(f"v_cmp_lt_u32 vcc, 15, v42\nv_mul_u32_u24 v40, {PS}, v9\nv_lshl_add_u32 v40, v8, 1, v40\nv_add_u32 v40, s61, v40")
    A(f"v_mov_b32 v14, 0\nv_mov_b32 v15, 0\nv_lshlrev_b32 v13, 3, v0\nv_add_u32 v13, {L_Q+16384}, v13")
    for i in range(4):
        a = [X+4*i, X+4*i+1, X+4*i+2, X+4*i+3, Y+2*i, Y+2*i+1]
        c1 = 112 + 12*i; c2 = c1 + 4; c3 = c1 + 8
        if i == 0: A("s_waitcnt lgkmcnt(0)")
        for j in range(4): A(f"v_alignbit_b32 v{c1+j}, v{a[j+1]}, v{a[j]}, 16")
        A(f"ds_write_b128 v41, v[{c1}:{c1+3}] offset:{PS+32+i*1024}")
        for j in range(4): A(f"v_mov_b32 v{c2+j}, v{a[j+1]}")
        A(f"ds_write_b128 v41, v[{c2}:{c2+3}] offset:{2*PS+32+i*1024}")
        for j in range(4): A(f"v_alignbit_b32 v{c3+j}, v{a[j+2]}, v{a[j+1]}, 16")
        A(f"ds_write_b128 v41, v[{c3}:{c3+3}] offset:{3*PS+32+i*1024}")
    A("v_cndmask_b32 v216, 0, v216, vcc\nds_write_b16 v40, v216")
    A("ds_write_b64 v13, v[14:15]")
    A("s_and_b32 s3, s60, 1\ns_lshl_b32 s3, s3, 4\ns_lshr_b32 s33, s33, s3\ns_and_b32 s33, s33, 0xffff")
    A("v_lshl_add_u32 v48, v9, 3, v8\nv_sub_u32 v48, 15, v48\nv_and_b32 v49, 1, v48\nv_lshlrev_b32 v49, 4, v49\nv_lshlrev_b32 v49, v49, s33\nv_ashrrev_i32 v48, 1, v48")
    for e in range(4): A(f"v_cmp_eq_u32 vcc, {e}, v48\nv_cndmask_b32 v{64+e}, 0, v49, vcc")
    A(f"v_add_u32 v42, 1, v8\nv_and_b32 v43, 3, v42\nv_mul_u32_u24 v43, {PS}, v43\nv_lshrrev_b32 v42, 2, v42")
    A("v_lshl_add_u32 v43, v42, 3, v43\nv_lshl_add_u32 v43, v9, 4, v43\nv_add_u32 v43, s61, v43")
    vP, vQ, vE, vS = 43, [44, 45], 47, 46
    A("v_lshlrev_b32 v48, 1, v8\nv_sub_u32 v48, 30, v48\nv_add_u32 v48, v48, v9\nv_lshrrev_b32 v49, 2, v48")
    for rho in range(2):
        A(f"v_add_u32 v50, {rho}, v49\nv_and_b32 v50, 3, v50\nv_xor_b32 v50, s{sWAVE}, v50\nv_lshlrev_b32 v50, 4, v50\nv_lshl_add_u32 v50, v48, 6, v50\nv_add_u32 v{vQ[rho]}, {L_Q}, v50")
    A(f"s_lshr_b32 s3, s{sWAVE}, 1\nv_lshl_add_u32 v46, v9, 1, s3\nv_and_b32 v48, 7, v8\nv_xor_b32 v46, v46, v48\nv_lshlrev_b32 v46, 4, v46")
    A(f"v_lshl_add_u32 v46, v8, 7, v46\ns_and_b32 s3, s{sWAVE}, 1\ns_lshl_b32 s3, s3, 3\ns_add_u32 s3, s3, {L_YS}\nv_add_u32 v46, s3, v46")
    ACC = 80; FA = [112, 176]; FB = [144, 208]; KE = 64
    def reads(r, buf):
        La, Lb = [], []
        for i in range(8):
            Lb.append(f"ds_read_b128 v[{FB[buf]+4*i}:{FB[buf]+4*i+3}], v{vQ[r & 1]} offset:{256*r + 2048*(7-i)}")
            La.append(f"ds_read_b64 v[{FA[buf]+4*i}:{FA[buf]+4*i+1}], v{vP} offset:{512*i + 64*r}")
            La.append(f"ds_read_b64 v[{FA[buf]+4*i+2}:{FA[buf]+4*i+3}], v{vP} offset:{512*i + 64*r + 8}")
        return La, Lb
    La, Lb = reads(0, 0)
    A("s_waitcnt lgkmcnt(0)")
    for l in La: A(l)
    q_addr(A, 48)
    A("s_mov_b32 s59, 3")
    stamp(A, 3)
    A("s_waitcnt lgkmcnt(0)\ns_barrier")
    for l in Lb: A(l)
    q_issue(A, 48)
    stamp(A, 4)
    for q in range(8):
        A(f"s_waitcnt lgkmcnt({7-q if not STAMPS else 0})")
        A(f"v_mfma_f32_16x16x32_bf16 v[{ACC+4*q}:{ACC+4*q+3}], v[64:67], v[{FB[0]+4*q}:{FB[0]+4*q+3}], 0")
    align8(A)
    start = len(A.lines)
    A("L_conv:")
    for r in range(2):
        if r == 0:
            La, Lb = reads(1, 1)
            tail = [[f"v_xor_b32 v{vQ[0]}, 32, v{vQ[0]}", f"v_xor_b32 v{vQ[1]}, 32, v{vQ[1]}"],
                    [f"v_add_u32 v{vQ[0]}, 512, v{vQ[0]}"], [f"v_add_u32 v{vQ[1]}, 512, v{vQ[1]}"], [f"v_add_u32 v{vP}, 128, v{vP}"]]
        else:
            La, Lb = reads(0, 0)
            tail = [["s_sub_u32 s59, s59, 1", "s_nop 0"]]
        nxt = [[x] for x in Lb + La] + tail
        mf = [f"v_mfma_f32_16x16x32_bf16 v[{ACC+4*(i+j)}:{ACC+4*(i+j)+3}], v[{FA[r]+4*i}:{FA[r]+4*i+3}], v[{FB[r]+4*j}:{FB[r]+4*j+3}], v[{ACC+4*(i+j)}:{ACC+4*(i+j)+3}]"
              for i in range(8) for j in range(8 - i)]
        sl = {n: x for n, x in enumerate(nxt)}
        sl[34] = ["s_waitcnt lgkmcnt(0)", "s_nop 0"]
        sched(A, mf, sl)
    A("s_cbranch_scc0 L_conv")
    check_loop(A.lines[start:])
    stamp(A, 5)
    T = 48
    for q in range(8):
        e = KE + 2*q
        A(f"v_cvt_pk_bf16_f32 v{e}, v{ACC+4*q}, v{ACC+4*q+1}\nv_cvt_pk_bf16_f32 v{e+1}, v{ACC+4*q+2}, v{ACC+4*q+3}")
        A(f"ds_write_b64 v{vS}, v[{e}:{e+1}] offset:{q*2048}")
    A(f"v_mov_b32 v52, {L_CNT}\nv_mov_b32 v53, 1\ns_waitcnt lgkmcnt(0)\ns_mov_b64 exec, 1\nds_add_u32 v52, v53\ns_mov_b64 exec, -1")
    A(f"v_lshrrev_b32 v48, 3, v2\nv_and_b32 v49, 7, v2\nv_xor_b32 v50, v48, v49\nv_lshlrev_b32 v50, 4, v50\nv_lshl_add_u32 v50, v48, 7, v50")
    A(f"s_lshl_b32 s3, s{sWAVE}, 12\ns_add_u32 s3, s3, {L_YS}\nv_add_u32 v50, s3, v50")
    A("v_lshrrev_b32 v51, 2, v49\nv_lshl_add_u32 v51, v48, 1, v51\nv_lshlrev_b32 v51, 14, v51\nv_and_b32 v49, 3, v49\nv_lshl_add_u32 v51, v49, 4, v51")
    A(f"s_lshl_b32 s3, s{sWAVE}, 20\ns_lshl_b32 s57, s{sCG}, 6\ns_add_u32 s3, s3, s57\ns_add_u32 s3, s3, {WS_YB}")
    xstamp(A, "rv0")
    A("L_rv:")
    A("ds_read_b32 v53, v52\ns_waitcnt lgkmcnt(0)\nv_readfirstlane_b32 s57, v53\ns_cmp_lt_u32 s57, 4\ns_cbranch_scc1 L_rv")
    xstamp(A, "rv1")
    for i in range(4): A(f"ds_read_b128 v[{64+4*i}:{67+4*i}], v50 offset:{i*1024}")
    for i in range(4):
        A(f"s_waitcnt lgkmcnt({3-i})")
        A(f"buffer_store_dwordx4 v[{64+4*i}:{67+4*i}], v51, {WS}, s3 offen sc1")
        if i < 3: A(f"s_add_u32 s3, s3, {8*2*16384}")
    xstamp(A, "ys")
    A("s_waitcnt vmcnt(4)")
    ln0_part1(A)
    A("s_waitcnt vmcnt(0)")
    xstamp(A, "yd")
    arrive(A, F_S2C, F_S2R, L_CNT+4, 52, vL16)
    stamp(A, 6)
    A(f"s_cmp_lg_u32 s{sWAVE}, 0\ns_cbranch_scc1 L_ln")
    A(f"v_lshlrev_b32 v47, 7, v8\ns_movk_i32 s3, {F_S2R}")
    poll(A, 47, "s3", 48)
    xstamp(A, "s2p")
    A("s_branch L_ln")
    A.flush_hist()
    A("L_b1:")
    A(f"s_cmp_lg_u32 s{sWAVE}, 7\ns_cbranch_scc1 L_b1g")
    A(f"s_lshr_b32 s3, s{sTT}, 1\ns_lshl_b32 s3, s3, 7\nv_and_b32 v47, 1, v9\nv_subrev_u32 v47, 1, v47\nv_and_b32 v47, s3, v47\nv_lshl_add_u32 v47, v8, 10, v47")
    A("v_and_b32 v46, 3, v2\nv_xor_b32 v46, v46, v9\nv_lshlrev_b32 v46, 4, v46\nv_lshrrev_b32 v45, 2, v2\nv_lshl_add_u32 v46, v45, 6, v46")
    A(f"s_lshl_b32 s3, s{sCT}, 14\ns_add_u32 s3, s3, {F_S1}\ns_lshl_b32 s58, s{sCG}, 14\ns_add_u32 s58, s58, {WS_KVR}")
    poll(A, 47, "s3", 48)
    xstamp(A, "s1p")
    for w in range(4):
        A(f"s_mov_b32 m0, {L_Q + w*4096}")
        for i in range(4): A(f"buffer_load_dwordx4 v46, {WS}, s58 offen offset:{i*1024} sc1 lds")
        if w < 3: A("s_add_u32 s58, s58, 4096")
    tile_ids(A, 1)
    g1_prod_setup(A)
    q_addr(A, 48)
    A("s_lshr_b32 s58, s2, 3\ns_lshl_b32 s58, s58, 1\ns_and_b32 s57, s2, 1\ns_add_u32 s58, s58, s57\ns_mul_i32 s58, s58, 7168")
    A(f"s_bfe_u32 s57, s2, 0x20001\ns_mul_i32 s57, s57, 1792\ns_add_u32 s58, s58, s57\ns_add_u32 s{sPF}, s{P['w1']}, s58\ns_addc_u32 s{sPF+1}, s{P['w1']+1}, 0")
    A("s_waitcnt vmcnt(0)\ns_barrier")
    A("s_sleep 8")
    q_issue(A, 48)
    if opt("pf0", 4):
        A(f"s_mov_b32 s59, {opt('pf0', 4)}")
        A("L_pf0:")
        sprefetch(A, 28, 64*7168)
        A("s_sub_u32 s59, s59, 1\ns_cmp_lg_u32 s59, 0\ns_cbranch_scc1 L_pf0")
    xstamp(A, "bp")
    A("s_waitcnt vmcnt(0)")
    ln0_part1(A)
    A("s_branch L_b1m")
    A.flush_hist()
    A("L_b1g:")
    tile_ids(A, 1)
    g1_prod_setup(A)
    A(f"s_mov_b32 s3, {f2u(-1.4426950408889634):#x}")
    lo(A, 16, 220); hi(A, 17, 220)
    for i in range(2): A(f"v_mul_f32 v{18+i}, s3, v{16+i}")
    for i in range(2): A(f"v_exp_f32 v{18+i}, v{18+i}")
    for i in range(2): A(f"v_add_f32 v{18+i}, 1.0, v{18+i}")
    for i in range(2): A(f"v_rcp_f32 v{18+i}, v{18+i}")
    for i in range(2): A(f"v_mul_f32 v{18+i}, v{18+i}, v{16+i}")
    A("v_cvt_pk_bf16_f32 v18, v18, v19")
    A(f"s_lshl_b32 s58, s64, 9\ns_add_u32 s58, s58, {L_GS}\nv_lshlrev_b32 v20, 2, v2\nv_add_u32 v21, s58, v20\nds_write_b32 v21, v18")
    A("v_lshlrev_b32 v22, 3, v9\nv_add_u32 v22, s58, v22")
    SF, GA, GW = 64, 80, 96
    for kb in range(4):
        A(f"ds_read_b64 v[{SF+4*kb}:{SF+4*kb+1}], v22 offset:{kb*64}\nds_read_b64 v[{SF+4*kb+2}:{SF+4*kb+3}], v22 offset:{kb*64+32}")
    unit_lane_off(A, 24, 12288)
    for k in range(1, 4): A(f"v_add_u32 v{24+k}, {k*(8*12288 - 1024)}, v24")
    A(f"s_and_b32 s3, s{sTT}, 7\ns_mul_i32 s3, s3, {128*12288}\ns_lshr_b32 s57, s{sCG}, 3\ns_mul_i32 s57, s57, 384\ns_add_u32 s3, s3, s57\ns_lshl_b32 s57, s64, 7\ns_add_u32 s48, s3, s57")
    A(f"s_lshl_b32 s49, s64, 14\ns_add_u32 s49, s49, {L_GW}")
    A("v_lshrrev_b32 v28, 2, v2\nv_and_b32 v28, 7, v28\nv_lshrrev_b32 v29, 1, v28\nv_lshlrev_b32 v29, 5, v29\nv_lshl_add_u32 v29, v28, 7, v29")
    A("v_and_b32 v28, 3, v2\nv_lshl_add_u32 v29, v28, 3, v29\nv_lshrrev_b32 v28, 5, v2\nv_lshl_add_u32 v29, v28, 10, v29\nv_add_u32 v29, s49, v29")
    for cb in range(4): A(f"v_xor_b32 v{56+cb}, {cb*32}, v29")
    A("v_lshlrev_b32 v23, 4, v9\nv_add_u32 v23, s58, v23")
    sw = srd(A, SB_, "wmod", 12*MB)
    A("s_mov_b32 s58, s48\ns_mov_b32 s59, s49")
    q_addr(A, 48)
    A("s_waitcnt lgkmcnt(0)\ns_barrier")
    A("s_sleep 2")
    for kb in range(4):
        A(f"s_add_u32 m0, s59, {kb*4096}")
        for k in range(4): A(f"buffer_load_dwordx4 v{24+k}, {sw}, s58 offen offset:{k*1024} nt lds")
        if kb < 3: A(f"s_add_u32 s58, s58, {32*12288}")
    q_issue(A, 48)
    xstamp(A, "bi")
    A("s_setprio 3")
    for kb in range(4):
        A(f"s_waitcnt vmcnt({16 - 4*kb})")
        for cb in range(4):
            A(f"ds_read_b64_tr_b16 v[{GW+4*cb}:{GW+4*cb+1}], v{56+cb} offset:{kb*4096}\nds_read_b64_tr_b16 v[{GW+4*cb+2}:{GW+4*cb+3}], v{56+cb} offset:{kb*4096+2048}")
        A("s_waitcnt lgkmcnt(0)")
        for cb in range(4):
            c = "0" if kb == 0 else f"v[{GA+4*cb}:{GA+4*cb+3}]"
            A(f"v_mfma_f32_16x16x32_bf16 v[{GA+4*cb}:{GA+4*cb+3}], v[{GW+4*cb}:{GW+4*cb+3}], v[{SF+4*kb}:{SF+4*kb+3}], {c}")
    xstamp(A, "bw")
    A("s_mov_b32 exec_lo, 0x00010001\ns_mov_b32 exec_hi, 0x00010001")
    for cb in range(4): A(f"ds_write_b128 v23, v[{GA+4*cb}:{GA+4*cb+3}] offset:{256 + cb*64}")
    A("s_mov_b64 exec, -1")
    A("ds_read_b32 v30, v21 offset:256")
    A(f"s_lshr_b32 s3, s{sCG}, 3\ns_mul_i32 s3, s3, 768\ns_lshl_b32 s57, s64, 8\ns_add_u32 s3, s3, s57\ns_add_u32 s3, s3, {F_MOD}")
    A("s_waitcnt lgkmcnt(0)")
    A(f"buffer_atomic_add_f32 v30, v20, {WS}, s3 offen sc1")
    xstamp(A, "ba")
    A("s_waitcnt vmcnt(1)")
    ln0_part1(A)
    A("s_waitcnt vmcnt(0)")
    xstamp(A, "bd")
    arrive(A, F_GVC, F_GVR, L_CNT+8, 52, vL16, 3)
    A("s_setprio 0")
    A("L_b1m:")
    A.flush_hist()
    stamp(A, 3)
    A(f"v_lshlrev_b32 v47, 7, v8\ns_movk_i32 s3, {F_GVR}")
    poll(A, 47, "s3", 48, 4)
    stamp(A, 4)
    A("v_and_b32 v48, 255, v0\nv_lshlrev_b32 v48, 4, v48")
    M = 64
    for j in range(5):
        A(f"s_mov_b32 s3, {F_MOD + j*4096}")
        A(f"buffer_load_dwordx4 v[{M+4*j}:{M+4*j+3}], v48, {WS}, s3 offen sc1")
    A(f"v_add_u32 v48, {L_MOD}, v48")
    A("s_waitcnt vmcnt(0)")
    for e in range(20): A(f"v_cvt_pk_bf16_f32 v{M+e}, v{M+e}, v{M+e}")
    for e in range(20): A(f"v_lshlrev_b32 v{M+e}, 16, v{M+e}")
    for j in (1, 4):
        for e in range(4): A(f"v_add_f32 v{M+4*j+e}, 1.0, v{M+4*j+e}")
        for e in range(4): A(f"v_cvt_pk_bf16_f32 v{M+4*j+e}, v{M+4*j+e}, v{M+4*j+e}")
        for e in range(4): A(f"v_lshlrev_b32 v{M+4*j+e}, 16, v{M+4*j+e}")
    for j in (0, 1):
        for e in range(4): A(f"v_mul_f32 v{M+4*j+e}, v{M+4*j+e}, v{M+8+e}")
    for n, j in enumerate((0, 1, 3, 4)): A(f"ds_write_b128 v48, v[{M+4*j}:{M+4*j+3}] offset:{n*4096}")
    R = opt("lnrows", 1)
    A(f"s_add_u32 s3, s64, {opt('pf0', 4)}\nv_min_u32 v222, {R-1}, v9\nv_lshl_add_u32 v222, v222, 2, s3\nv_lshlrev_b32 v222, 6, v222")
    A("s_lshr_b32 s3, s2, 3\ns_lshl_b32 s3, s3, 1\ns_and_b32 s57, s2, 1\ns_add_u32 s3, s3, s57\nv_add_u32 v222, s3, v222\ns_movk_i32 s3, 7168\nv_mul_lo_u32 v222, v222, s3")
    A("v_min_u32 v223, 13, v8\nv_lshl_add_u32 v222, v223, 7, v222\ns_bfe_u32 s57, s2, 0x20001\ns_mul_i32 s57, s57, 1792\nv_add_u32 v222, s57, v222")
    stamp(A, 6)
    A("L_ln:")
    A.flush_hist()
    A("s_nop 4")
    A(f"v_lshlrev_b32 v12, 6, v{vCG}\nv_lshl_add_u32 v12, v{vHF}, 5, v12")
    A(f"v_lshlrev_b32 v15, 4, v{vCG}\nv_lshl_add_u32 v248, v{vHF}, 13, v15\nv_add_u32 v15, {L_MOD}, v15")
    A(f"s_lshl_b32 s58, s{sTB}, 14\ns_add_u32 s3, s58, {WS_YB}\ns_add_u32 s58, s58, {WS_X1}\nv_add_u32 v248, s58, v248\nv_add_u32 v249, 4096, v248")
    A("s_waitcnt lgkmcnt(0)\ns_barrier")
    stamp(A, 7)
    YR, M, H, TMP, ST = 40, 48, 72, 88, 96
    for c in range(2): A(f"buffer_load_dwordx4 v[{YR+4*c}:{YR+4*c+3}], v12, {WS}, s3 offen offset:{16*c} sc1")
    for j in range(4): A(f"ds_read_b128 v[{M+4*j}:{M+4*j+3}], v15 offset:{j*4096}")
    red_part2(A, vSTR, 0, ST)
    normalize(A, H, LX, ST, M+4, M)
    A(f"v_lshrrev_b32 v12, 3, v{vCG}\nv_and_b32 v15, 3, v{vCG}\nv_lshl_add_u32 v12, v12, 2, v15")
    A(f"v_and_b32 v15, 7, v12\nv_lshlrev_b32 v10, 2, v{vHF}\nv_xor_b32 v15, v15, v10\nv_lshlrev_b32 v15, 4, v15\nv_lshl_add_u32 v12, v12, 7, v15")
    A(f"v_and_b32 v15, 4, v{vCG}\nv_lshl_add_u32 v12, v15, 1, v12\nv_add_u32 v12, {L_MOD}, v12")
    xstamp(A, "ln_a")
    A("s_waitcnt vmcnt(0)")
    xstamp(A, "ln_b")
    if not opt("nopf1"):
        A(f"s_cmp_lt_u32 s{sWAVE}, 4\ns_cbranch_scc1 L_nopf1")
        A(f"buffer_load_dword v223, v222, s[{SA_}:{SA_+3}], 0 offen")
        A("L_nopf1:")
    for i in range(4):
        for c in range(4): (lo if i % 2 == 0 else hi)(A, TMP+c, YR+2*c+i//2)
        for c in range(0, 4, 2): A(f"v_pk_fma_f32 v[{LX+4*i+c}:{LX+4*i+c+1}], v[{H+4*i+c}:{H+4*i+c+1}], v[{TMP+c}:{TMP+c+1}], v[{LX+4*i+c}:{LX+4*i+c+1}]")
        A(f"v_cvt_pk_bf16_f32 v{QR+2*i}, v{LX+4*i}, v{LX+4*i+1}\nv_cvt_pk_bf16_f32 v{QR+2*i+1}, v{LX+4*i+2}, v{LX+4*i+3}")
        lo(A, LX+4*i, QR+2*i); hi(A, LX+4*i+1, QR+2*i); lo(A, LX+4*i+2, QR+2*i+1); hi(A, LX+4*i+3, QR+2*i+1)
    stats4(A, LX, LR)
    red_part1(A, LR, vSTW, 64)
    xstamp(A, "ln_c")
    A("s_waitcnt lgkmcnt(0)\ns_barrier")
    xstamp(A, "ln_d")
    red_part2(A, vSTR, 64, ST)
    normalize(A, H, LX, ST, M+12, M+8)
    stats4(A, H, LR)
    red_part1(A, LR, vSTW, 128)
    xstamp(A, "ln_e")
    A("s_waitcnt lgkmcnt(0)\ns_barrier")
    xstamp(A, "ln_f")
    red_part2(A, vSTR, 128, ST)
    normalize(A, H, H, ST)
    for i in range(4):
        A(f"v_cvt_pk_bf16_f32 v{YR+2*i}, v{H+4*i}, v{H+4*i+1}\nv_cvt_pk_bf16_f32 v{YR+2*i+1}, v{H+4*i+2}, v{H+4*i+3}")
        A(f"v_xor_b32 v15, {i*16}, v12")
        A(f"ds_write_b64 v15, v[{YR+2*i}:{YR+2*i+1}]")
    xstamp(A, "ln_g")
    A(f"s_cmp_ge_u32 s{sWAVE}, 4\ns_cbranch_scc1 L_b2")
    A(f"v_lshrrev_b32 v12, 3, v0\nv_and_b32 v13, 7, v0\nv_and_b32 v14, 7, v12\nv_xor_b32 v14, v14, v13\nv_lshlrev_b32 v14, 4, v14\nv_lshl_add_u32 v14, v12, 7, v14\nv_add_u32 v14, {L_MOD}, v14")
    A(f"s_lshr_b32 s3, s{sTB}, 1\ns_lshl_b32 s3, s3, 15\ns_and_b32 s57, s{sTB}, 1\ns_lshl_b32 s57, s57, 7\ns_add_u32 s3, s3, s57\ns_add_u32 s3, s3, {WS_Y2F}")
    A("v_lshlrev_b32 v15, 8, v12\nv_lshl_add_u32 v15, v13, 4, v15")
    A("s_waitcnt lgkmcnt(0)\ns_barrier")
    xstamp(A, "ln_h")
    for i in range(4): A(f"ds_read_b128 v[{64+4*i}:{67+4*i}], v14 offset:{i*4096}")
    for i in range(4):
        A(f"s_waitcnt lgkmcnt({3-i})")
        A(f"buffer_store_dwordx4 v[{64+4*i}:{67+4*i}], v15, {WS}, s3 offen sc1")
        if i < 3: A("s_add_u32 s3, s3, 8192")
    A(f"s_lshl_b32 s3, s{sTB}, 2\ns_add_u32 s3, s3, s{sWAVE}\ns_lshl_b32 s3, s3, 7\ns_add_u32 s3, s3, {F_S3}")
    A("s_waitcnt vmcnt(0)")
    flag_set(A, "s3", 52, vL16)
    xstamp(A, "ln_i")
    A("s_barrier")
    stamp(A, 8)
    g1_consumer(A, 9)
    g2_consumer(A, 12)
    if STAMPS:
        A("s_waitcnt vmcnt(0)"); stamp(A, 14)
    stamp_flush(A)
    A("s_endpgm")
    A.flush_hist()
    A("L_b2:")
    A("s_waitcnt lgkmcnt(0)\ns_barrier")
    stamp(A, 8)
    A("s_barrier")
    for _ in range(2): g1_issue_w(A)
    A(f"v_and_b32 v47, 15, v2\nv_lshlrev_b32 v47, 7, v47\ns_lshl_b32 s3, s60, 13\ns_lshl_b32 s57, s64, 11\ns_add_u32 s3, s3, s57\ns_add_u32 s3, s3, {F_S3}")
    poll(A, 47, "s3", 48)
    stamp(A, 9)
    A(f"s_or_b32 s3, s2, s64\ns_cmp_lg_u32 s3, 0\ns_cbranch_scc1 L_noepoch")
    flag_set(A, "0", 52, vL16)
    A("s_waitcnt vmcnt(0)")
    A("L_noepoch:")
    g1_prod_main(A)
    stamp(A, 10)
    g2_producer(A)
    stamp(A, 13)
    stamp_flush(A)
    A("L_exit:\ns_endpgm")
    A("L_end:")

def build():
    A = Asm()
    kernel(A)
    head = ["; generated by dev/gen6.py (single persistent kernel; see that generator for the design notes)",
            f"; @launch grid=(256,1,1) block=(512,1,1) lds={LDS_TOTAL}",
            '.amdgcn_target "amdgcn-amd-amdhsa--gfx950"', ".text"]
    tail = ['.section .rodata,"a"', ".p2align 6", descriptor(NAME, 256, 102)]
    return "\n".join(head) + "\n" + A.text() + "\n".join(tail)

if __name__ == "__main__":
    if "-stamps" in sys.argv: STAMPS = True
    for a in sys.argv:
        if a.startswith("-o="):
            for kv in a[3:].split(","):
                k, v = kv.split(":"); OPT[k] = int(v)
        if a.startswith("-xs="):
            STAMPS = True
            for n, nm in enumerate(a[4:].split(",")): XS[nm] = n + 1
    out = sys.argv[1] if len(sys.argv) > 1 and not sys.argv[1].startswith("-") else "adaLN_cond__ssm_conv_h3__mixer_channel_mlp__prompt.s"
    open(out, "w").write(build())
```

```python
import sys, math, struct
from asmgen import *

MB = 1 << 20
NAME = "adaLN_cond__ssm_conv_h3__mixer_channel_mlp__prompt_kernel"
F_E, F_S2C, F_S2R, F_GVC, F_GVR, F_MOD = 0, 0x1000, 0x3000, 0x5000, 0x7000, 0x10000
F_S3, F_S4A, F_S5, F_S4B, F_S1 = 0x20000, 0x40000, 0x60000, 0x80000, 0xC0000
F_S4H = 40*MB
L_OFF = 131072
XI = 224
WS_KVR, WS_YB, WS_X1, WS_Y2F, WS_HF, WS_PART, WS_ST = 1*MB, 5*MB, 9*MB, 13*MB, 17*MB, 32*MB, 48*MB
P = dict(q=4, k=6, v=8, shift=10, ssmk=12, ssmD=14, w1=18, b1=20, w2=22, b2=24, c=26, wmod=28, out=30, ws=34)
WS = "s[36:39]"
SA_, SB_, SC_ = 40, 44, 48
sWAVE, sN, sCT, sTT, sC0 = 52, 53, 54, 55, 56
sCG, sTB = 0, 1
sPF, sDUMMY = 16, 32
PS = 4160; WSZ = 4 * PS; L_Q = 4 * WSZ; L_GW = 102400; L_GS = L_GW + 49152
L_KT = 86016; L_VT = L_KT + 17408; L_TB = L_VT + 16384
L_YS = 86016; L_MOD = 135168; L_ST = 162816; LDS_TOTAL = 163840
L_CNT = L_ST + 192
G1_W, G1_WSLOT, G1_A = 0, 28672, 86016
QR = 240
STAMPS = False
OPT = {}
def opt(k, d=0): return OPT.get(k, d)
def wpol(): return ['', 'nt', 'sc1'][opt('wpol')]
def asc(): return '' if opt('nosc1') else 'sc1'

def f2u(x): return struct.unpack("<I", struct.pack("<f", x))[0]
def srd(A, d, name, nbytes):
    b = P[name]
    A(f"s_mov_b32 s{d}, s{b}\ns_mov_b32 s{d+1}, s{b+1}\ns_mov_b32 s{d+2}, {nbytes}\ns_mov_b32 s{d+3}, 0x20000")
    return f"s[{d}:{d+3}]"
def lo(A, d, s): A(f"v_lshlrev_b32 v{d}, 16, v{s}")
def hi(A, d, s): A(f"v_and_b32 v{d}, 0xffff0000, v{s}")

NSLOT = 15
XS = {}
def xstamp(A, name):
    if STAMPS and name in XS: A(f"s_memrealtime s[{72+2*XS[name]}:{73+2*XS[name]}]")
    if STAMPS and "c:" + name in XS: A(f"s_memtime s[{72+2*XS['c:'+name]}:{73+2*XS['c:'+name]}]")
def stamp(A, slot):
    xstamp(A, str(slot))
    if STAMPS and (slot == 0 or not XS):
        if slot == 0:
            for i in range(1, NSLOT): A(f"s_mov_b32 s{72+2*i}, 0")
        A(f"s_memrealtime s[{72+2*slot}:{73+2*slot}]")
def stamp_flush(A):
    if not STAMPS: return
    A("s_waitcnt lgkmcnt(0)")
    if opt("xcc"):
        l = A.newlabel("nopad"); l2 = A.newlabel("padl")
        A(f"s_cmp_lg_u32 s{sWAVE}, 0\ns_cbranch_scc1 {l}")
        A("s_getreg_b32 s42, hwreg(HW_REG_XCC_ID)\ns_sub_u32 s42, s42, s2\ns_and_b32 s42, s42, 7")
        if opt("xcc") == 2: A("s_sub_u32 s42, 7, s42")
        A("s_mul_i32 s42, s42, 1000\ns_add_u32 s42, s42, 10000")
        A(f"{l2}:")
        A(f"s_memrealtime s[40:41]\ns_waitcnt lgkmcnt(0)\ns_sub_u32 s40, s40, s72\ns_cmp_lt_u32 s40, s42\ns_cbranch_scc1 {l2}")
        A(f"{l}:")
        return
    if opt("pb"):
        l = A.newlabel("nopad"); l2 = A.newlabel("padl")
        A(f"s_cmp_lg_u32 s2, {opt('dbgwg', 37)}\ns_cbranch_scc1 {l}\ns_cmp_lg_u32 s{sWAVE}, 0\ns_cbranch_scc1 {l}")
        A(f"s_sub_u32 s42, s{72+2*opt('pb')}, s{72+2*opt('pa')}\ns_add_u32 s42, s42, 10000")
        A(f"{l2}:")
        A(f"s_memrealtime s[40:41]\ns_waitcnt lgkmcnt(0)\ns_sub_u32 s40, s40, s72\ns_cmp_lt_u32 s40, s42\ns_cbranch_scc1 {l2}")
        A(f"{l}:")
        return
    if opt("pad", -1) >= 0:
        l = A.newlabel("nopad"); l2 = A.newlabel("padl")
        A(f"s_cmp_lg_u32 s2, {opt('dbgwg', 37)}\ns_cbranch_scc1 {l}\ns_cmp_lg_u32 s{sWAVE}, 0\ns_cbranch_scc1 {l}")
        A(f"{l2}:")
        A(f"s_memrealtime s[40:41]\ns_waitcnt lgkmcnt(0)\ns_sub_u32 s40, s40, s{72+2*opt('pad')}\ns_cmp_lt_u32 s40, {opt('padt', 10000)}\ns_cbranch_scc1 {l2}")
        A(f"{l}:")
        return
    if opt("dbgst"):
        l = A.newlabel("nodbg")
        A(f"s_cmp_lg_u32 s2, {opt('dbgwg', 37)}\ns_cbranch_scc1 {l}\ns_cmp_lg_u32 s{sWAVE}, {opt('dbgst')-1}\ns_cbranch_scc1 {l}")
        A("s_mov_b32 s40, s6\ns_mov_b32 s41, s7\ns_mov_b32 s42, 256\ns_mov_b32 s43, 0x20000")
        A("s_mov_b64 exec, 1\nv_mov_b32 v1, 0")
        for i in range(NSLOT):
            A(f"s_sub_u32 s3, s{72+2*i}, s72\nv_mov_b32 v2, s3")
            A(f"buffer_store_dword v2, v1, s[40:43], 0 offen offset:{4*i}")
        A("s_waitcnt vmcnt(0)")
        A(f"{l}:")
        return
    A(f"s_lshl_b32 s3, s2, 9\ns_lshl_b32 s57, s{sWAVE}, 6\ns_add_u32 s3, s3, s57\ns_add_u32 s3, s3, {WS_ST}")
    A("s_mov_b64 exec, 1\nv_mov_b32 v1, 0")
    for i in range(NSLOT):
        A(f"v_mov_b32 v2, s{72+2*i}")
        A(f"buffer_store_dword v2, v1, {WS}, s3 offen offset:{4*i}")
    A("s_waitcnt vmcnt(0)")

def flag_set(A, soff, vt, vl16):
    for i in range(4): A(f"v_mov_b32 v{vt+i}, s{sN}")
    A("s_mov_b64 exec, 0xff")
    A(f"buffer_store_dwordx4 v[{vt}:{vt+3}], v{vl16}, {WS}, {soff} offen sc1")
    A("s_mov_b64 exec, -1")
def poll(A, vaddr, soff, vt, sleep=0):
    l = A.newlabel("poll"); d = A.newlabel("pdone")
    A("s_mov_b32 s57, 0")
    A(f"{l}:")
    A(f"buffer_load_dword v{vt}, v{vaddr}, {WS}, {soff} offen sc1")
    A("s_waitcnt vmcnt(0)")
    A(f"v_cmp_ne_u32 vcc, s{sN}, v{vt}")
    A("s_nop 1")
    A(f"s_cbranch_vccz {d}")
    if sleep: A(f"s_sleep {sleep}")
    A(f"s_add_u32 s57, s57, 1\ns_cmp_lt_u32 s57, 0x40000\ns_cbranch_scc1 {l}")
    A(f"{d}:")
def arrive(A, cbase, rbase, lcnt, vt, vl16, nw=4):
    d = A.newlabel("arr")
    A(f"v_mov_b32 v{vt}, 1\nv_mov_b32 v{vt+1}, {lcnt}\ns_mov_b64 exec, 1")
    A(f"ds_add_rtn_u32 v{vt+2}, v{vt+1}, v{vt}")
    A(f"s_lshl_b32 s57, s{sCT}, 7\ns_add_u32 s58, s57, {cbase}\ns_add_u32 s59, s57, {rbase}")
    A(f"s_waitcnt lgkmcnt(0)\nv_readfirstlane_b32 s57, v{vt+2}")
    A(f"s_cmp_lg_u32 s57, {nw-1}\ns_cbranch_scc1 {d}")
    A(f"buffer_atomic_add v{vt}, v{vl16}, {WS}, s58 offen sc0 sc1")
    A("s_waitcnt vmcnt(0)")
    A(f"v_readfirstlane_b32 s57, v{vt}")
    A(f"s_sub_u32 s57, s57, s{sC0}\ns_cmp_lg_u32 s57, 15\ns_cbranch_scc1 {d}")
    A("s_mov_b64 exec, -1")
    flag_set(A, "s59", vt, vl16)
    A(f"{d}:")
    A("s_mov_b64 exec, -1")

def stats4(A, X, R):
    for i in range(4):
        A(f"v_add_f32 v{R+i}, v{X+4*i}, v{X+4*i+1}")
        A(f"v_mul_f32 v{R+4+i}, v{X+4*i}, v{X+4*i}")
    for c in (2, 3):
        for i in range(4): A(f"v_add_f32 v{R+i}, v{R+i}, v{X+4*i+c}")
    for c in (1, 2, 3):
        for i in range(4): A(f"v_fmac_f32 v{R+4+i}, v{X+4*i+c}, v{X+4*i+c}")
DPPM = "row_mask:0xf bank_mask:0xf"
def red_part1(A, R, vW, off):
    for e in range(4): A(f"v_permlane32_swap_b32 v{R+e}, v{R+e+4}")
    for e in range(4): A(f"v_add_f32 v{R+e}, v{R+e}, v{R+e+4}")
    for e in range(2): A(f"v_permlane16_swap_b32 v{R+e}, v{R+e+2}")
    for e in range(2): A(f"v_add_f32 v{R+e}, v{R+e}, v{R+e+2}")
    for m in ("row_ror:8", "quad_perm:[1,0,3,2]", "quad_perm:[2,3,0,1]"):
        for e in range(2): A(f"v_add_f32_dpp v{R+e}, v{R+e}, v{R+e} {m} {DPPM}")
    A("s_mov_b32 exec_lo, 0x00110011\ns_mov_b32 exec_hi, 0x00110011")
    A(f"ds_add_f32 v{vW}, v{R} offset:{off}\nds_add_f32 v{vW}, v{R+1} offset:{off+4}")
    A("s_mov_b64 exec, -1")
def red_part2(A, vRd, off, tmp):
    A(f"ds_read2_b32 v[{tmp}:{tmp+1}], v{vRd} offset0:{off//4} offset1:{off//4 + 4}")
    A("s_waitcnt lgkmcnt(0)")
    A(f"v_mul_f32 v{tmp}, {f2u(1/1024):#x}, v{tmp}")
    A(f"v_mul_f32 v{tmp+2}, v{tmp}, v{tmp}")
    A(f"v_mul_f32 v{tmp+1}, {f2u(1/1024):#x}, v{tmp+1}")
    A(f"v_sub_f32 v{tmp+1}, v{tmp+1}, v{tmp+2}")
    A(f"v_max_f32 v{tmp+1}, 0, v{tmp+1}")
    A(f"v_add_f32 v{tmp+1}, {f2u(1e-5):#x}, v{tmp+1}")
    A(f"v_rsq_f32 v{tmp+1}, v{tmp+1}")
def qp(i): return f"quad_perm:[{i},{i},{i},{i}] {DPPM}"
def normalize(A, D, X, st, G=None, S=None):
    for i in range(4):
        for c in range(4): A(f"v_subrev_f32_dpp v{D+4*i+c}, v{st}, v{X+4*i+c} {qp(i)}")
    for i in range(4):
        for c in range(4): A(f"v_mul_f32_dpp v{D+4*i+c}, v{st+1}, v{D+4*i+c} {qp(i)}")
    if G is not None:
        for i in range(4):
            for c in range(0, 4, 2): A(f"v_pk_fma_f32 v[{D+4*i+c}:{D+4*i+c+1}], v[{D+4*i+c}:{D+4*i+c+1}], v[{G+c}:{G+c+1}], v[{S+c}:{S+c+1}]")
LX = 16
LR = 32
vSTW, vSTR, vCG, vHF = 4, 5, 6, 7
def ln_ids(A, cg, hf):
    A(f"v_lshrrev_b32 v{cg}, 3, v0\nv_and_b32 v{hf}, 3, v0\nv_lshl_add_u32 v{cg}, v{cg}, 2, v{hf}\nv_bfe_u32 v{hf}, v0, 2, 1")
def q_addr(A, vt):
    srd(A, SC_, "q", 4*MB)
    ln_ids(A, vt, vt+1)
    A(f"v_lshlrev_b32 v{vt}, 3, v{vt}\nv_lshl_add_u32 v{vt}, v{vt+1}, 13, v{vt}")
    A(f"s_lshl_b32 s3, s{sTB}, 14\nv_add_u32 v{vt}, s3, v{vt}\nv_add_u32 v{vt+1}, 4096, v{vt}")
def q_issue(A, vt):
    for i in range(4):
        A(f"buffer_load_dwordx2 v[{QR+2*i}:{QR+2*i+1}], v{vt+i//2}, s[{SC_}:{SC_+3}], 0 offen offset:{(i%2)*2048} nt")
def ln0_part1(A):
    ln_ids(A, vCG, vHF)
    A(f"v_lshrrev_b32 v{vSTW}, 4, v2\nv_lshlrev_b32 v{vSTW}, 3, v{vSTW}\nv_lshl_add_u32 v{vSTW}, v{vHF}, 5, v{vSTW}\nv_add_u32 v{vSTW}, {L_ST}, v{vSTW}")
    A(f"v_and_b32 v{vSTR}, 3, v0\nv_lshlrev_b32 v{vSTR}, 2, v{vSTR}\nv_lshl_add_u32 v{vSTR}, v{vHF}, 5, v{vSTR}\nv_add_u32 v{vSTR}, {L_ST}, v{vSTR}")
    for i in range(4):
        lo(A, LX+4*i, QR+2*i); hi(A, LX+4*i+1, QR+2*i); lo(A, LX+4*i+2, QR+2*i+1); hi(A, LX+4*i+3, QR+2*i+1)
    stats4(A, LX, LR)
    red_part1(A, LR, vSTW, 0)
def x1_store(A):
    for i in range(4):
        A(f"s_mov_b32 s3, {i*0x100000}")
        A(f"buffer_store_dwordx4 v[{XI+4*i}:{XI+4*i+3}], v248, {WS}, s3 offen sc1")
def sprefetch(A, n, adv):
    for k in range(n): A(f"s_load_dword s{sDUMMY}, s[{sPF}:{sPF+1}], {k*64}")
    A(f"s_add_u32 s{sPF}, s{sPF}, {adv}\ns_addc_u32 s{sPF+1}, s{sPF+1}, 0")

def tile_ids(A, which):
    A("s_and_b32 s57, s2, 7\ns_lshr_b32 s58, s2, 3")
    if opt("loc"):
        A("s_and_b32 s60, s2, 15")
        if which == 1:
            A("s_lshr_b32 s61, s2, 4")
            A("s_mul_i32 s62, s61, 448\ns_and_b32 s3, s61, 1\ns_cmp_eq_u32 s3, 0")
            A("s_cselect_b32 s63, 384, 0\ns_cselect_b32 s3, 0, 64\ns_add_u32 s63, s63, s62\ns_add_u32 s62, s62, s3")
        else:
            A("s_bfe_u32 s61, s2, 0x10004\ns_lshr_b32 s62, s2, 5\ns_lshl_b32 s62, s62, 8\ns_lshl_b32 s3, s61, 7\ns_add_u32 s62, s62, s3\ns_xor_b32 s63, s62, 128")
    elif which == 1:
        A("s_and_b32 s60, s57, 1\ns_lshl_b32 s60, s60, 3\ns_and_b32 s3, s58, 7\ns_add_u32 s60, s60, s3")
        A("s_lshr_b32 s61, s57, 1\ns_lshl_b32 s61, s61, 2\ns_lshr_b32 s3, s58, 3\ns_add_u32 s61, s61, s3")
        A("s_mul_i32 s62, s61, 448\ns_and_b32 s3, s61, 1\ns_cmp_eq_u32 s3, 0")
        A("s_cselect_b32 s63, 384, 0\ns_cselect_b32 s3, 0, 64\ns_add_u32 s63, s63, s62\ns_add_u32 s62, s62, s3")
    else:
        A("s_lshr_b32 s60, s57, 1\ns_lshl_b32 s60, s60, 2\ns_and_b32 s3, s58, 3\ns_add_u32 s60, s60, s3")
        A("s_and_b32 s61, s57, 1\ns_lshr_b32 s62, s58, 2\ns_lshl_b32 s62, s62, 8\ns_lshl_b32 s3, s61, 7\ns_add_u32 s62, s62, s3\ns_xor_b32 s63, s62, 128")

G1_NST = 16
G1_ASLOT, G1_USZ, G1_HOFF = 16384, 8192, 24576
PVA, PVW = 200, 204
def unit_lane_off(A, t, rs):
    A(f"v_lshrrev_b32 v{t}, 3, v2\nv_lshrrev_b32 v{t+1}, 1, v{t}\nv_lshlrev_b32 v{t+1}, 1, v{t+1}\nv_and_b32 v{t+2}, 7, v2\nv_xor_b32 v{t+1}, v{t+1}, v{t+2}\nv_lshlrev_b32 v{t+1}, 4, v{t+1}")
    A(f"s_movk_i32 s3, {rs}\nv_mul_lo_u32 v{t}, v{t}, s3\nv_add_u32 v{t}, v{t}, v{t+1}")
def g1_prod_setup(A):
    RS = 7168
    A(f"s_sub_u32 s64, s{sWAVE}, 4")
    A(f"s_lshl_b32 s3, s60, 3\ns_lshl_b32 s57, s64, 1\ns_add_u32 s3, s3, s57\ns_lshl_b32 s3, s3, 11\ns_add_u32 s3, s3, {WS_Y2F}")
    A(f"v_lshlrev_b32 v{PVA}, 4, v2\nv_add_u32 v{PVA}, s3, v{PVA}")
    t = 212
    unit_lane_off(A, t, RS)
    A(f"s_mul_i32 s3, s64, {16*RS}\ns_add_u32 s3, s3, s62\nv_add_u32 v{t}, s3, v{t}")
    for u in range(3):
        for rgi in range(2):
            A(f"v_add_u32 v{PVW+u*2+rgi}, {u*128 + rgi*8*RS - rgi*1024}, v{t}")
    A(f"v_lshrrev_b32 v{t}, 2, v2\nv_bfe_u32 v{t+1}, v2, 4, 1\nv_and_b32 v{t+2}, 3, v2\nv_xor_b32 v{t+1}, v{t+1}, v{t+2}\nv_lshlrev_b32 v{t+1}, 4, v{t+1}")
    A(f"s_movk_i32 s3, {RS}\nv_mul_lo_u32 v{t}, v{t}, s3\nv_add_u32 v{t}, v{t}, v{t+1}")
    A(f"s_mul_i32 s3, s64, {16*RS}\ns_add_u32 s3, s3, s63\nv_add_u32 v{PVW+6}, s3, v{t}")
    A("s_mov_b32 s65, 0\ns_mov_b32 s66, 0")
    A(f"s_lshl_b32 s67, s64, 12\ns_add_u32 s67, s67, {G1_A}")
    A(f"s_lshl_b32 s68, s64, 11")
    A(f"s_lshl_b32 s69, s64, 10\ns_sub_u32 s69, {G1_HOFF}, s69")
    A(f"s_add_u32 s70, s67, {3*G1_ASLOT}\ns_add_u32 s71, s68, {3*G1_WSLOT}")
    srd(A, SA_, "w1", 1024*7168)
def g1_issue_w(A):
    for u in range(3):
        A(f"s_add_u32 m0, s68, {u*G1_USZ}")
        for rgi in range(2):
            A(f"buffer_load_dwordx4 v{PVW+u*2+rgi}, s[{SA_}:{SA_+3}], s66 offen offset:{rgi*1024} {wpol()} lds")
    A("s_add_u32 m0, s68, s69")
    A(f"buffer_load_dwordx4 v{PVW+6}, s[{SA_}:{SA_+3}], s66 offen {wpol()} lds")
    A(f"s_add_u32 s66, s66, {64*7168}")
    A(f"s_add_u32 s68, s68, {G1_WSLOT}\ns_cmp_eq_u32 s68, s71\ns_cselect_b32 s3, {3*G1_WSLOT}, 0\ns_sub_u32 s68, s68, s3")
def g1_issue_a(A):
    A("s_mov_b32 m0, s67")
    for k in range(4): A(f"buffer_load_dwordx4 v{PVA}, {WS}, s65 offen offset:{k*1024} {asc()} lds")
    A("s_add_u32 s65, s65, 0x40000")
    A(f"s_add_u32 s67, s67, {G1_ASLOT}\ns_cmp_eq_u32 s67, s70\ns_cselect_b32 s3, {3*G1_ASLOT}, 0\ns_sub_u32 s67, s67, s3")
def g1_prod_main(A):
    NI = 11
    g1_issue_a(A); g1_issue_a(A); g1_issue_w(A); g1_issue_a(A)
    s2_ = srd(A, SB_, "w2", 3584*2048)
    A("s_mul_i32 s48, s2, 224\ns_mul_i32 s57, s64, 56\ns_add_u32 s48, s48, s57\ns_lshl_b32 s48, s48, 7")
    A("v_min_u32 v50, 55, v2\nv_lshlrev_b32 v50, 7, v50")
    A(f"s_lshr_b32 s49, s2, 3\ns_and_b32 s49, s49, 7\ns_add_u32 s49, s49, {opt('evat', 2)}")
    A(f"s_add_u32 s3, s49, {8 - opt('evat', 2)}\ns_lshl_b32 s3, s3, 3\ns_and_b32 s57, s2, 1\ns_lshl_b32 s57, s57, 2\ns_add_u32 s3, s3, s57\ns_lshr_b32 s57, s2, 6\ns_add_u32 s3, s3, s57\ns_lshl_b32 s3, s3, 2\ns_add_u32 s3, s3, s64\ns_lshl_b32 s3, s3, 1")
    A("v_bfe_u32 v52, v2, 4, 1\nv_add_u32 v52, s3, v52\ns_movk_i32 s3, 7168\nv_mul_lo_u32 v52, v52, s3\nv_and_b32 v53, 15, v2\nv_min_u32 v53, 13, v53\nv_lshl_add_u32 v52, v53, 7, v52")
    A("s_bfe_u32 s50, s2, 0x20001\ns_mul_i32 s50, s50, 1792")
    if opt("spread"):
        LA = opt("spread")
        A("s_mul_i32 s48, s2, 28672\nv_min_u32 v50, 17, v2\nv_lshlrev_b32 v50, 7, v50")
        A("s_lshr_b32 s3, s2, 3\ns_lshl_b32 s3, s3, 1\ns_and_b32 s57, s2, 1\ns_add_u32 s3, s3, s57\ns_mul_i32 s3, s3, 7168\ns_add_u32 s50, s50, s3")
        A(f"s_add_u32 s50, s50, {LA*64*7168}\nv_lshlrev_b32 v52, 7, v53")
    A(f"s_waitcnt vmcnt({4+NI})\ns_barrier")
    A("s_mov_b32 s59, 0")
    l = A.newlabel("ploop"); l2 = A.newlabel("pnp")
    A(f"{l}:")
    A(f"s_waitcnt vmcnt({NI})\ns_barrier")
    g1_issue_w(A); g1_issue_a(A)
    if opt("spread"):
        A(f"s_cmp_lg_u32 s64, 3\ns_cbranch_scc1 {l2}")
        if not opt("nopf3"): A(f"buffer_load_dword v53, v52, s[{SA_}:{SA_+3}], s50 offen")
        A(f"buffer_load_dword v51, v50, {s2_}, s48 offen")
        A(f"s_add_u32 s48, s48, {18*128}\ns_add_u32 s50, s50, {64*7168}")
        A(f"{l2}:")
    elif not opt("nopf2"):
        A(f"s_cmp_lg_u32 s59, s49\ns_cbranch_scc1 {l2}")
        if not opt("nopf3"): A(f"buffer_load_dword v53, v52, s[{SA_}:{SA_+3}], s50 offen")
        A(f"buffer_load_dword v51, v50, {s2_}, s48 offen")
        A(f"{l2}:")
    A(f"s_add_u32 s59, s59, 1\ns_cmp_lg_u32 s59, 13\ns_cbranch_scc1 {l}")

def tr_base(A):
    A("v_lshrrev_b32 v3, 4, v2\nv_and_b32 v4, 15, v2")
    A("v_lshrrev_b32 v6, 2, v2\nv_and_b32 v6, 7, v6\nv_lshrrev_b32 v7, 1, v6\nv_lshlrev_b32 v7, 5, v7\nv_lshl_add_u32 v7, v6, 7, v7")
    A("v_and_b32 v8, 3, v2\nv_lshl_add_u32 v7, v8, 3, v7\nv_lshrrev_b32 v9, 5, v2\nv_lshl_add_u32 v7, v9, 10, v7")
def interleave(A, mf, fill, per):
    n = 0
    for m in mf:
        A(m)
        for _ in range(per(n)):
            if n < len(fill): A(fill[n]); n += 1
    while n < len(fill): A(fill[n]); n += 1

def sched(A, mf, slots):
    for n, m in enumerate(mf):
        A(m)
        for l in slots.get(n, []): A(l)
def align8(A):
    A.raw(".p2align 3")

def g1_consumer(A, st0):
    NT = 7
    A(f"s_and_b32 s64, s{sWAVE}, 1\ns_lshr_b32 s65, s{sWAVE}, 1")
    tr_base(A)
    tile_ids(A, 2)
    sb = srd(A, SA_, "b2", 2048)
    A(f"s_lshl_b32 s3, s65, 6\ns_add_u32 s3, s3, s62\ns_lshl_b32 s57, s3, 1\ns_add_u32 s57, s57, {F_MOD + 5*4096}")
    A("v_lshlrev_b32 v6, 3, v3\nv_lshlrev_b32 v18, 4, v3")
    for t in range(2): A(f"buffer_load_dwordx2 v[{XI+2*t}:{XI+2*t+1}], v6, {sb}, s3 offen offset:{t*32}")
    for t in range(2): A(f"buffer_load_dwordx4 v[{XI+4+4*t}:{XI+7+4*t}], v18, {WS}, s57 offen offset:{t*64} sc1")
    tile_ids(A, 1)
    vA, VT, TC = 5, 10, 44
    A(f"s_lshl_b32 s3, s64, 13\ns_add_u32 s3, s3, {G1_A}\nv_lshlrev_b32 v5, 4, v2\nv_add_u32 v5, s3, v5")
    A(f"s_lshl_b32 s3, s65, 14")
    for cb in range(4):
        A(f"v_xor_b32 v{VT+cb}, {cb*32}, v7\nv_add_u32 v{VT+cb}, s3, v{VT+cb}")
    A("s_lshl_b32 s3, s65, 6")
    for e in range(2):
        A(f"v_xor_b32 v{VT+4+e}, s3, v7\nv_xor_b32 v{VT+4+e}, {e*32}, v{VT+4+e}\nv_add_u32 v{VT+4+e}, {G1_USZ}, v{VT+4+e}")
    A("v_and_b32 v9, 2, v8\nv_or_b32 v9, s65, v9\nv_and_b32 v6, 1, v3\nv_xor_b32 v9, v9, v6\nv_lshlrev_b32 v9, 4, v9")
    A(f"v_lshrrev_b32 v6, 2, v2\nv_lshl_add_u32 v9, v6, 6, v9\nv_and_b32 v6, 1, v8\nv_lshl_add_u32 v9, v6, 3, v9\nv_add_u32 v{VT+6}, {G1_HOFF}, v9")
    A(f"s_lshl_b32 s3, s65, 8\ns_add_u32 s{TC}, s62, s3")
    for cb in range(1, 4): A(f"s_add_u32 s{TC+cb}, s{TC}, {cb*32}")
    A(f"s_lshl_b32 s3, s65, 6\ns_add_u32 s{TC+4}, s62, s3\ns_add_u32 s{TC+4}, s{TC+4}, 128\ns_add_u32 s{TC+5}, s{TC+4}, 32")
    A(f"s_lshl_b32 s3, s65, 4\ns_add_u32 s{TC+6}, s63, s3")
    ACC = 20
    FA = [ACC + 16*NT, ACC + 16*NT + 16]
    FW = [FA[1] + 16, FA[1] + 16 + 4*NT]
    sb = srd(A, SA_, "b1", 7168)
    A("v_lshlrev_b32 v6, 3, v3\nv_and_b32 v9, 1, v3\nv_lshlrev_b32 v9, 3, v9\nv_lshrrev_b32 v17, 1, v3\nv_lshl_add_u32 v9, v17, 5, v9")
    for t in range(NT):
        A(f"buffer_load_dwordx2 v[{FW[1]+2*t}:{FW[1]+2*t+1}], v{6 if t < 6 else 9}, {sb}, s{TC+t} offen")
    A("s_waitcnt vmcnt(0)")
    for t in range(NT):
        a = ACC + 4*t
        lo(A, a, FW[1]+2*t); hi(A, a+1, FW[1]+2*t); lo(A, a+2, FW[1]+2*t+1); hi(A, a+3, FW[1]+2*t+1)
    for i in range(1, 4):
        for t in range(NT):
            for r in range(4): A(f"v_mov_b32 v{ACC+4*(i*NT+t)+r}, v{ACC+4*t+r}")
    c0 = -2.0 * 1.4426950408889634 * math.sqrt(2.0 / math.pi)
    A(f"v_mov_b32 v240, {f2u(c0*0.044715):#x}\nv_mov_b32 v241, v240\nv_mov_b32 v242, {f2u(c0):#x}\nv_mov_b32 v243, v242")
    h_addr(A, 64, 65, TC)
    A(f"s_lshl_b32 s45, s60, 4\ns_add_u32 s45, s45, s61\ns_lshl_b32 s45, s45, 2\ns_add_u32 s45, s45, s{sWAVE}\ns_lshl_b32 s45, s45, 7")
    def reads(ks, buf):
        aa = [f"ds_read_b128 v[{FA[buf]+4*i}:{FA[buf]+4*i+3}], v{vA} offset:{(i*2+ks)*1024}" for i in range(4)]
        ww = []
        for t in range(NT):
            o0, d = (ks*2048, 1024) if t == 6 else (ks*4096, 2048)
            ww.append(f"ds_read_b64_tr_b16 v[{FW[buf]+4*t}:{FW[buf]+4*t+1}], v{VT+t} offset:{o0}")
            ww.append(f"ds_read_b64_tr_b16 v[{FW[buf]+4*t+2}:{FW[buf]+4*t+3}], v{VT+t} offset:{o0+d}")
        return aa + ww
    A(f"s_mov_b32 s59, {G1_NST-1}\ns_mov_b32 s58, 1\ns_mov_b32 s66, {G1_ASLOT}\ns_mov_b32 s67, {G1_WSLOT}")
    A(f"s_mov_b32 s70, {-2*G1_ASLOT & 0xffffffff}\ns_mov_b32 s71, {-2*G1_WSLOT & 0xffffffff}\ns_mov_b32 s68, s66\ns_mov_b32 s69, s67")
    A("s_barrier")
    stamp(A, st0)
    for l in reads(0, 0): A(l)
    A("s_waitcnt lgkmcnt(0)")
    align8(A)
    start = len(A.lines)
    lp = A.newlabel("cloop")
    A(f"{lp}:")
    for ks in range(2):
        rd = reads(ks ^ 1, ks ^ 1)
        mf = [f"v_mfma_f32_16x16x32_bf16 v[{ACC+4*(i*NT+t)}:{ACC+4*(i*NT+t)+3}], v[{FW[ks]+4*t}:{FW[ks]+4*t+3}], v[{FA[ks]+4*i}:{FA[ks]+4*i+3}], v[{ACC+4*(i*NT+t)}:{ACC+4*(i*NT+t)+3}]"
              for i in range(4) for t in range(NT)]
        sl = {n: [rd[n]] for n in range(18)}
        if ks == 0:
            ad = [f"v_add_u32 v{vA}, s68, v{vA}"] + [f"v_add_u32 v{VT+t}, s69, v{VT+t}" for t in range(NT)]
            for n in range(4): sl[18+n] = ad[2*n:2*n+2]
            sl[25] = ["s_waitcnt lgkmcnt(0)", "s_barrier"]
        else:
            sl[18] = ["s_add_u32 s58, s58, 1", "s_cmp_eq_u32 s58, 3"]
            sl[19] = ["s_cselect_b32 s58, 0, s58", "s_cselect_b32 s68, s70, s66"]
            sl[20] = ["s_cselect_b32 s69, s71, s67", "s_sub_u32 s59, s59, 1"]
            sl[26] = ["s_waitcnt lgkmcnt(0)", "s_nop 0"]
        sched(A, mf, sl)
    A(f"s_cbranch_scc0 {lp}")
    check_loop(A.lines[start:])
    stamp(A, st0 + 1)
    T = FA[0]; O = FA[1]
    for i in range(4):
        a = ACC + 4*(i*NT + 4); o = O + 4*i
        gelu8(A, T, [a, a+2, a+4, a+6], o)
        A(f"s_add_u32 s3, s{TC+4}, {i*2048}")
        A(f"buffer_store_dwordx4 v[{o}:{o+3}], v7, {WS}, s3 offen sc1")
    xstamp(A, "ge4")
    A(f"s_add_u32 s66, s45, {F_S4A}\ns_add_u32 s67, s45, {F_S4B}\ns_add_u32 s51, s45, {F_S4H}")
    late = [[ACC + 4*(i*NT + 2*pr) + 2*e for e in range(4)] for pr in range(2) for i in range(4)]
    late += [[ACC + 4*(i*NT + 6), ACC + 4*(i*NT + 6) + 2, ACC + 4*((i+1)*NT + 6), ACC + 4*((i+1)*NT + 6) + 2] for i in (0, 2)]
    for n, srcs in enumerate(late):
        o = LATE + 4*n
        gelu8(A, T, srcs, o)
        if n >= 8: A(f"v_permlane32_swap_b32 v{o}, v{o+2}\nv_permlane32_swap_b32 v{o+1}, v{o+3}")
        if n == opt("earlyat", 3):
            A("s_waitcnt vmcnt(0)")
            flag_set(A, "s66", 16, 9)
            A(f"v_mov_b32 v10, {L_CNT+12}\nv_mov_b32 v11, 1\nds_write_b32 v10, v11")
            xstamp(A, "gef")
    A(f"v_mov_b32 v220, v7\nv_mov_b32 v221, v8\ns_mov_b32 s69, s{TC}\ns_mov_b32 s71, s{TC+6}")
    stamp(A, st0 + 2)
LATE = 180

def gelu8(A, T, srcs, o):
    pr = lambda r: f"v[{r}:{r+1}]"
    for e, a in enumerate(srcs): A(f"v_pk_mul_f32 {pr(T+2*e)}, {pr(a)}, {pr(a)}")
    for e, a in enumerate(srcs): A(f"v_pk_fma_f32 {pr(T+2*e)}, {pr(T+2*e)}, v[240:241], v[242:243]")
    for e, a in enumerate(srcs): A(f"v_pk_mul_f32 {pr(T+2*e)}, {pr(T+2*e)}, {pr(a)}")
    for e in range(8): A(f"v_exp_f32 v{T+e}, v{T+e}")
    for e in range(4): A(f"v_pk_add_f32 {pr(T+2*e)}, {pr(T+2*e)}, 1.0 op_sel_hi:[1,0]")
    for e in range(8): A(f"v_rcp_f32 v{T+e}, v{T+e}")
    for e, a in enumerate(srcs): A(f"v_pk_mul_f32 {pr(T+2*e)}, {pr(T+2*e)}, {pr(a)}")
    for e in range(4): A(f"v_cvt_pk_bf16_f32 v{o+e}, v{T+2*e}, v{T+2*e+1}")
def h_addr(A, wm, wn, TC):
    A(f"s_lshl_b32 s3, s60, 3\ns_lshl_b32 s57, s{wm}, 2\ns_add_u32 s3, s3, s57\ns_lshl_b32 s3, s3, 11\ns_add_u32 s3, s3, {WS_HF}")
    A("v_lshlrev_b32 v9, 4, v2\nv_add_u32 v7, s3, v9")
    A(f"v_lshrrev_b32 v8, 5, v2\nv_mul_u32_u24 v8, {2048 - 512}, v8\nv_add_u32 v8, v8, v7\ns_lshl_b32 s3, s{wn}, 9\nv_add_u32 v8, s3, v8")
    A(f"s_lshr_b32 s{TC}, s62, 7\ns_add_u32 s{TC+4}, s{TC}, 1\ns_lshl_b32 s3, s{wn}, 1\ns_add_u32 s{TC}, s{TC}, s3\ns_lshl_b32 s{TC}, s{TC}, 18\ns_add_u32 s{TC+2}, s{TC}, 1024")
    A(f"s_lshl_b32 s{TC+4}, s{TC+4}, 18\ns_lshl_b32 s3, s{wn}, 10\ns_add_u32 s{TC+4}, s{TC+4}, s3")
    A(f"s_and_b32 s3, s63, 64\ns_lshl_b32 s3, s3, 4\ns_lshr_b32 s{TC+6}, s63, 7\ns_lshl_b32 s{TC+6}, s{TC+6}, 18\ns_add_u32 s{TC+6}, s{TC+6}, s3")

G2_SLOT = 16384; G2_W = 28672; G2_A = G2_W + 4*G2_SLOT
def g2_unit(s):
    if s < 8: return 7*(s >> 1) + (5 if s & 1 else 1), True
    if s < 24: return 7*((s-8) >> 2) + 2*((s-8) & 3), True
    return 7*(s-24) + 3, False
def g2_producer(A):
    tile_ids(A, 2)
    A(f"s_lshl_b32 s3, s60, 3\ns_lshl_b32 s57, s64, 1\ns_add_u32 s3, s3, s57\ns_lshl_b32 s3, s3, 11\ns_add_u32 s3, s3, {WS_HF}")
    A(f"v_lshlrev_b32 v{PVA}, 4, v2\nv_add_u32 v{PVA}, s3, v{PVA}")
    t = 212
    unit_lane_off(A, t, 2048)
    A(f"s_lshl_b32 s3, s64, 15\nv_add_u32 v{t}, s3, v{t}")
    A(f"v_add_u32 v{PVW}, s62, v{t}\nv_add_u32 v{PVW+1}, {16384-1024}, v{PVW}\nv_add_u32 v{PVW+2}, s63, v{t}\nv_add_u32 v{PVW+3}, {16384-1024}, v{PVW+2}")
    A(f"s_mul_i32 s65, s61, {28*262144}\ns_mul_i32 s66, s61, {28*131072}")
    A(f"s_lshl_b32 s67, s64, 12\ns_add_u32 s67, s67, {G2_A}\ns_lshl_b32 s68, s64, 11\ns_add_u32 s68, s68, {G2_W}")
    sw = srd(A, SA_, "w2", 3584*2048)
    A("v_and_b32 v46, 15, v2\nv_lshlrev_b32 v46, 8, v46\nv_and_b32 v47, 31, v2\nv_lshlrev_b32 v47, 8, v47")
    A(f"s_lshr_b32 s3, s64, 1\ns_lshl_b32 s3, s3, 7\ns_lshl_b32 s49, s60, 13\ns_add_u32 s49, s49, s3\ns_lshl_b32 s3, s61, 12\ns_add_u32 s59, s49, s3")
    A(f"s_add_u32 s59, s59, {F_S4A}\ns_add_u32 s71, s49, {F_S4B}\ns_add_u32 s49, s49, {F_S4H}")
    def iw(s):
        u, p1 = g2_unit(s)
        A(f"s_add_u32 s69, s66, {u*131072}" if p1 else f"s_mov_b32 s69, {u*131072}")
        for un in range(2 if p1 else 1):
            A(f"s_add_u32 m0, s68, {(s & 3)*G2_SLOT + un*8192}")
            for rgi in range(2):
                A(f"buffer_load_dwordx4 v{PVW+2*un+rgi}, {sw}, s69 offen offset:{rgi*1024} {wpol()} lds")
        return 4 if p1 else 2
    def ia(s):
        u, p1 = g2_unit(s)
        A(f"s_add_u32 m0, s67, {(s & 3)*G2_SLOT}")
        A(f"s_add_u32 s70, s65, {u*262144}" if p1 else f"s_mov_b32 s70, {u*262144}")
        for k in range(4): A(f"buffer_load_dwordx4 v{PVA}, {WS}, s70 offen offset:{k*1024} {asc()} lds")
        return 4
    A("s_waitcnt vmcnt(11)\ns_barrier")
    x1_store(A); iw(0)
    A("s_waitcnt vmcnt(8)\ns_barrier")
    iw(1); iw(2)
    A("s_waitcnt vmcnt(12)\ns_barrier")
    stamp(A, 10)
    iw(3)
    l = A.newlabel("wef")
    A(f"v_mov_b32 v48, {L_CNT+12}")
    A(f"{l}:")
    A(f"s_sleep 1\nds_read_b32 v49, v48\ns_waitcnt lgkmcnt(0)\nv_readfirstlane_b32 s57, v49\ns_cmp_eq_u32 s57, 0\ns_cbranch_scc1 {l}")
    stamp(A, 11)
    poll(A, 46, "s59", 48)
    stamp(A, 12)
    q = []
    for s in range(4): q.append([s, ia(s)])
    A("s_barrier")
    def wait_for(key):
        n = sum(c for k, c in q if k > key)
        A(f"s_waitcnt vmcnt({n})")
    def check(soff, key):
        wait_for(key)
        d = A.newlabel("s4ok")
        A(f"v_cmp_ne_u32 vcc, s{sN}, v48\ns_nop 1\ns_cbranch_vccz {d}")
        poll(A, 47, soff, 48)
        A(f"{d}:")
    wait_for(0); A("s_barrier")
    for s in range(32):
        if s + 1 < 32: wait_for(s + 1)
        A("s_barrier")
        n = s + 4
        if n == 8:
            A(f"buffer_load_dword v48, v47, {WS}, s71 offen sc1"); q.append([7.5, 1])
            check("s71", 7.5)
            xstamp(A, "s4c")
        if n == 22:
            A(f"buffer_load_dword v48, v47, {WS}, s49 offen sc1"); q.append([21.5, 1])
        if n == 24: check("s49", 21.5)
        if n < 32:
            c = iw(n) + ia(n); q.append([n, c])

def g2_consumer(A, st0):
    ACC, FA, FW, XR, PR, vPL = 20, [84, 100], [116, 132], 148, 164, 222
    GB = XI + 4
    tile_ids(A, 2)
    tr_base(A)
    vA, VT = 5, 10
    A(f"s_lshl_b32 s3, s64, 13\ns_add_u32 s3, s3, {G2_A}\nv_lshlrev_b32 v9, 4, v2\nv_add_u32 v5, s3, v9")
    A("s_lshl_b32 s3, s65, 6")
    for e in range(2):
        A(f"v_xor_b32 v{VT+e}, s3, v7\nv_xor_b32 v{VT+e}, {e*32}, v{VT+e}\nv_add_u32 v{VT+e}, {G2_W}, v{VT+e}")
    A(f"s_add_u32 s44, s62, s3")
    A(f"s_xor_b32 s3, s2, 1\ns_lshl_b32 s3, s3, 2\ns_add_u32 s3, s3, s{sWAVE}\ns_lshl_b32 s46, s3, 12\ns_add_u32 s46, s46, {WS_PART}\ns_lshl_b32 s47, s3, 7\ns_add_u32 s47, s47, {F_S5}")
    A(f"s_lshl_b32 s3, s2, 2\ns_add_u32 s3, s3, s{sWAVE}\ns_lshl_b32 s48, s3, 12\ns_add_u32 s48, s48, {WS_PART}\ns_lshl_b32 s49, s3, 7\ns_add_u32 s49, s49, {F_S5}")
    A(f"s_lshr_b32 s45, s44, 7\ns_lshl_b32 s45, s45, 18\ns_lshl_b32 s3, s65, 10\ns_add_u32 s45, s45, s3\ns_lshl_b32 s3, s60, 14\ns_add_u32 s45, s45, s3\ns_lshl_b32 s3, s64, 13\ns_add_u32 s45, s45, s3\ns_add_u32 s45, s45, {WS_X1}\ns_add_u32 s50, s45, 4096")
    A("v_mov_b32 v19, 0")
    for t in range(2):
        a = ACC + 4*t
        lo(A, a, XI+2*t); hi(A, a+1, XI+2*t); lo(A, a+2, XI+2*t+1); hi(A, a+3, XI+2*t+1)
    for i in range(4):
        for t in range(4):
            if i == 0 and t < 2: continue
            for r in range(4): A(f"v_mov_b32 v{ACC+4*(i*4+t)+r}, " + (f"v{ACC+4*t+r}" if t < 2 else "0"))
    for e in range(8): A(f"v_cvt_pk_bf16_f32 v{GB+e}, v{GB+e}, v{GB+e}\nv_lshlrev_b32 v{GB+e}, 16, v{GB+e}")
    def reads(ks, buf, nt):
        aa = [f"ds_read_b128 v[{FA[buf]+4*i}:{FA[buf]+4*i+3}], v{vA} offset:{(i*2+ks)*1024}" for i in range(4)]
        ww = []
        for t in range(nt):
            o0 = ks*4096 + (t >> 1)*8192
            ww.append(f"ds_read_b64_tr_b16 v[{FW[buf]+4*t}:{FW[buf]+4*t+1}], v{VT+(t&1)} offset:{o0}")
            ww.append(f"ds_read_b64_tr_b16 v[{FW[buf]+4*t+2}:{FW[buf]+4*t+3}], v{VT+(t&1)} offset:{o0+2048}")
        return aa + ww
    def stage_body(nt, hook=None):
        for ks in range(2):
            rd = reads(ks ^ 1, ks ^ 1, nt)
            mf = [f"v_mfma_f32_16x16x32_bf16 v[{ACC+4*(i*4+t)}:{ACC+4*(i*4+t)+3}], v[{FW[ks]+4*t}:{FW[ks]+4*t+3}], v[{FA[ks]+4*i}:{FA[ks]+4*i+3}], v[{ACC+4*(i*4+t)}:{ACC+4*(i*4+t)+3}]"
                  for i in range(4) for t in range(nt)]
            ad = [f"v_add_u32 v{vA}, s68, v{vA}", f"v_add_u32 v{VT}, s68, v{VT}", f"v_add_u32 v{VT+1}, s68, v{VT+1}", "s_nop 0"]
            sa = ["s_add_u32 s58, s58, 1", "s_and_b32 s58, s58, 3", "s_cselect_b32 s68, s66, s70", "s_sub_u32 s59, s59, 1"]
            ex = ad if ks == 0 else sa
            if nt == 4:
                sl = {0: rd[0:2], 1: rd[2:4], 2: rd[4:6], 3: rd[6:8], 4: rd[8:9], 5: rd[9:10], 6: rd[10:11], 7: rd[11:12], 8: ex[0:2], 9: ex[2:4]}
                sl[14] = ["s_waitcnt lgkmcnt(0)", "s_barrier" if ks == 0 else "s_nop 0"]
                if ks == 0 and hook: sl[11] = hook
            else:
                sl = {0: rd[0:3], 1: rd[3:6], 2: rd[6:8], 3: ex[0:2], 4: ex[2:4]}
                sl[7] = ["s_waitcnt lgkmcnt(0)", "s_barrier"] if ks == 0 else ["s_waitcnt lgkmcnt(0)"]
            sched(A, mf, sl)
    A(f"s_mov_b32 s59, 23\ns_mov_b32 s58, 1\ns_mov_b32 s66, {G2_SLOT}\ns_mov_b32 s68, s66\ns_mov_b32 s70, {-3*G2_SLOT & 0xffffffff}")
    A(f"s_mov_b32 s21, {23 - opt('s4bat', 2)}")
    A(f"s_lshl_b32 s3, s60, 18\ns_lshl_b32 s57, s64, 17\ns_add_u32 s3, s3, s57\ns_add_u32 s3, s3, s44")
    A("v_lshlrev_b32 v17, 11, v4\nv_and_b32 v16, 1, v3\nv_lshl_add_u32 v17, v16, 5, v17\nv_lshrrev_b32 v16, 1, v3\nv_lshl_add_u32 v17, v16, 4, v17\nv_add_u32 v17, s3, v17")
    A("s_barrier")
    for i in range(4):
        A(f"s_add_u32 s3, s69, {i*2048}")
        for pr in range(2): A(f"buffer_store_dwordx4 v[{LATE+16*pr+4*i}:{LATE+16*pr+4*i+3}], v220, {WS}, s3 offen offset:{pr*1024} sc1")
    xstamp(A, "lst")
    A("s_barrier")
    stamp(A, st0)
    for l in reads(0, 0, 4): A(l)
    A("s_waitcnt lgkmcnt(0)")
    align8(A)
    start = len(A.lines)
    lp = A.newlabel("c2a")
    A(f"{lp}:")
    stage_body(4, ["s_cmp_eq_u32 s59, s21", "s_cbranch_scc1 L_s4b", "L_s4br:"])
    A(f"s_cbranch_scc0 {lp}")
    check_loop(A.lines[start:])
    xstamp(A, "g2p1")
    for i in range(4):
        a = ACC + 4*(i*4+2)
        for e in range(4): A(f"v_cvt_pk_bf16_f32 v{PR+4*i+e}, v{a+2*e}, v{a+2*e+1}")
        A(f"buffer_store_dwordx4 v[{PR+4*i}:{PR+4*i+3}], v9, {WS}, s46 offen offset:{i*1024} sc1")
    for i in range(4): A(f"buffer_load_dwordx4 v[{XR+4*i}:{XR+4*i+3}], v9, {WS}, s{45 if i < 2 else 50} offen offset:{(i&1)*2048} sc1")
    xstamp(A, "g2st")
    A("s_mov_b32 s59, 7")
    start = len(A.lines)
    lp = A.newlabel("c2b"); l1 = A.newlabel("c2x"); l2 = A.newlabel("c2y"); l3 = A.newlabel("c2z")
    A(f"{lp}:")
    A(f"s_cmp_lg_u32 s59, {opt('p2a', 5)}\ns_cbranch_scc1 {l1}")
    A("s_waitcnt vmcnt(4)")
    flag_set(A, "s47", 12, 9)
    A(f"{l1}:")
    A(f"s_cmp_lg_u32 s59, {opt('p2b', 2)}\ns_cbranch_scc1 {l2}")
    A(f"buffer_load_dword v{vPL}, v19, {WS}, s49 offen sc1")
    A(f"{l2}:")
    A(f"s_cmp_lg_u32 s59, {opt('p2c', 0)}\ns_cbranch_scc1 {l3}")
    d = A.newlabel("s5ok")
    A(f"s_waitcnt vmcnt(0)\nv_cmp_ne_u32 vcc, s{sN}, v{vPL}\ns_nop 1\ns_cbranch_vccz {d}")
    poll(A, 19, "s49", vPL)
    A(f"{d}:")
    for j in range(4): A(f"buffer_load_dwordx4 v[{PR+4*j}:{PR+4*j+3}], v9, {WS}, s48 offen offset:{j*1024} sc1")
    A(f"{l3}:")
    stage_body(2)
    A(f"s_cbranch_scc0 {lp}")
    check_loop(A.lines[start:])
    stamp(A, st0 + 1)
    so = srd(A, SA_, "out", 4*MB)
    T = 84
    for i in range(4):
        for e in range(4): lo(A, T+8*i+2*e, XR+4*i+e); hi(A, T+8*i+2*e+1, XR+4*i+e)
        for e in range(8): A(f"v_fmac_f32 v{T+8*i+e}, v{ACC+16*i+e}, v{GB+e}")
    for i in range(4):
        A(f"s_waitcnt vmcnt({3-i+i})" if i else "s_waitcnt vmcnt(3)")
        U = 116
        for e in range(4): lo(A, U+2*e, PR+4*i+e); hi(A, U+2*e+1, PR+4*i+e)
        for e in range(8): A(f"v_fmac_f32 v{T+8*i+e}, v{U+e}, v{GB+e}")
        x = XR + 4*i
        for e in range(4): A(f"v_cvt_pk_bf16_f32 v{x+e}, v{T+8*i+2*e}, v{T+8*i+2*e+1}")
        A(f"v_permlane16_swap_b32 v{x}, v{x+2}\nv_permlane16_swap_b32 v{x+1}, v{x+3}")
        A(f"s_mov_b32 s3, {i*32768}")
        A(f"buffer_store_dwordx4 v[{x}:{x+3}], v17, {so}, s3 offen " + ["", "sc1", "nt", "sc0 sc1"][opt("outpol")])
def g2_hooks(A):
    A.flush_hist()
    A("L_s4b:")
    A("s_waitcnt vmcnt(0)")
    flag_set(A, "s67", 12, 9)
    A("s_cmp_lt_u32 s21, 16\ns_cbranch_scc1 L_s4br")
    xstamp(A, "s4b")
    for k, i in enumerate((0, 2)):
        A(f"s_add_u32 s3, s71, {i*2048}")
        A(f"buffer_store_dwordx4 v[{LATE+32+4*k}:{LATE+35+4*k}], v221, {WS}, s3 offen sc1")
    A("s_mov_b32 s21, 15\ns_mov_b32 s67, s51")
    A("s_branch L_s4br")

def kernel(A):
    kernel_begin(A, NAME)
    A("s_load_dwordx2 s[40:41], s[0:1], 8\ns_load_dwordx2 s[44:45], s[0:1], 16")
    A("s_load_dwordx16 s[4:19], s[0:1], 0\ns_load_dwordx16 s[20:35], s[0:1], 64")
    A("s_cmp_ge_u32 s2, 256\ns_cbranch_scc1 L_exit")
    stamp(A, 0)
    A("v_lshrrev_b32 v1, 6, v0\nv_and_b32 v2, 63, v0")
    if opt("map0"): A(f"s_and_b32 s{sTT}, s2, 15\ns_lshr_b32 s{sCT}, s2, 4")
    else: A(f"s_and_b32 s{sCT}, s2, 15\ns_lshr_b32 s{sTT}, s2, 4")
    A(f"v_readfirstlane_b32 s{sWAVE}, v1")
    A("v_lshrrev_b32 v3, 3, v2\nv_bfe_u32 v4, v2, 4, 1\nv_and_b32 v5, 7, v2\nv_xor_b32 v4, v4, v5\nv_lshlrev_b32 v4, 4, v4\nv_lshl_add_u32 v4, v3, 11, v4")
    A(f"s_lshl_b32 s3, s{sTT}, 18\ns_lshl_b32 s57, s{sCT}, 7\ns_add_u32 s3, s3, s57")
    A(f"s_lshl_b32 s57, s{sWAVE}, 15\ns_add_u32 s57, s57, s3")
    A(f"s_and_b32 s58, s{sWAVE}, 1\ns_lshl_b32 s58, s58, 6")
    A("v_xor_b32 v5, s58, v4\nv_add_u32 v5, s57, v5")
    A("v_xor_b32 v6, 32, v5")
    A("s_movk_i32 s58, 15360\nv_add_u32 v16, s58, v6")
    A("v_xor_b32 v17, 64, v5\nv_add_u32 v17, s58, v17")
    A(f"s_mov_b32 s42, {4*MB}\ns_mov_b32 s43, 0x20000\ns_mov_b32 s46, s42\ns_mov_b32 s47, s43")
    sk, sv = "s[40:43]", "s[44:47]"
    A(f"s_lshl_b32 s59, s{sWAVE}, 11\ns_add_u32 m0, s59, {L_KT+1024}")
    A("s_waitcnt lgkmcnt(0)")
    A(f"buffer_load_dwordx4 v6, {sk}, 0 offen nt lds\nbuffer_load_dwordx4 v17, {sk}, 0 offen offset:1024 nt lds")
    A(f"s_add_u32 m0, s59, {L_VT}")
    A(f"buffer_load_dwordx4 v5, {sv}, 0 offen nt lds\nbuffer_load_dwordx4 v16, {sv}, 0 offen offset:1024 nt lds")
    A(f"s_cmp_lg_u32 s{sWAVE}, 0\ns_cbranch_scc1 L_nohalo")
    A(f"s_sub_u32 s3, s3, 16384\ns_cmp_eq_u32 s{sTT}, 0\ns_cselect_b32 s3, 0x80000000, s3\nv_add_u32 v7, s3, v4")
    A(f"s_mov_b32 m0, {L_KT}")
    A(f"buffer_load_dwordx4 v7, {sk}, 0 offen nt lds")
    A("L_nohalo:")
    if opt("wsoff"): A(f"s_add_u32 s34, s34, {opt('wsoff')*MB}\ns_addc_u32 s35, s35, 0")
    if opt("dbgst"): A("s_mov_b32 s6, s32\ns_mov_b32 s7, s33")
    A("v_and_b32 v8, 15, v2\nv_lshrrev_b32 v9, 4, v2\nv_lshlrev_b32 v11, 4, v2")
    vL16 = 11
    A("v_and_b32 v10, 1, v9\nv_and_b32 v14, 3, v2\nv_lshl_add_u32 v10, v10, 2, v14\nv_lshlrev_b32 v10, 3, v10")
    ss = srd(A, SC_, "shift", 8192)
    A(f"s_lshl_b32 s3, s{sWAVE}, 6\ns_lshl_b32 s57, s{sCT}, 9\ns_add_u32 s3, s3, s57")
    A(f"buffer_load_dwordx2 v[12:13], v10, {ss}, s3 offen")
    tile_ids(A, 1)
    A(f"s_lshl_b32 s{sTB}, s60, 4\ns_add_u32 s{sTB}, s{sTB}, s61\ns_lshl_b32 s{sCG}, s{sCT}, 4\ns_add_u32 s{sCG}, s{sCG}, s{sTT}")
    if opt("tb0"): A(f"s_mov_b32 s{sTB}, s2")
    A(f"s_lshl_b32 s59, s{sCT}, 7")
    A(f"s_cmp_lt_u32 s{sWAVE}, 4\ns_movk_i32 s58, {F_GVC}\ns_cselect_b32 s58, {F_S2C}, s58\ns_add_u32 s59, s59, s58")
    A(f"s_lshl_b32 s60, s{sCG}, 2\ns_add_u32 s60, s60, s{sWAVE}\ns_and_b32 s60, s60, 1023")
    A("s_lshl_b32 s63, s60, 1\ns_and_b32 s63, s63, 0x7fc")
    A(f"s_load_dword s{sN}, s[34:35], {F_E}\ns_load_dword s{sC0}, s[34:35], s59\ns_load_dword s33, s[{P['ssmD']}:{P['ssmD']+1}], s63")
    A(f"v_lshlrev_b32 v14, 2, v2\nv_add_u32 v14, {L_ST}, v14\nv_mov_b32 v15, 0\nds_write_b32 v14, v15")
    A(f"s_mov_b32 s36, s34\ns_mov_b32 s37, s35\ns_mov_b32 s38, {64*MB}\ns_mov_b32 s39, 0x20000")
    A(f"s_mul_i32 s61, s{sWAVE}, {WSZ}\ns_lshl_b32 s62, s60, 12")
    sp = srd(A, SA_, "ssmk", 4*MB); sc = srd(A, SB_, "c", 2048)
    A("s_getpc_b64 s[64:65]")
    A("L_pc:")
    A(f"s_lshr_b32 s3, s2, 3\ns_and_b32 s3, s3, 31\ns_lshl_b32 s3, s3, 10\nv_and_b32 v14, 7, v2\nv_lshlrev_b32 v14, 7, v14\nv_add_u32 v14, s3, v14\nv_min_u32 v14, L_end-L_pc-4, v14")
    A(f"v_lshlrev_b32 v15, 2, v2\ns_and_b32 s3, s{sTT}, 7\ns_lshl_b32 s3, s3, 8")
    xstamp(A, "iss")
    SM = opt("ssm", 0)
    def ssm_issue():
        for i in range(4): A(f"buffer_load_dwordx4 v{vL16}, {sp}, s62 offen offset:{i*1024} nt lds")
    A("s_add_u32 m0, s61, 32")
    if SM == 0: A("s_barrier")
    A(f"s_cmp_ge_u32 s{sWAVE}, 4\ns_cbranch_scc1 L_b0")
    if SM == 0: ssm_issue()
    A("s_branch L_c0")
    A("L_b0:")
    A(f"buffer_load_dword v220, v15, {sc}, s3 offen")
    A("global_load_dword v221, v14, s[64:65]")
    A(f"s_lshr_b32 s3, s{sTT}, 1\ns_lshl_b32 s3, s3, 7\nv_and_b32 v223, 1, v9\nv_subrev_u32 v14, 1, v223\nv_and_b32 v14, s3, v14\nv_lshl_add_u32 v14, v8, 10, v14")
    A(f"s_lshl_b32 s3, s{sCT}, 14\ns_add_u32 s3, s3, {F_S1}")
    A(f"v_lshlrev_b32 v223, 14, v223\nv_lshl_add_u32 v223, v8, 7, v223\ns_movk_i32 s57, {F_S2R}")
    A(f"s_cmp_eq_u32 s{sWAVE}, 7\ns_cselect_b32 exec_lo, -1, 1\ns_mov_b32 exec_hi, 0")
    A(f"buffer_load_dword v221, v14, {WS}, s3 offen sc1")
    A(f"buffer_load_dword v221, v223, {WS}, s57 offen sc1")
    A("s_mov_b64 exec, -1")
    A("L_c0:")
    A.flush_hist()

    A("v_bfe_u32 v16, v2, 2, 2\nv_and_b32 v17, 3, v2\nv_lshrrev_b32 v18, 1, v16")
    A(f"v_xor_b32 v18, s{sWAVE}, v18")
    A("v_lshrrev_b32 v19, 1, v9\nv_lshl_add_u32 v20, v19, 3, v17\nv_lshlrev_b32 v20, 10, v20\nv_lshl_add_u32 v20, v16, 7, v20")
    A(f"v_and_b32 v21, 1, v9\nv_lshl_add_u32 v20, v21, 3, v20\nv_add_u32 v20, {L_KT}, v20")
    A("v_lshlrev_b32 v22, 1, v17\nv_xor_b32 v22, v22, v18\nv_lshl_add_u32 v22, v22, 4, v20")
    A("v_add_u32 v23, 1, v17\nv_and_b32 v23, 3, v23\nv_lshlrev_b32 v23, 1, v23\nv_xor_b32 v23, v23, v18\nv_lshl_add_u32 v23, v23, 4, v20")
    A("v_lshl_add_u32 v24, v19, 3, v16\nv_sub_u32 v24, 11, v24\nv_lshlrev_b32 v24, 6, v24\nv_lshl_add_u32 v24, v17, 4, v24\nv_lshl_add_u32 v24, v21, 14, v24")
    A(f"s_lshl_b32 s3, s{sCT}, 18\ns_lshl_b32 s57, s{sWAVE}, 15\ns_add_u32 s3, s3, s57\ns_lshl_b32 s57, s{sTT}, 10\ns_sub_u32 s3, s3, s57\ns_add_u32 s58, s3, {WS_KVR + 240*64}")
    WF = 26
    if SM: A(f"s_cmp_ge_u32 s{sWAVE}, 4\ns_cbranch_scc1 L_c1\ns_waitcnt vmcnt(0)\nL_c1:")
    A("s_waitcnt vmcnt(4)")
    xstamp(A, "kv")
    lo(A, WF, 12); hi(A, WF+1, 12); lo(A, WF+2, 13); hi(A, WF+3, 13)
    A("s_waitcnt lgkmcnt(0)")
    A(f"s_mul_i32 s{sN}, s{sN}, 0x9E3779B1\ns_add_u32 s{sN}, s{sN}, 0x7F4A7C15")
    A(f"s_lshl_b32 s59, s{sCG}, 3\ns_add_u32 s59, s59, s{sWAVE}\ns_lshl_b32 s59, s59, 7\ns_add_u32 s59, s59, {F_S1}")
    stamp(A, 1)
    A("s_barrier")
    KP, VP, KF, T, O = 32, 44, 52, 64, 72
    for e in range(2):
        A(f"ds_read_b64_tr_b16 v[{KP+6*e}:{KP+6*e+1}], v22 offset:{e*4096 + 512}")
        A(f"ds_read_b64_tr_b16 v[{KP+6*e+2}:{KP+6*e+3}], v23 offset:{e*4096 + 1024}")
        A(f"ds_read_b64_tr_b16 v[{KP+6*e+4}:{KP+6*e+5}], v23 offset:{e*4096 + 1536}")
        A(f"ds_read_b64_tr_b16 v[{VP+4*e}:{VP+4*e+1}], v22 offset:{17408 + e*4096}")
        A(f"ds_read_b64_tr_b16 v[{VP+4*e+2}:{VP+4*e+3}], v22 offset:{17408 + e*4096 + 512}")
    if SM == 1:
        A(f"s_cmp_ge_u32 s{sWAVE}, 4\ns_cbranch_scc1 L_nossm")
        ssm_issue()
        A("L_nossm:")
    for e in range(2):
        A(f"s_waitcnt lgkmcnt({7 - 5*e})")
        for j in range(11):
            (hi if j % 2 == 0 else lo)(A, KF+j, KP + 6*e + (j+1)//2)
        for i in range(8): A(f"v_mul_f32 v{T+i}, v{WF+3}, v{KF+i}")
        for j in (2, 1, 0):
            for i in range(8): A(f"v_fmac_f32 v{T+i}, v{WF+j}, v{KF+i+3-j}")
        A(f"s_waitcnt lgkmcnt({5 - 5*e})")
        for i in range(8): (lo if i % 2 == 0 else hi)(A, KF+i, VP + 4*e + i//2)
        for i in range(8): A(f"v_mul_f32 v{T+i}, v{T+i}, v{KF+i}")
        for x in range(4): A(f"v_cvt_pk_bf16_f32 v{O+4*e+x}, v{T+7-2*x}, v{T+6-2*x}")
        A(f"buffer_store_dwordx4 v[{O+4*e}:{O+4*e+3}], v24, {WS}, s58 offen offset:{256*(1-e)} sc1")
    xstamp(A, "kst")
    A(f"s_and_b32 s3, s{sTT}, 7\ns_or_b32 s3, s3, s{sWAVE}\ns_cmp_lg_u32 s3, 0\ns_cbranch_scc1 L_nozero")
    A(f"s_lshr_b32 s3, s{sCG}, 3\ns_mul_i32 s3, s3, 768\ns_add_u32 s3, s3, {F_MOD}")
    A("v_mov_b32 v48, 0\nv_mov_b32 v49, 0\nv_mov_b32 v50, 0\nv_mov_b32 v51, 0")
    A("s_mov_b32 exec_lo, -1\ns_mov_b32 exec_hi, 0xffff")
    A(f"buffer_store_dwordx4 v[48:51], v{vL16}, {WS}, s3 offen sc1")
    A("s_mov_b64 exec, -1")
    A("L_nozero:")
    A.flush_hist()
    if SM == 2:
        A("s_barrier")
        A(f"s_cmp_ge_u32 s{sWAVE}, 4\ns_cbranch_scc1 L_nossm")
        ssm_issue()
        A("s_waitcnt vmcnt(4)\ns_branch L_ssmd")
        A("L_nossm:")
    A("s_waitcnt vmcnt(0)")
    A("L_ssmd:")
    flag_set(A, "s59", 52, vL16)
    stamp(A, 2)
    A(f"s_cmp_ge_u32 s{sWAVE}, 4\ns_cbranch_scc1 L_b1")
    A("s_waitcnt vmcnt(1)")
    X, Y = 192, 208
    A(f"v_add_u32 v41, s61, v{vL16}")
    for i in range(4):
        A(f"ds_read_b128 v[{X+4*i}:{X+4*i+3}], v41 offset:{32+i*1024}")
        A(f"ds_read_b64 v[{Y+2*i}:{Y+2*i+1}], v41 offset:{48+i*1024}")
    A("v_add_u32 v42, v9, v8\nv_lshlrev_b32 v40, 1, v42\nv_add_u32 v40, s61, v40\nds_read_u16 v216, v40")
    A(f"v_cmp_lt_u32 vcc, 15, v42\nv_mul_u32_u24 v40, {PS}, v9\nv_lshl_add_u32 v40, v8, 1, v40\nv_add_u32 v40, s61, v40")
    A(f"v_mov_b32 v14, 0\nv_mov_b32 v15, 0\nv_lshlrev_b32 v13, 3, v0\nv_add_u32 v13, {L_Q+16384}, v13")
    for i in range(4):
        a = [X+4*i, X+4*i+1, X+4*i+2, X+4*i+3, Y+2*i, Y+2*i+1]
        c1 = 112 + 12*i; c2 = c1 + 4; c3 = c1 + 8
        if i == 0: A("s_waitcnt lgkmcnt(0)")
        for j in range(4): A(f"v_alignbit_b32 v{c1+j}, v{a[j+1]}, v{a[j]}, 16")
        A(f"ds_write_b128 v41, v[{c1}:{c1+3}] offset:{PS+32+i*1024}")
        for j in range(4): A(f"v_mov_b32 v{c2+j}, v{a[j+1]}")
        A(f"ds_write_b128 v41, v[{c2}:{c2+3}] offset:{2*PS+32+i*1024}")
        for j in range(4): A(f"v_alignbit_b32 v{c3+j}, v{a[j+2]}, v{a[j+1]}, 16")
        A(f"ds_write_b128 v41, v[{c3}:{c3+3}] offset:{3*PS+32+i*1024}")
    A("v_cndmask_b32 v216, 0, v216, vcc\nds_write_b16 v40, v216")
    A("ds_write_b64 v13, v[14:15]")
    A("s_and_b32 s3, s60, 1\ns_lshl_b32 s3, s3, 4\ns_lshr_b32 s33, s33, s3\ns_and_b32 s33, s33, 0xffff")
    A("v_lshl_add_u32 v48, v9, 3, v8\nv_sub_u32 v48, 15, v48\nv_and_b32 v49, 1, v48\nv_lshlrev_b32 v49, 4, v49\nv_lshlrev_b32 v49, v49, s33\nv_ashrrev_i32 v48, 1, v48")
    for e in range(4): A(f"v_cmp_eq_u32 vcc, {e}, v48\nv_cndmask_b32 v{64+e}, 0, v49, vcc")
    A(f"v_add_u32 v42, 1, v8\nv_and_b32 v43, 3, v42\nv_mul_u32_u24 v43, {PS}, v43\nv_lshrrev_b32 v42, 2, v42")
    A("v_lshl_add_u32 v43, v42, 3, v43\nv_lshl_add_u32 v43, v9, 4, v43\nv_add_u32 v43, s61, v43")
    vP, vQ, vE, vS = 43, [44, 45], 47, 46
    A("v_lshlrev_b32 v48, 1, v8\nv_sub_u32 v48, 30, v48\nv_add_u32 v48, v48, v9\nv_lshrrev_b32 v49, 2, v48")
    for rho in range(2):
        A(f"v_add_u32 v50, {rho}, v49\nv_and_b32 v50, 3, v50\nv_xor_b32 v50, s{sWAVE}, v50\nv_lshlrev_b32 v50, 4, v50\nv_lshl_add_u32 v50, v48, 6, v50\nv_add_u32 v{vQ[rho]}, {L_Q}, v50")
    A(f"s_lshr_b32 s3, s{sWAVE}, 1\nv_lshl_add_u32 v46, v9, 1, s3\nv_and_b32 v48, 7, v8\nv_xor_b32 v46, v46, v48\nv_lshlrev_b32 v46, 4, v46")
    A(f"v_lshl_add_u32 v46, v8, 7, v46\ns_and_b32 s3, s{sWAVE}, 1\ns_lshl_b32 s3, s3, 3\ns_add_u32 s3, s3, {L_YS}\nv_add_u32 v46, s3, v46")
    ACC = 80; FA = [112, 176]; FB = [144, 208]; KE = 64
    def reads(r, buf):
        La, Lb = [], []
        for i in range(8):
            Lb.append(f"ds_read_b128 v[{FB[buf]+4*i}:{FB[buf]+4*i+3}], v{vQ[r & 1]} offset:{256*r + 2048*(7-i)}")
            La.append(f"ds_read_b64 v[{FA[buf]+4*i}:{FA[buf]+4*i+1}], v{vP} offset:{512*i + 64*r}")
            La.append(f"ds_read_b64 v[{FA[buf]+4*i+2}:{FA[buf]+4*i+3}], v{vP} offset:{512*i + 64*r + 8}")
        return La, Lb
    La, Lb = reads(0, 0)
    A("s_waitcnt lgkmcnt(0)")
    for l in La: A(l)
    q_addr(A, 48)
    A("s_mov_b32 s59, 3")
    stamp(A, 3)
    A("s_waitcnt lgkmcnt(0)\ns_barrier")
    for l in Lb: A(l)
    q_issue(A, 48)
    stamp(A, 4)
    for q in range(8):
        A(f"s_waitcnt lgkmcnt({7-q if not STAMPS else 0})")
        A(f"v_mfma_f32_16x16x32_bf16 v[{ACC+4*q}:{ACC+4*q+3}], v[64:67], v[{FB[0]+4*q}:{FB[0]+4*q+3}], 0")
    align8(A)
    start = len(A.lines)
    A("L_conv:")
    for r in range(2):
        if r == 0:
            La, Lb = reads(1, 1)
            tail = [[f"v_xor_b32 v{vQ[0]}, 32, v{vQ[0]}", f"v_xor_b32 v{vQ[1]}, 32, v{vQ[1]}"],
                    [f"v_add_u32 v{vQ[0]}, 512, v{vQ[0]}"], [f"v_add_u32 v{vQ[1]}, 512, v{vQ[1]}"], [f"v_add_u32 v{vP}, 128, v{vP}"]]
        else:
            La, Lb = reads(0, 0)
            tail = [["s_sub_u32 s59, s59, 1", "s_nop 0"]]
        nxt = [[x] for x in Lb + La] + tail
        mf = [f"v_mfma_f32_16x16x32_bf16 v[{ACC+4*(i+j)}:{ACC+4*(i+j)+3}], v[{FA[r]+4*i}:{FA[r]+4*i+3}], v[{FB[r]+4*j}:{FB[r]+4*j+3}], v[{ACC+4*(i+j)}:{ACC+4*(i+j)+3}]"
              for i in range(8) for j in range(8 - i)]
        sl = {n: x for n, x in enumerate(nxt)}
        sl[34] = ["s_waitcnt lgkmcnt(0)", "s_nop 0"]
        sched(A, mf, sl)
    A("s_cbranch_scc0 L_conv")
    check_loop(A.lines[start:])
    stamp(A, 5)
    T = 48
    for q in range(8):
        e = KE + 2*q
        A(f"v_cvt_pk_bf16_f32 v{e}, v{ACC+4*q}, v{ACC+4*q+1}\nv_cvt_pk_bf16_f32 v{e+1}, v{ACC+4*q+2}, v{ACC+4*q+3}")
        A(f"ds_write_b64 v{vS}, v[{e}:{e+1}] offset:{q*2048}")
    A(f"v_mov_b32 v52, {L_CNT}\nv_mov_b32 v53, 1\ns_waitcnt lgkmcnt(0)\ns_mov_b64 exec, 1\nds_add_u32 v52, v53\ns_mov_b64 exec, -1")
    A(f"v_lshrrev_b32 v48, 3, v2\nv_and_b32 v49, 7, v2\nv_xor_b32 v50, v48, v49\nv_lshlrev_b32 v50, 4, v50\nv_lshl_add_u32 v50, v48, 7, v50")
    A(f"s_lshl_b32 s3, s{sWAVE}, 12\ns_add_u32 s3, s3, {L_YS}\nv_add_u32 v50, s3, v50")
    A("v_lshrrev_b32 v51, 2, v49\nv_lshl_add_u32 v51, v48, 1, v51\nv_lshlrev_b32 v51, 14, v51\nv_and_b32 v49, 3, v49\nv_lshl_add_u32 v51, v49, 4, v51")
    A(f"s_lshl_b32 s3, s{sWAVE}, 20\ns_lshl_b32 s57, s{sCG}, 6\ns_add_u32 s3, s3, s57\ns_add_u32 s3, s3, {WS_YB}")
    xstamp(A, "rv0")
    A("L_rv:")
    A("ds_read_b32 v53, v52\ns_waitcnt lgkmcnt(0)\nv_readfirstlane_b32 s57, v53\ns_cmp_lt_u32 s57, 4\ns_cbranch_scc1 L_rv")
    xstamp(A, "rv1")
    for i in range(4): A(f"ds_read_b128 v[{64+4*i}:{67+4*i}], v50 offset:{i*1024}")
    for i in range(4):
        A(f"s_waitcnt lgkmcnt({3-i})")
        A(f"buffer_store_dwordx4 v[{64+4*i}:{67+4*i}], v51, {WS}, s3 offen sc1")
        if i < 3: A(f"s_add_u32 s3, s3, {8*2*16384}")
    xstamp(A, "ys")
    A("s_waitcnt vmcnt(4)")
    ln0_part1(A)
    A("s_waitcnt vmcnt(0)")
    xstamp(A, "yd")
    arrive(A, F_S2C, F_S2R, L_CNT+4, 52, vL16)
    stamp(A, 6)
    A(f"s_cmp_lg_u32 s{sWAVE}, 0\ns_cbranch_scc1 L_ln")
    A(f"v_lshlrev_b32 v47, 7, v8\ns_movk_i32 s3, {F_S2R}")
    poll(A, 47, "s3", 48)
    xstamp(A, "s2p")
    A("s_branch L_ln")
    A.flush_hist()
    A("L_b1:")
    A(f"s_cmp_lg_u32 s{sWAVE}, 7\ns_cbranch_scc1 L_b1g")
    A(f"s_lshr_b32 s3, s{sTT}, 1\ns_lshl_b32 s3, s3, 7\nv_and_b32 v47, 1, v9\nv_subrev_u32 v47, 1, v47\nv_and_b32 v47, s3, v47\nv_lshl_add_u32 v47, v8, 10, v47")
    A("v_and_b32 v46, 3, v2\nv_xor_b32 v46, v46, v9\nv_lshlrev_b32 v46, 4, v46\nv_lshrrev_b32 v45, 2, v2\nv_lshl_add_u32 v46, v45, 6, v46")
    A(f"s_lshl_b32 s3, s{sCT}, 14\ns_add_u32 s3, s3, {F_S1}\ns_lshl_b32 s58, s{sCG}, 14\ns_add_u32 s58, s58, {WS_KVR}")
    poll(A, 47, "s3", 48)
    xstamp(A, "s1p")
    for w in range(4):
        A(f"s_mov_b32 m0, {L_Q + w*4096}")
        for i in range(4): A(f"buffer_load_dwordx4 v46, {WS}, s58 offen offset:{i*1024} sc1 lds")
        if w < 3: A("s_add_u32 s58, s58, 4096")
    tile_ids(A, 1)
    g1_prod_setup(A)
    q_addr(A, 48)
    A("s_lshr_b32 s58, s2, 3\ns_lshl_b32 s58, s58, 1\ns_and_b32 s57, s2, 1\ns_add_u32 s58, s58, s57\ns_mul_i32 s58, s58, 7168")
    A(f"s_bfe_u32 s57, s2, 0x20001\ns_mul_i32 s57, s57, 1792\ns_add_u32 s58, s58, s57\ns_add_u32 s{sPF}, s{P['w1']}, s58\ns_addc_u32 s{sPF+1}, s{P['w1']+1}, 0")
    A("s_waitcnt vmcnt(0)\ns_barrier")
    A("s_sleep 8")
    q_issue(A, 48)
    if not opt("notouch"):
        A(f"v_and_b32 v50, 3, v2\nv_lshlrev_b32 v50, 7, v50\nv_bfe_u32 v51, v2, 2, 2\nv_lshl_add_u32 v50, v51, 17, v50\ns_lshl_b32 s3, s{sTB}, 9\ns_add_u32 s3, s3, {F_S3}")
        A(f"buffer_load_dword v51, v50, {WS}, s3 offen sc1")
        A(f"v_and_b32 v50, 0x180, v50\ns_add_u32 s3, s3, {F_S4H - F_S3}")
        A(f"buffer_load_dword v51, v50, {WS}, s3 offen sc1")
        t = srd(A, SB_, "b1", 7168)
        A("s_mul_i32 s3, s61, 448")
        A(f"buffer_load_dword v51, v50, {t}, s3 offen offset:60")
        t = srd(A, SB_, "b2", 2048)
        A("s_lshr_b32 s3, s2, 5\ns_lshl_b32 s3, s3, 8\nv_and_b32 v50, 0x80, v50")
        A(f"buffer_load_dword v51, v50, {t}, s3 offen")
    if opt("pf0", 0):
        A(f"s_mov_b32 s59, {opt('pf0', 0)}")
        A("L_pf0:")
        sprefetch(A, 28, 64*7168)
        A("s_sub_u32 s59, s59, 1\ns_cmp_lg_u32 s59, 0\ns_cbranch_scc1 L_pf0")
    xstamp(A, "bp")
    A("s_waitcnt vmcnt(0)")
    ln0_part1(A)
    A("s_branch L_b1m")
    A.flush_hist()
    A("L_b1g:")
    tile_ids(A, 1)
    g1_prod_setup(A)
    A(f"s_mov_b32 s3, {f2u(-1.4426950408889634):#x}")
    lo(A, 16, 220); hi(A, 17, 220)
    for i in range(2): A(f"v_mul_f32 v{18+i}, s3, v{16+i}")
    for i in range(2): A(f"v_exp_f32 v{18+i}, v{18+i}")
    for i in range(2): A(f"v_add_f32 v{18+i}, 1.0, v{18+i}")
    for i in range(2): A(f"v_rcp_f32 v{18+i}, v{18+i}")
    for i in range(2): A(f"v_mul_f32 v{18+i}, v{18+i}, v{16+i}")
    A("v_cvt_pk_bf16_f32 v18, v18, v19")
    A(f"s_lshl_b32 s58, s64, 9\ns_add_u32 s58, s58, {L_GS}\nv_lshlrev_b32 v20, 2, v2\nv_add_u32 v21, s58, v20\nds_write_b32 v21, v18")
    A("v_lshlrev_b32 v22, 3, v9\nv_add_u32 v22, s58, v22")
    SF, GA, GW = 64, 80, 96
    for kb in range(4):
        A(f"ds_read_b64 v[{SF+4*kb}:{SF+4*kb+1}], v22 offset:{kb*64}\nds_read_b64 v[{SF+4*kb+2}:{SF+4*kb+3}], v22 offset:{kb*64+32}")
    unit_lane_off(A, 24, 12288)
    for k in range(1, 4): A(f"v_add_u32 v{24+k}, {k*(8*12288 - 1024)}, v24")
    A(f"s_and_b32 s3, s{sTT}, 7\ns_mul_i32 s3, s3, {128*12288}\ns_lshr_b32 s57, s{sCG}, 3\ns_mul_i32 s57, s57, 384\ns_add_u32 s3, s3, s57\ns_lshl_b32 s57, s64, 7\ns_add_u32 s48, s3, s57")
    A(f"s_lshl_b32 s49, s64, 14\ns_add_u32 s49, s49, {L_GW}")
    A("v_lshrrev_b32 v28, 2, v2\nv_and_b32 v28, 7, v28\nv_lshrrev_b32 v29, 1, v28\nv_lshlrev_b32 v29, 5, v29\nv_lshl_add_u32 v29, v28, 7, v29")
    A("v_and_b32 v28, 3, v2\nv_lshl_add_u32 v29, v28, 3, v29\nv_lshrrev_b32 v28, 5, v2\nv_lshl_add_u32 v29, v28, 10, v29\nv_add_u32 v29, s49, v29")
    for cb in range(4): A(f"v_xor_b32 v{56+cb}, {cb*32}, v29")
    A("v_lshlrev_b32 v23, 4, v9\nv_add_u32 v23, s58, v23")
    sw = srd(A, SB_, "wmod", 12*MB)
    A("s_mov_b32 s58, s48\ns_mov_b32 s59, s49")
    q_addr(A, 48)
    A("s_waitcnt lgkmcnt(0)\ns_barrier")
    A("s_sleep 2")
    for kb in range(4):
        A(f"s_add_u32 m0, s59, {kb*4096}")
        for k in range(4): A(f"buffer_load_dwordx4 v{24+k}, {sw}, s58 offen offset:{k*1024} nt lds")
        if kb < 3: A(f"s_add_u32 s58, s58, {32*12288}")
    q_issue(A, 48)
    xstamp(A, "bi")
    A("s_setprio 3")
    for kb in range(4):
        A(f"s_waitcnt vmcnt({16 - 4*kb})")
        for cb in range(4):
            A(f"ds_read_b64_tr_b16 v[{GW+4*cb}:{GW+4*cb+1}], v{56+cb} offset:{kb*4096}\nds_read_b64_tr_b16 v[{GW+4*cb+2}:{GW+4*cb+3}], v{56+cb} offset:{kb*4096+2048}")
        A("s_waitcnt lgkmcnt(0)")
        for cb in range(4):
            c = "0" if kb == 0 else f"v[{GA+4*cb}:{GA+4*cb+3}]"
            A(f"v_mfma_f32_16x16x32_bf16 v[{GA+4*cb}:{GA+4*cb+3}], v[{GW+4*cb}:{GW+4*cb+3}], v[{SF+4*kb}:{SF+4*kb+3}], {c}")
    xstamp(A, "bw")
    A("s_mov_b32 exec_lo, 0x00010001\ns_mov_b32 exec_hi, 0x00010001")
    for cb in range(4): A(f"ds_write_b128 v23, v[{GA+4*cb}:{GA+4*cb+3}] offset:{256 + cb*64}")
    A("s_mov_b64 exec, -1")
    A("ds_read_b32 v30, v21 offset:256")
    A(f"s_lshr_b32 s3, s{sCG}, 3\ns_mul_i32 s3, s3, 768\ns_lshl_b32 s57, s64, 8\ns_add_u32 s3, s3, s57\ns_add_u32 s3, s3, {F_MOD}")
    A("s_waitcnt lgkmcnt(0)")
    A(f"buffer_atomic_add_f32 v30, v20, {WS}, s3 offen sc1")
    xstamp(A, "ba")
    A("s_waitcnt vmcnt(1)")
    ln0_part1(A)
    A("s_waitcnt vmcnt(0)")
    xstamp(A, "bd")
    arrive(A, F_GVC, F_GVR, L_CNT+8, 52, vL16, 3)
    A("s_setprio 0")
    A("L_b1m:")
    A.flush_hist()
    stamp(A, 3)
    A(f"v_lshlrev_b32 v47, 7, v8\ns_movk_i32 s3, {F_GVR}")
    poll(A, 47, "s3", 48, 4)
    stamp(A, 4)
    A("v_and_b32 v48, 255, v0\nv_lshlrev_b32 v48, 4, v48")
    M = 64
    for j in range(5):
        A(f"s_mov_b32 s3, {F_MOD + j*4096}")
        A(f"buffer_load_dwordx4 v[{M+4*j}:{M+4*j+3}], v48, {WS}, s3 offen sc1")
    A(f"v_add_u32 v48, {L_MOD}, v48")
    A("s_waitcnt vmcnt(0)")
    for e in range(20): A(f"v_cvt_pk_bf16_f32 v{M+e}, v{M+e}, v{M+e}")
    for e in range(20): A(f"v_lshlrev_b32 v{M+e}, 16, v{M+e}")
    for j in (1, 4):
        for e in range(4): A(f"v_add_f32 v{M+4*j+e}, 1.0, v{M+4*j+e}")
        for e in range(4): A(f"v_cvt_pk_bf16_f32 v{M+4*j+e}, v{M+4*j+e}, v{M+4*j+e}")
        for e in range(4): A(f"v_lshlrev_b32 v{M+4*j+e}, 16, v{M+4*j+e}")
    for j in (0, 1):
        for e in range(4): A(f"v_mul_f32 v{M+4*j+e}, v{M+4*j+e}, v{M+8+e}")
    for n, j in enumerate((0, 1, 3, 4)): A(f"ds_write_b128 v48, v[{M+4*j}:{M+4*j+3}] offset:{n*4096}")
    R = opt("lnrows", 2)
    A(f"s_add_u32 s3, s64, {opt('pf0', 0)}\nv_min_u32 v222, {R-1}, v9\nv_lshl_add_u32 v222, v222, 2, s3\nv_lshlrev_b32 v222, 6, v222")
    A("s_lshr_b32 s3, s2, 3\ns_lshl_b32 s3, s3, 1\ns_and_b32 s57, s2, 1\ns_add_u32 s3, s3, s57\nv_add_u32 v222, s3, v222\ns_movk_i32 s3, 7168\nv_mul_lo_u32 v222, v222, s3")
    A("v_min_u32 v223, 13, v8\nv_lshl_add_u32 v222, v223, 7, v222\ns_bfe_u32 s57, s2, 0x20001\ns_mul_i32 s57, s57, 1792\nv_add_u32 v222, s57, v222")
    stamp(A, 6)
    A("L_ln:")
    A.flush_hist()
    A("s_nop 4")
    A(f"v_lshlrev_b32 v12, 6, v{vCG}\nv_lshl_add_u32 v12, v{vHF}, 5, v12")
    A(f"v_lshlrev_b32 v15, 4, v{vCG}\nv_add_u32 v15, {L_MOD}, v15")
    A(f"s_lshl_b32 s3, s{sTB}, 14\ns_add_u32 s3, s3, {WS_YB}")
    A("s_waitcnt lgkmcnt(0)\ns_barrier")
    stamp(A, 7)
    YR, M, H, TMP, ST = 40, 48, 72, 88, 96
    for c in range(2): A(f"buffer_load_dwordx4 v[{YR+4*c}:{YR+4*c+3}], v12, {WS}, s3 offen offset:{16*c} sc1")
    for j in range(4): A(f"ds_read_b128 v[{M+4*j}:{M+4*j+3}], v15 offset:{j*4096}")
    red_part2(A, vSTR, 0, ST)
    normalize(A, H, LX, ST, M+4, M)
    A(f"v_lshrrev_b32 v12, 3, v{vCG}\nv_and_b32 v15, 3, v{vCG}\nv_lshl_add_u32 v12, v12, 2, v15")
    A(f"v_and_b32 v15, 7, v12\nv_lshlrev_b32 v10, 2, v{vHF}\nv_xor_b32 v15, v15, v10\nv_lshlrev_b32 v15, 4, v15\nv_lshl_add_u32 v12, v12, 7, v15")
    A(f"v_and_b32 v15, 4, v{vCG}\nv_lshl_add_u32 v12, v15, 1, v12\nv_add_u32 v12, {L_YS}, v12")
    for i in range(4): A(f"v_xor_b32 v{100+i}, {i*16}, v12")
    A(f"v_bfe_u32 v104, v0, 3, 5\nv_and_b32 v13, 7, v0\nv_and_b32 v15, 7, v104\nv_xor_b32 v14, v15, v13\nv_lshlrev_b32 v14, 4, v14\nv_lshl_add_u32 v14, v104, 7, v14\nv_add_u32 v14, {L_YS}, v14")
    A("v_lshlrev_b32 v15, 8, v15\nv_lshl_add_u32 v15, v13, 4, v15\nv_lshrrev_b32 v104, 3, v104\nv_lshl_add_u32 v15, v104, 18, v15")
    A(f"s_lshr_b32 s58, s{sTB}, 1\ns_lshl_b32 s58, s58, 11\ns_and_b32 s57, s{sTB}, 1\ns_lshl_b32 s57, s57, 7\ns_add_u32 s58, s58, s57")
    xstamp(A, "ln_a")
    A("s_waitcnt vmcnt(0)")
    xstamp(A, "ln_b")
    if not opt("nopf1"):
        A(f"s_cmp_lt_u32 s{sWAVE}, 4\ns_cbranch_scc1 L_nopf1")
        A(f"buffer_load_dword v223, v222, s[{SA_}:{SA_+3}], 0 offen")
        A("L_nopf1:")
    for i in range(4):
        for c in range(4): (lo if i % 2 == 0 else hi)(A, TMP+c, YR+2*c+i//2)
        for c in range(0, 4, 2): A(f"v_pk_fma_f32 v[{LX+4*i+c}:{LX+4*i+c+1}], v[{H+4*i+c}:{H+4*i+c+1}], v[{TMP+c}:{TMP+c+1}], v[{LX+4*i+c}:{LX+4*i+c+1}]")
        A(f"v_cvt_pk_bf16_f32 v{QR+2*i}, v{LX+4*i}, v{LX+4*i+1}\nv_cvt_pk_bf16_f32 v{QR+2*i+1}, v{LX+4*i+2}, v{LX+4*i+3}")
        lo(A, LX+4*i, QR+2*i); hi(A, LX+4*i+1, QR+2*i); lo(A, LX+4*i+2, QR+2*i+1); hi(A, LX+4*i+3, QR+2*i+1)
    for i in range(4): A(f"ds_write_b64 v{100+i}, v[{QR+2*i}:{QR+2*i+1}]")
    stats4(A, LX, LR)
    red_part1(A, LR, vSTW, 64)
    xstamp(A, "ln_c")
    A("s_waitcnt lgkmcnt(0)\ns_barrier")
    xstamp(A, "ln_d")
    red_part2(A, vSTR, 64, ST)
    normalize(A, H, LX, ST, M+12, M+8)
    stats4(A, H, LR)
    red_part1(A, LR, vSTW, 128)
    xstamp(A, "ln_e")
    A("s_waitcnt lgkmcnt(0)\ns_barrier")
    xstamp(A, "ln_f")
    red_part2(A, vSTR, 128, ST)
    normalize(A, H, H, ST)
    for i in range(4):
        A(f"v_cvt_pk_bf16_f32 v{YR+2*i}, v{H+4*i}, v{H+4*i+1}\nv_cvt_pk_bf16_f32 v{YR+2*i+1}, v{H+4*i+2}, v{H+4*i+3}")
        A(f"ds_write_b64 v{100+i}, v[{YR+2*i}:{YR+2*i+1}] offset:{L_MOD-L_YS}")
    xstamp(A, "ln_g")
    A(f"s_cmp_ge_u32 s{sWAVE}, 4\ns_cbranch_scc1 L_b2")
    A(f"s_add_u32 s3, s58, {WS_Y2F}")
    A("s_waitcnt lgkmcnt(0)\ns_barrier")
    xstamp(A, "ln_h")
    for i in range(4): A(f"ds_read_b128 v[{64+4*i}:{67+4*i}], v14 offset:{L_MOD-L_YS+i*4096}")
    for i in range(4):
        A(f"s_waitcnt lgkmcnt({3-i})")
        A(f"buffer_store_dwordx4 v[{64+4*i}:{67+4*i}], v15, {WS}, s3 offen sc1")
        if i < 3: A("s_add_u32 s3, s3, 0x100000")
    A(f"s_lshl_b32 s3, s{sTB}, 2\ns_add_u32 s3, s3, s{sWAVE}\ns_lshl_b32 s3, s3, 7\ns_add_u32 s3, s3, {F_S3}")
    A("s_waitcnt vmcnt(0)")
    flag_set(A, "s3", 52, vL16)
    xstamp(A, "ln_i")
    A("s_barrier")
    stamp(A, 8)
    g1_consumer(A, 9)
    g2_consumer(A, 12)
    if STAMPS:
        A("s_waitcnt vmcnt(0)"); stamp(A, 14)
    stamp_flush(A)
    A("s_endpgm")
    g2_hooks(A)
    A.flush_hist()
    A("L_b2:")
    A("s_waitcnt lgkmcnt(0)\ns_barrier")
    for i in range(4): A(f"ds_read_b128 v[{XI+4*i}:{XI+4*i+3}], v14 offset:{i*4096}")
    A(f"s_add_u32 s58, s58, {WS_X1}\nv_add_u32 v248, s58, v15")
    A("s_waitcnt lgkmcnt(0)")
    stamp(A, 8)
    A("s_barrier")
    for _ in range(2): g1_issue_w(A)
    A(f"v_and_b32 v47, 15, v2\nv_lshlrev_b32 v47, 7, v47\ns_lshl_b32 s3, s60, 13\ns_lshl_b32 s57, s64, 11\ns_add_u32 s3, s3, s57\ns_add_u32 s3, s3, {F_S3}")
    poll(A, 47, "s3", 48)
    stamp(A, 9)
    A(f"s_or_b32 s3, s2, s64\ns_cmp_lg_u32 s3, 0\ns_cbranch_scc1 L_noepoch")
    flag_set(A, "0", 52, vL16)
    A("s_waitcnt vmcnt(0)")
    A("L_noepoch:")
    g1_prod_main(A)
    g2_producer(A)
    stamp(A, 13)
    stamp_flush(A)
    A("L_exit:\ns_endpgm")
    A("L_end:")

def build():
    A = Asm()
    kernel(A)
    head = ["; generated by dev/gen10.py (single persistent kernel; see that generator for the design notes)",
            f"; @launch grid=(256,1,1) block=(512,1,1) lds={LDS_TOTAL}",
            '.amdgcn_target "amdgcn-amd-amdhsa--gfx950"', ".text"]
    tail = ['.section .rodata,"a"', ".p2align 6", descriptor(NAME, 256, 102)]
    return "\n".join(head) + "\n" + A.text() + "\n".join(tail)

if __name__ == "__main__":
    if "-stamps" in sys.argv: STAMPS = True
    for a in sys.argv:
        if a.startswith("-o="):
            for kv in a[3:].split(","):
                k, v = kv.split(":"); OPT[k] = int(v)
        if a.startswith("-xs="):
            STAMPS = True
            for n, nm in enumerate(a[4:].split(",")): XS[nm] = n + 1
    out = sys.argv[1] if len(sys.argv) > 1 and not sys.argv[1].startswith("-") else "adaLN_cond__ssm_conv_h3__mixer_channel_mlp__prompt.s"
    txt = build()
    if opt("nont"): txt = txt.replace(" nt lds", " lds").replace(" nt\n", "\n")
    open(out, "w").write(txt)
```

```python
import sys, math, struct
from asmgen import *

MB = 1 << 20
NAME = "adaLN_cond__ssm_conv_h3__mixer_channel_mlp__prompt_kernel"
F_E, F_S2C, F_S2R, F_GVC, F_GVR, F_MOD = 0, 0x1000, 0x3000, 0x5000, 0x7000, 0x10000
F_S3, F_S4A, F_S5, F_S4B, F_S1 = 0x20000, 0x40000, 0x60000, 0x80000, 0xC0000
F_S4H = 40*MB
L_OFF = 131072
XI = 224
WS_KVR, WS_YB, WS_X1, WS_Y2F, WS_HF, WS_PART, WS_ST = 1*MB, 5*MB, 9*MB, 13*MB, 17*MB, 32*MB, 48*MB
P = dict(q=4, k=6, v=8, shift=10, ssmk=12, ssmD=14, w1=18, b1=20, w2=22, b2=24, c=26, wmod=28, out=30, ws=34)
WS = "s[36:39]"
SA_, SB_, SC_ = 40, 44, 48
sWAVE, sN, sCT, sTT, sC0 = 52, 53, 54, 55, 56
sCG, sTB = 0, 1
sPF, sDUMMY = 16, 32
PS = 4160; WSZ = 4 * PS; L_Q = 4 * WSZ; L_GW = 102400; L_GS = L_GW + 49152
L_KT = 86016; L_VT = L_KT + 17408; L_TB = L_VT + 16384
L_YS = 86016; L_MOD = 135168; L_ST = 162816; LDS_TOTAL = 163840
L_CNT = L_ST + 192
G1_W, G1_WSLOT, G1_A = 0, 28672, 86016
QR = 240
STAMPS = False
OPT = {}
def opt(k, d=0): return OPT.get(k, d)
def wpol(): return ['', 'nt', 'sc1'][opt('wpol')]
def asc(): return '' if opt('nosc1') else 'sc1'

def f2u(x): return struct.unpack("<I", struct.pack("<f", x))[0]
def srd(A, d, name, nbytes):
    b = P[name]
    A(f"s_mov_b32 s{d}, s{b}\ns_mov_b32 s{d+1}, s{b+1}\ns_mov_b32 s{d+2}, {nbytes}\ns_mov_b32 s{d+3}, 0x20000")
    return f"s[{d}:{d+3}]"
def lo(A, d, s): A(f"v_lshlrev_b32 v{d}, 16, v{s}")
def hi(A, d, s): A(f"v_and_b32 v{d}, 0xffff0000, v{s}")

NSLOT = 15
XS = {}
def xstamp(A, name):
    if STAMPS and name in XS: A(f"s_memrealtime s[{72+2*XS[name]}:{73+2*XS[name]}]")
    if STAMPS and "c:" + name in XS: A(f"s_memtime s[{72+2*XS['c:'+name]}:{73+2*XS['c:'+name]}]")
def stamp(A, slot):
    xstamp(A, str(slot))
    if STAMPS and (slot == 0 or not XS):
        if slot == 0:
            for i in range(1, NSLOT): A(f"s_mov_b32 s{72+2*i}, 0")
        A(f"s_memrealtime s[{72+2*slot}:{73+2*slot}]")
def stamp_flush(A):
    if not STAMPS: return
    A("s_waitcnt lgkmcnt(0)")
    if opt("xcc"):
        l = A.newlabel("nopad"); l2 = A.newlabel("padl")
        A(f"s_cmp_lg_u32 s{sWAVE}, 0\ns_cbranch_scc1 {l}")
        A("s_getreg_b32 s42, hwreg(HW_REG_XCC_ID)\ns_sub_u32 s42, s42, s2\ns_and_b32 s42, s42, 7")
        if opt("xcc") == 2: A("s_sub_u32 s42, 7, s42")
        A("s_mul_i32 s42, s42, 1000\ns_add_u32 s42, s42, 10000")
        A(f"{l2}:")
        A(f"s_memrealtime s[40:41]\ns_waitcnt lgkmcnt(0)\ns_sub_u32 s40, s40, s72\ns_cmp_lt_u32 s40, s42\ns_cbranch_scc1 {l2}")
        A(f"{l}:")
        return
    if opt("pb"):
        l = A.newlabel("nopad"); l2 = A.newlabel("padl")
        A(f"s_cmp_lg_u32 s2, {opt('dbgwg', 37)}\ns_cbranch_scc1 {l}\ns_cmp_lg_u32 s{sWAVE}, 0\ns_cbranch_scc1 {l}")
        A(f"s_sub_u32 s42, s{72+2*opt('pb')}, s{72+2*opt('pa')}\ns_add_u32 s42, s42, 10000")
        A(f"{l2}:")
        A(f"s_memrealtime s[40:41]\ns_waitcnt lgkmcnt(0)\ns_sub_u32 s40, s40, s72\ns_cmp_lt_u32 s40, s42\ns_cbranch_scc1 {l2}")
        A(f"{l}:")
        return
    if opt("pad", -1) >= 0:
        l = A.newlabel("nopad"); l2 = A.newlabel("padl")
        A(f"s_cmp_lg_u32 s2, {opt('dbgwg', 37)}\ns_cbranch_scc1 {l}\ns_cmp_lg_u32 s{sWAVE}, 0\ns_cbranch_scc1 {l}")
        A(f"{l2}:")
        A(f"s_memrealtime s[40:41]\ns_waitcnt lgkmcnt(0)\ns_sub_u32 s40, s40, s{72+2*opt('pad')}\ns_cmp_lt_u32 s40, {opt('padt', 10000)}\ns_cbranch_scc1 {l2}")
        A(f"{l}:")
        return
    if opt("dbgst"):
        l = A.newlabel("nodbg")
        A(f"s_cmp_lg_u32 s2, {opt('dbgwg', 37)}\ns_cbranch_scc1 {l}\ns_cmp_lg_u32 s{sWAVE}, {opt('dbgst')-1}\ns_cbranch_scc1 {l}")
        A("s_mov_b32 s40, s6\ns_mov_b32 s41, s7\ns_mov_b32 s42, 256\ns_mov_b32 s43, 0x20000")
        A("s_mov_b64 exec, 1\nv_mov_b32 v1, 0")
        for i in range(NSLOT):
            A(f"s_sub_u32 s3, s{72+2*i}, s72\nv_mov_b32 v2, s3")
            A(f"buffer_store_dword v2, v1, s[40:43], 0 offen offset:{4*i}")
        A("s_waitcnt vmcnt(0)")
        A(f"{l}:")
        return
    A(f"s_lshl_b32 s3, s2, 9\ns_lshl_b32 s57, s{sWAVE}, 6\ns_add_u32 s3, s3, s57\ns_add_u32 s3, s3, {WS_ST}")
    A("s_mov_b64 exec, 1\nv_mov_b32 v1, 0")
    for i in range(NSLOT):
        A(f"v_mov_b32 v2, s{72+2*i}")
        A(f"buffer_store_dword v2, v1, {WS}, s3 offen offset:{4*i}")
    A("s_waitcnt vmcnt(0)")

def flag_set(A, soff, vt, vl16):
    for i in range(4): A(f"v_mov_b32 v{vt+i}, s{sN}")
    A("s_mov_b64 exec, 0xff")
    A(f"buffer_store_dwordx4 v[{vt}:{vt+3}], v{vl16}, {WS}, {soff} offen sc1")
    A("s_mov_b64 exec, -1")
def poll(A, vaddr, soff, vt, sleep=0):
    l = A.newlabel("poll"); d = A.newlabel("pdone")
    A("s_mov_b32 s57, 0")
    A(f"{l}:")
    A(f"buffer_load_dword v{vt}, v{vaddr}, {WS}, {soff} offen sc1")
    A("s_waitcnt vmcnt(0)")
    A(f"v_cmp_ne_u32 vcc, s{sN}, v{vt}")
    A("s_nop 1")
    A(f"s_cbranch_vccz {d}")
    if sleep: A(f"s_sleep {sleep}")
    A(f"s_add_u32 s57, s57, 1\ns_cmp_lt_u32 s57, 0x40000\ns_cbranch_scc1 {l}")
    A(f"{d}:")
def arrive(A, cbase, rbase, lcnt, vt, vl16, nw=4):
    d = A.newlabel("arr")
    A(f"v_mov_b32 v{vt}, 1\nv_mov_b32 v{vt+1}, {lcnt}\ns_mov_b64 exec, 1")
    A(f"ds_add_rtn_u32 v{vt+2}, v{vt+1}, v{vt}")
    A(f"s_lshl_b32 s57, s{sCT}, 7\ns_add_u32 s58, s57, {cbase}\ns_add_u32 s59, s57, {rbase}")
    A(f"s_waitcnt lgkmcnt(0)\nv_readfirstlane_b32 s57, v{vt+2}")
    A(f"s_cmp_lg_u32 s57, {nw-1}\ns_cbranch_scc1 {d}")
    A(f"buffer_atomic_add v{vt}, v{vl16}, {WS}, s58 offen sc0 sc1")
    A("s_waitcnt vmcnt(0)")
    A(f"v_readfirstlane_b32 s57, v{vt}")
    A(f"s_sub_u32 s57, s57, s{sC0}\ns_cmp_lg_u32 s57, 15\ns_cbranch_scc1 {d}")
    A("s_mov_b64 exec, -1")
    flag_set(A, "s59", vt, vl16)
    A(f"{d}:")
    A("s_mov_b64 exec, -1")

def P2(r): return f"v[{r}:{r+1}]"
def stats4(A, X, R):
    for h in (0, 2): A(f"v_pk_add_f32 {P2(R+h)}, {P2(X+h)}, {P2(X+4+h)}")
    for h in (0, 2): A(f"v_pk_mul_f32 {P2(R+4+h)}, {P2(X+h)}, {P2(X+h)}")
    for c in (1, 2, 3):
        if c > 1:
            for h in (0, 2): A(f"v_pk_add_f32 {P2(R+h)}, {P2(R+h)}, {P2(X+4*c+h)}")
        for h in (0, 2): A(f"v_pk_fma_f32 {P2(R+4+h)}, {P2(X+4*c+h)}, {P2(X+4*c+h)}, {P2(R+4+h)}")
DPPM = "row_mask:0xf bank_mask:0xf"
def red_part1(A, R, vW, off):
    for e in range(4): A(f"v_permlane32_swap_b32 v{R+e}, v{R+e+4}")
    for h in (0, 2): A(f"v_pk_add_f32 {P2(R+h)}, {P2(R+h)}, {P2(R+4+h)}")
    for e in range(2): A(f"v_permlane16_swap_b32 v{R+e}, v{R+e+2}")
    A(f"v_pk_add_f32 {P2(R)}, {P2(R)}, {P2(R+2)}")
    for m in ("row_ror:8", "quad_perm:[1,0,3,2]", "quad_perm:[2,3,0,1]"):
        for e in range(2): A(f"v_add_f32_dpp v{R+e}, v{R+e}, v{R+e} {m} {DPPM}")
    A("s_mov_b64 exec, s[8:9]")
    A(f"ds_add_f32 v{vW}, v{R} offset:{off}\nds_add_f32 v{vW}, v{R+1} offset:{off+4}")
    A("s_mov_b64 exec, -1")
KC = 106
def red_part2(A, vRd, off, st):
    A(f"ds_read_b128 v[{st}:{st+3}], v{vRd} offset:{off}\nds_read_b128 v[{st+4}:{st+7}], v{vRd} offset:{off+16}")
    A("s_waitcnt lgkmcnt(0)")
    for h in (0, 2): A(f"v_pk_mul_f32 {P2(st+h)}, {P2(st+h)}, {P2(KC)} op_sel_hi:[1,0]")
    for h in (0, 2): A(f"v_pk_fma_f32 {P2(st+4+h)}, {P2(st+4+h)}, {P2(KC)}, {P2(KC)} op_sel:[0,0,1] op_sel_hi:[1,0,1]")
    for h in (0, 2): A(f"v_pk_fma_f32 {P2(st+4+h)}, {P2(st+h)}, {P2(st+h)}, {P2(st+4+h)} neg_lo:[1,0,0] neg_hi:[1,0,0]")
    for i in range(4): A(f"v_max_f32 v{st+4+i}, v{KC+1}, v{st+4+i}")
    for i in range(4): A(f"v_rsq_f32 v{st+4+i}, v{st+4+i}")
    for h in (0, 2): A(f"v_pk_mul_f32 {P2(st+h)}, {P2(st+h)}, {P2(st+4+h)} neg_lo:[1,0] neg_hi:[1,0]")
def normalize(A, D, X, st, G=None, S=None):
    for c in range(4):
        for h in (0, 2): A(f"v_pk_fma_f32 {P2(D+4*c+h)}, {P2(X+4*c+h)}, {P2(st+4+h)}, {P2(st+h)}")
    if G is not None:
        for c in range(4):
            a = c & 1
            for h in (0, 2): A(f"v_pk_fma_f32 {P2(D+4*c+h)}, {P2(D+4*c+h)}, {P2(G+c-a)}, {P2(S+c-a)} op_sel:[0,{a},{a}] op_sel_hi:[1,{a},{a}]")
def pack_rows(A, O, X):
    for i in range(4):
        A(f"v_cvt_pk_bf16_f32 v{O+2*i}, v{X+i}, v{X+4+i}\nv_cvt_pk_bf16_f32 v{O+2*i+1}, v{X+8+i}, v{X+12+i}")
LX = 16
LR = 32
vSTW, vSTR, vCG, vHF = 4, 5, 6, 7
def ln_ids(A, cg, hf):
    A(f"v_lshrrev_b32 v{cg}, 3, v0\nv_and_b32 v{hf}, 3, v0\nv_lshl_add_u32 v{cg}, v{cg}, 2, v{hf}\nv_bfe_u32 v{hf}, v0, 2, 1")
def q_addr(A, vt):
    srd(A, SC_, "q", 4*MB)
    ln_ids(A, vt, vt+1)
    A(f"v_lshlrev_b32 v{vt}, 3, v{vt}\nv_lshl_add_u32 v{vt}, v{vt+1}, 13, v{vt}")
    A(f"s_lshl_b32 s3, s{sTB}, 14\nv_add_u32 v{vt}, s3, v{vt}\nv_add_u32 v{vt+1}, 4096, v{vt}")
def q_issue(A, vt):
    for i in range(4):
        A(f"buffer_load_dwordx2 v[{QR+2*i}:{QR+2*i+1}], v{vt+i//2}, s[{SC_}:{SC_+3}], 0 offen offset:{(i%2)*2048} nt")
def ln0_part1(A):
    ln_ids(A, vCG, vHF)
    A("s_mov_b32 s8, 0x00110011\ns_mov_b32 s9, s8")
    A(f"v_lshrrev_b32 v{vSTW}, 4, v2\nv_lshlrev_b32 v{vSTW}, 3, v{vSTW}\nv_lshlrev_b32 v{vSTR}, 5, v{vHF}\nv_add_u32 v{vSTR}, {L_ST}, v{vSTR}\nv_add_u32 v{vSTW}, v{vSTW}, v{vSTR}")
    for i in range(4):
        lo(A, LX+i, QR+2*i); hi(A, LX+4+i, QR+2*i); lo(A, LX+8+i, QR+2*i+1); hi(A, LX+12+i, QR+2*i+1)
    stats4(A, LX, LR)
    red_part1(A, LR, vSTW, 0)
def ln_addr(A):
    A(f"v_mov_b32 v{KC}, {f2u(1/1024):#x}\nv_mov_b32 v{KC+1}, {f2u(1e-5):#x}")
    A(f"v_lshrrev_b32 v12, 3, v{vCG}\nv_and_b32 v15, 3, v{vCG}\nv_lshl_add_u32 v12, v12, 2, v15")
    A(f"v_and_b32 v15, 7, v12\nv_lshlrev_b32 v10, 2, v{vHF}\nv_xor_b32 v15, v15, v10\nv_lshlrev_b32 v15, 4, v15\nv_lshl_add_u32 v12, v12, 7, v15")
    A(f"v_and_b32 v15, 4, v{vCG}\nv_lshl_add_u32 v12, v15, 1, v12\nv_add_u32 v12, {L_YS}, v12")
    for i in range(4): A(f"v_xor_b32 v{100+i}, {i*16}, v12")
    A(f"v_bfe_u32 v104, v0, 3, 5\nv_and_b32 v13, 7, v0\nv_and_b32 v15, 7, v104\nv_xor_b32 v14, v15, v13\nv_lshlrev_b32 v14, 4, v14\nv_lshl_add_u32 v14, v104, 7, v14\nv_add_u32 v14, {L_YS}, v14")
    A("v_lshlrev_b32 v15, 8, v15\nv_lshl_add_u32 v15, v13, 4, v15\nv_lshrrev_b32 v104, 3, v104\nv_lshl_add_u32 v15, v104, 18, v15")
    A(f"s_lshr_b32 s3, s{sTB}, 1\ns_lshl_b32 s3, s3, 11\ns_and_b32 s57, s{sTB}, 1\ns_lshl_b32 s57, s57, 7\ns_add_u32 s3, s3, s57\nv_add_u32 v15, s3, v15")
    A(f"v_lshlrev_b32 v12, 6, v{vCG}\nv_lshl_add_u32 v12, v{vHF}, 5, v12\ns_lshl_b32 s3, s{sTB}, 14\ns_add_u32 s3, s3, {WS_YB}\nv_add_u32 v12, s3, v12")
    A(f"v_lshlrev_b32 v13, 4, v{vCG}\nv_add_u32 v13, {L_MOD}, v13")
def x1_store(A):
    for i in range(4):
        A(f"s_mov_b32 s3, {i*0x100000}")
        A(f"buffer_store_dwordx4 v[{XI+4*i}:{XI+4*i+3}], v248, {WS}, s3 offen sc1")
def sprefetch(A, n, adv):
    for k in range(n): A(f"s_load_dword s{sDUMMY}, s[{sPF}:{sPF+1}], {k*64}")
    A(f"s_add_u32 s{sPF}, s{sPF}, {adv}\ns_addc_u32 s{sPF+1}, s{sPF+1}, 0")

def tile_ids(A, which):
    A("s_and_b32 s57, s2, 7\ns_lshr_b32 s58, s2, 3")
    if opt("loc"):
        A("s_and_b32 s60, s2, 15")
        if which == 1:
            A("s_lshr_b32 s61, s2, 4")
            A("s_mul_i32 s62, s61, 448\ns_and_b32 s3, s61, 1\ns_cmp_eq_u32 s3, 0")
            A("s_cselect_b32 s63, 384, 0\ns_cselect_b32 s3, 0, 64\ns_add_u32 s63, s63, s62\ns_add_u32 s62, s62, s3")
        else:
            A("s_bfe_u32 s61, s2, 0x10004\ns_lshr_b32 s62, s2, 5\ns_lshl_b32 s62, s62, 8\ns_lshl_b32 s3, s61, 7\ns_add_u32 s62, s62, s3\ns_xor_b32 s63, s62, 128")
    elif which == 1:
        A("s_and_b32 s60, s57, 1\ns_lshl_b32 s60, s60, 3\ns_and_b32 s3, s58, 7\ns_add_u32 s60, s60, s3")
        A("s_lshr_b32 s61, s57, 1\ns_lshl_b32 s61, s61, 2\ns_lshr_b32 s3, s58, 3\ns_add_u32 s61, s61, s3")
        A("s_mul_i32 s62, s61, 448\ns_and_b32 s3, s61, 1\ns_cmp_eq_u32 s3, 0")
        A("s_cselect_b32 s63, 384, 0\ns_cselect_b32 s3, 0, 64\ns_add_u32 s63, s63, s62\ns_add_u32 s62, s62, s3")
    else:
        A("s_lshr_b32 s60, s57, 1\ns_lshl_b32 s60, s60, 2\ns_and_b32 s3, s58, 3\ns_add_u32 s60, s60, s3")
        A("s_and_b32 s61, s57, 1\ns_lshr_b32 s62, s58, 2\ns_lshl_b32 s62, s62, 8\ns_lshl_b32 s3, s61, 7\ns_add_u32 s62, s62, s3\ns_xor_b32 s63, s62, 128")

G1_NST = 16
G1_ASLOT, G1_USZ, G1_HOFF = 16384, 8192, 24576
PVA, PVW = 200, 204
def unit_lane_off(A, t, rs):
    A(f"v_lshrrev_b32 v{t}, 3, v2\nv_lshrrev_b32 v{t+1}, 1, v{t}\nv_lshlrev_b32 v{t+1}, 1, v{t+1}\nv_and_b32 v{t+2}, 7, v2\nv_xor_b32 v{t+1}, v{t+1}, v{t+2}\nv_lshlrev_b32 v{t+1}, 4, v{t+1}")
    A(f"s_movk_i32 s3, {rs}\nv_mul_lo_u32 v{t}, v{t}, s3\nv_add_u32 v{t}, v{t}, v{t+1}")
def g1_prod_setup(A):
    RS = 7168
    A(f"s_sub_u32 s64, s{sWAVE}, 4")
    A(f"s_lshl_b32 s3, s60, 3\ns_lshl_b32 s57, s64, 1\ns_add_u32 s3, s3, s57\ns_lshl_b32 s3, s3, 11\ns_add_u32 s3, s3, {WS_Y2F}")
    A(f"v_lshlrev_b32 v{PVA}, 4, v2\nv_add_u32 v{PVA}, s3, v{PVA}")
    t = 212
    unit_lane_off(A, t, RS)
    A(f"s_mul_i32 s3, s64, {16*RS}\ns_add_u32 s3, s3, s62\nv_add_u32 v{t}, s3, v{t}")
    for u in range(3):
        for rgi in range(2):
            A(f"v_add_u32 v{PVW+u*2+rgi}, {u*128 + rgi*8*RS - rgi*1024}, v{t}")
    A(f"v_lshrrev_b32 v{t}, 2, v2\nv_bfe_u32 v{t+1}, v2, 4, 1\nv_and_b32 v{t+2}, 3, v2\nv_xor_b32 v{t+1}, v{t+1}, v{t+2}\nv_lshlrev_b32 v{t+1}, 4, v{t+1}")
    A(f"s_movk_i32 s3, {RS}\nv_mul_lo_u32 v{t}, v{t}, s3\nv_add_u32 v{t}, v{t}, v{t+1}")
    A(f"s_mul_i32 s3, s64, {16*RS}\ns_add_u32 s3, s3, s63\nv_add_u32 v{PVW+6}, s3, v{t}")
    A("s_mov_b32 s65, 0\ns_mov_b32 s66, 0\ns_add_u32 s10, s60, s61\ns_and_b32 s10, s10, 3")
    A(f"s_lshl_b32 s67, s64, 12\ns_add_u32 s67, s67, {G1_A}")
    A(f"s_lshl_b32 s68, s64, 11")
    A(f"s_lshl_b32 s69, s64, 10\ns_sub_u32 s69, {G1_HOFF}, s69")
    A(f"s_add_u32 s70, s67, {3*G1_ASLOT}\ns_add_u32 s71, s68, {3*G1_WSLOT}")
    srd(A, SA_, "w1", 1024*7168)
def g1_step(A, cnt):
    if opt("rot1", 1): A(f"s_and_b32 s11, s{cnt}, 3\ns_cmp_eq_u32 s11, s10\ns_cselect_b32 s11, 4, 0\ns_add_u32 s11, s11, s{cnt}\ns_and_b32 s11, s11, 15")
    else: A(f"s_mov_b32 s11, s{cnt}")
    A(f"s_add_u32 s{cnt}, s{cnt}, 1")
def g1_issue_w(A):
    g1_step(A, 66)
    A(f"s_mul_i32 s11, s11, {64*7168}")
    for u in range(3):
        A(f"s_add_u32 m0, s68, {u*G1_USZ}")
        for rgi in range(2):
            A(f"buffer_load_dwordx4 v{PVW+u*2+rgi}, s[{SA_}:{SA_+3}], s11 offen offset:{rgi*1024} {wpol()} lds")
    A("s_add_u32 m0, s68, s69")
    A(f"buffer_load_dwordx4 v{PVW+6}, s[{SA_}:{SA_+3}], s11 offen {wpol()} lds")
    A(f"s_add_u32 s68, s68, {G1_WSLOT}\ns_cmp_eq_u32 s68, s71\ns_cselect_b32 s3, {3*G1_WSLOT}, 0\ns_sub_u32 s68, s68, s3")
def g1_issue_a(A):
    g1_step(A, 65)
    A("s_mov_b32 m0, s67\ns_lshl_b32 s11, s11, 18")
    for k in range(4): A(f"buffer_load_dwordx4 v{PVA}, {WS}, s11 offen offset:{k*1024} {asc()} lds")
    A(f"s_add_u32 s67, s67, {G1_ASLOT}\ns_cmp_eq_u32 s67, s70\ns_cselect_b32 s3, {3*G1_ASLOT}, 0\ns_sub_u32 s67, s67, s3")
def g1_prod_main(A):
    NI = 11
    g1_issue_a(A); g1_issue_a(A)
    A("s_waitcnt vmcnt(4)\ns_barrier")
    g1_issue_w(A); g1_issue_a(A)
    s2_ = srd(A, SB_, "w2", 3584*2048)
    A("s_mul_i32 s48, s2, 224\ns_mul_i32 s57, s64, 56\ns_add_u32 s48, s48, s57\ns_lshl_b32 s48, s48, 7")
    A("v_min_u32 v50, 55, v2\nv_lshlrev_b32 v50, 7, v50")
    A(f"s_lshr_b32 s49, s2, 3\ns_and_b32 s49, s49, 7\ns_add_u32 s49, s49, {opt('evat', 2)}")
    A(f"s_add_u32 s3, s49, {8 - opt('evat', 2)}\ns_lshl_b32 s3, s3, 3\ns_and_b32 s57, s2, 1\ns_lshl_b32 s57, s57, 2\ns_add_u32 s3, s3, s57\ns_lshr_b32 s57, s2, 6\ns_add_u32 s3, s3, s57\ns_lshl_b32 s3, s3, 2\ns_add_u32 s3, s3, s64\ns_lshl_b32 s3, s3, 1")
    A("v_bfe_u32 v52, v2, 4, 1\nv_add_u32 v52, s3, v52\ns_movk_i32 s3, 7168\nv_mul_lo_u32 v52, v52, s3\nv_and_b32 v53, 15, v2\nv_min_u32 v53, 13, v53\nv_lshl_add_u32 v52, v53, 7, v52")
    A("s_bfe_u32 s50, s2, 0x20001\ns_mul_i32 s50, s50, 1792")
    if opt("spread"):
        LA = opt("spread")
        A("s_mul_i32 s48, s2, 28672\nv_min_u32 v50, 17, v2\nv_lshlrev_b32 v50, 7, v50")
        A("s_lshr_b32 s3, s2, 3\ns_lshl_b32 s3, s3, 1\ns_and_b32 s57, s2, 1\ns_add_u32 s3, s3, s57\ns_mul_i32 s3, s3, 7168\ns_add_u32 s50, s50, s3")
        A(f"s_add_u32 s50, s50, {LA*64*7168}\nv_lshlrev_b32 v52, 7, v53")
    A("s_mov_b32 s59, 0")
    l = A.newlabel("ploop"); l2 = A.newlabel("pnp")
    A(f"{l}:")
    A(f"s_waitcnt vmcnt({NI})\ns_barrier")
    g1_issue_w(A); g1_issue_a(A)
    if opt("spread"):
        A(f"s_cmp_lg_u32 s64, 3\ns_cbranch_scc1 {l2}")
        if not opt("nopf3", 1): A(f"buffer_load_dword v53, v52, s[{SA_}:{SA_+3}], s50 offen")
        A(f"buffer_load_dword v51, v50, {s2_}, s48 offen")
        A(f"s_add_u32 s48, s48, {18*128}\ns_add_u32 s50, s50, {64*7168}")
        A(f"{l2}:")
    elif not opt("nopf2") and not opt("w2tail", 0):
        A(f"s_cmp_lg_u32 s59, s49\ns_cbranch_scc1 {l2}")
        if not opt("nopf3", 1): A(f"buffer_load_dword v53, v52, s[{SA_}:{SA_+3}], s50 offen")
        A(f"buffer_load_dword v51, v50, {s2_}, s48 offen")
        A(f"{l2}:")
    A(f"s_add_u32 s59, s59, 1\ns_cmp_lg_u32 s59, 13\ns_cbranch_scc1 {l}")

def tr_base(A):
    A("v_lshrrev_b32 v3, 4, v2\nv_and_b32 v4, 15, v2")
    A("v_lshrrev_b32 v6, 2, v2\nv_and_b32 v6, 7, v6\nv_lshrrev_b32 v7, 1, v6\nv_lshlrev_b32 v7, 5, v7\nv_lshl_add_u32 v7, v6, 7, v7")
    A("v_and_b32 v8, 3, v2\nv_lshl_add_u32 v7, v8, 3, v7\nv_lshrrev_b32 v9, 5, v2\nv_lshl_add_u32 v7, v9, 10, v7")
def interleave(A, mf, fill, per):
    n = 0
    for m in mf:
        A(m)
        for _ in range(per(n)):
            if n < len(fill): A(fill[n]); n += 1
    while n < len(fill): A(fill[n]); n += 1

def sched(A, mf, slots):
    for n, m in enumerate(mf):
        A(m)
        for l in slots.get(n, []): A(l)
def align8(A):
    A.raw(".p2align 3")

def g1_consumer(A, st0):
    NT = 7
    A(f"s_and_b32 s64, s{sWAVE}, 1\ns_lshr_b32 s65, s{sWAVE}, 1")
    tr_base(A)
    tile_ids(A, 2)
    sb = srd(A, SA_, "b2", 2048)
    A(f"s_lshl_b32 s3, s65, 6\ns_add_u32 s3, s3, s62\ns_lshl_b32 s57, s3, 1\ns_add_u32 s57, s57, {F_MOD + 5*4096}")
    A("v_lshlrev_b32 v6, 3, v3\nv_lshlrev_b32 v18, 4, v3")
    for t in range(2): A(f"buffer_load_dwordx2 v[{XI+2*t}:{XI+2*t+1}], v6, {sb}, s3 offen offset:{t*32}")
    for t in range(2): A(f"buffer_load_dwordx4 v[{XI+4+4*t}:{XI+7+4*t}], v18, {WS}, s57 offen offset:{t*64} sc1")
    tile_ids(A, 1)
    vA, VT, TC = 5, 10, 44
    A(f"s_lshl_b32 s3, s64, 13\ns_add_u32 s3, s3, {G1_A}\nv_lshlrev_b32 v5, 4, v2\nv_add_u32 v5, s3, v5")
    A(f"s_lshl_b32 s3, s65, 14")
    for cb in range(4):
        A(f"v_xor_b32 v{VT+cb}, {cb*32}, v7\nv_add_u32 v{VT+cb}, s3, v{VT+cb}")
    A("s_lshl_b32 s3, s65, 6")
    for e in range(2):
        A(f"v_xor_b32 v{VT+4+e}, s3, v7\nv_xor_b32 v{VT+4+e}, {e*32}, v{VT+4+e}\nv_add_u32 v{VT+4+e}, {G1_USZ}, v{VT+4+e}")
    A("v_and_b32 v9, 2, v8\nv_or_b32 v9, s65, v9\nv_and_b32 v6, 1, v3\nv_xor_b32 v9, v9, v6\nv_lshlrev_b32 v9, 4, v9")
    A(f"v_lshrrev_b32 v6, 2, v2\nv_lshl_add_u32 v9, v6, 6, v9\nv_and_b32 v6, 1, v8\nv_lshl_add_u32 v9, v6, 3, v9\nv_add_u32 v{VT+6}, {G1_HOFF}, v9")
    A(f"s_lshl_b32 s3, s65, 8\ns_add_u32 s{TC}, s62, s3")
    for cb in range(1, 4): A(f"s_add_u32 s{TC+cb}, s{TC}, {cb*32}")
    A(f"s_lshl_b32 s3, s65, 6\ns_add_u32 s{TC+4}, s62, s3\ns_add_u32 s{TC+4}, s{TC+4}, 128\ns_add_u32 s{TC+5}, s{TC+4}, 32")
    A(f"s_lshl_b32 s3, s65, 4\ns_add_u32 s{TC+6}, s63, s3")
    ACC = 20
    FA = [ACC + 16*NT, ACC + 16*NT + 16]
    FW = [FA[1] + 16, FA[1] + 16 + 4*NT]
    sb = srd(A, SA_, "b1", 7168)
    A("v_lshlrev_b32 v6, 3, v3\nv_and_b32 v9, 1, v3\nv_lshlrev_b32 v9, 3, v9\nv_lshrrev_b32 v17, 1, v3\nv_lshl_add_u32 v9, v17, 5, v9")
    for t in range(NT):
        A(f"buffer_load_dwordx2 v[{FW[1]+2*t}:{FW[1]+2*t+1}], v{6 if t < 6 else 9}, {sb}, s{TC+t} offen")
    A("s_waitcnt vmcnt(0)")
    for t in range(NT):
        a = ACC + 4*t
        lo(A, a, FW[1]+2*t); hi(A, a+1, FW[1]+2*t); lo(A, a+2, FW[1]+2*t+1); hi(A, a+3, FW[1]+2*t+1)
    for i in range(1, 4):
        for t in range(NT):
            for r in range(4): A(f"v_mov_b32 v{ACC+4*(i*NT+t)+r}, v{ACC+4*t+r}")
    c0 = -2.0 * 1.4426950408889634 * math.sqrt(2.0 / math.pi)
    A(f"v_mov_b32 v240, {f2u(c0*0.044715):#x}\nv_mov_b32 v241, v240\nv_mov_b32 v242, {f2u(c0):#x}\nv_mov_b32 v243, v242")
    h_addr(A, 64, 65, TC)
    A(f"s_lshl_b32 s45, s60, 4\ns_add_u32 s45, s45, s61\ns_lshl_b32 s45, s45, 2\ns_add_u32 s45, s45, s{sWAVE}\ns_lshl_b32 s45, s45, 7")
    def reads(ks, buf):
        aa = [f"ds_read_b128 v[{FA[buf]+4*i}:{FA[buf]+4*i+3}], v{vA} offset:{(i*2+ks)*1024}" for i in range(4)]
        ww = []
        for t in range(NT):
            o0, d = (ks*2048, 1024) if t == 6 else (ks*4096, 2048)
            ww.append(f"ds_read_b64_tr_b16 v[{FW[buf]+4*t}:{FW[buf]+4*t+1}], v{VT+t} offset:{o0}")
            ww.append(f"ds_read_b64_tr_b16 v[{FW[buf]+4*t+2}:{FW[buf]+4*t+3}], v{VT+t} offset:{o0+d}")
        return aa + ww
    A(f"s_mov_b32 s59, {G1_NST-1}\ns_mov_b32 s58, 1\ns_mov_b32 s66, {G1_ASLOT}\ns_mov_b32 s67, {G1_WSLOT}")
    A(f"s_mov_b32 s70, {-2*G1_ASLOT & 0xffffffff}\ns_mov_b32 s71, {-2*G1_WSLOT & 0xffffffff}\ns_mov_b32 s68, s66\ns_mov_b32 s69, s67")
    A("s_barrier")
    stamp(A, st0)
    for l in reads(0, 0): A(l)
    A("s_waitcnt lgkmcnt(0)")
    align8(A)
    start = len(A.lines)
    lp = A.newlabel("cloop")
    A(f"{lp}:")
    for ks in range(2):
        rd = reads(ks ^ 1, ks ^ 1)
        mf = [f"v_mfma_f32_16x16x32_bf16 v[{ACC+4*(i*NT+t)}:{ACC+4*(i*NT+t)+3}], v[{FW[ks]+4*t}:{FW[ks]+4*t+3}], v[{FA[ks]+4*i}:{FA[ks]+4*i+3}], v[{ACC+4*(i*NT+t)}:{ACC+4*(i*NT+t)+3}]"
              for i in range(4) for t in range(NT)]
        sl = {n: [rd[n]] for n in range(18)}
        if ks == 0:
            ad = [f"v_add_u32 v{vA}, s68, v{vA}"] + [f"v_add_u32 v{VT+t}, s69, v{VT+t}" for t in range(NT)]
            for n in range(4): sl[18+n] = ad[2*n:2*n+2]
            sl[25] = ["s_waitcnt lgkmcnt(0)", "s_barrier"]
        else:
            sl[18] = ["s_add_u32 s58, s58, 1", "s_cmp_eq_u32 s58, 3"]
            sl[19] = ["s_cselect_b32 s58, 0, s58", "s_cselect_b32 s68, s70, s66"]
            sl[20] = ["s_cselect_b32 s69, s71, s67", "s_sub_u32 s59, s59, 1"]
            sl[26] = ["s_waitcnt lgkmcnt(0)", "s_nop 0"]
        sched(A, mf, sl)
    A(f"s_cbranch_scc0 {lp}")
    check_loop(A.lines[start:])
    stamp(A, st0 + 1)
    T = FA[0]; O = FA[1]
    for i in range(4):
        a = ACC + 4*(i*NT + 4); o = O + 4*i
        gelu8(A, T, [a, a+2, a+4, a+6], o)
        A(f"s_add_u32 s3, s{TC+4}, {i*2048}")
        A(f"buffer_store_dwordx4 v[{o}:{o+3}], v7, {WS}, s3 offen sc1")
    xstamp(A, "ge4")
    A(f"s_add_u32 s66, s45, {F_S4A}\ns_add_u32 s67, s45, {F_S4B}\ns_add_u32 s51, s45, {F_S4H}")
    late = [[ACC + 4*(i*NT + 2*pr) + 2*e for e in range(4)] for pr in range(2) for i in range(4)]
    late += [[ACC + 4*(i*NT + 6), ACC + 4*(i*NT + 6) + 2, ACC + 4*((i+1)*NT + 6), ACC + 4*((i+1)*NT + 6) + 2] for i in (0, 2)]
    for n, srcs in enumerate(late):
        o = LATE + 4*n
        gelu8(A, T, srcs, o)
        if n >= 8: A(f"v_permlane32_swap_b32 v{o}, v{o+2}\nv_permlane32_swap_b32 v{o+1}, v{o+3}")
        if n == opt("earlyat", 3):
            A("s_waitcnt vmcnt(0)")
            flag_set(A, "s66", 16, 9)
            A(f"v_mov_b32 v10, {L_CNT+12}\nv_mov_b32 v11, 1\nds_write_b32 v10, v11")
            xstamp(A, "gef")
        if opt("late", 0) == 0:
            ea = opt("earlyat", 3)
            todo = list(range(ea + 1)) if n == ea else ([n] if ea < n < 8 else [])
            for k in todo:
                A(f"s_add_u32 s3, s{TC}, {(k & 3)*2048}")
                A(f"buffer_store_dwordx4 v[{LATE+4*k}:{LATE+4*k+3}], v7, {WS}, s3 offen offset:{(k >> 2)*1024} sc1")
    A(f"v_mov_b32 v220, v7\nv_mov_b32 v221, v8\ns_mov_b32 s69, s{TC}\ns_mov_b32 s71, s{TC+6}")
    stamp(A, st0 + 2)
LATE = 180

def gelu8(A, T, srcs, o):
    pr = lambda r: f"v[{r}:{r+1}]"
    for e, a in enumerate(srcs): A(f"v_pk_mul_f32 {pr(T+2*e)}, {pr(a)}, {pr(a)}")
    for e, a in enumerate(srcs): A(f"v_pk_fma_f32 {pr(T+2*e)}, {pr(T+2*e)}, v[240:241], v[242:243]")
    for e, a in enumerate(srcs): A(f"v_pk_mul_f32 {pr(T+2*e)}, {pr(T+2*e)}, {pr(a)}")
    for e in range(8): A(f"v_exp_f32 v{T+e}, v{T+e}")
    for e in range(4): A(f"v_pk_add_f32 {pr(T+2*e)}, {pr(T+2*e)}, 1.0 op_sel_hi:[1,0]")
    for e in range(8): A(f"v_rcp_f32 v{T+e}, v{T+e}")
    for e, a in enumerate(srcs): A(f"v_pk_mul_f32 {pr(T+2*e)}, {pr(T+2*e)}, {pr(a)}")
    for e in range(4): A(f"v_cvt_pk_bf16_f32 v{o+e}, v{T+2*e}, v{T+2*e+1}")
def h_addr(A, wm, wn, TC):
    A(f"s_lshl_b32 s3, s60, 3\ns_lshl_b32 s57, s{wm}, 2\ns_add_u32 s3, s3, s57\ns_lshl_b32 s3, s3, 11\ns_add_u32 s3, s3, {WS_HF}")
    A("v_lshlrev_b32 v9, 4, v2\nv_add_u32 v7, s3, v9")
    A(f"v_lshrrev_b32 v8, 5, v2\nv_mul_u32_u24 v8, {2048 - 512}, v8\nv_add_u32 v8, v8, v7\ns_lshl_b32 s3, s{wn}, 9\nv_add_u32 v8, s3, v8")
    A(f"s_lshr_b32 s{TC}, s62, 7\ns_add_u32 s{TC+4}, s{TC}, 1\ns_lshl_b32 s3, s{wn}, 1\ns_add_u32 s{TC}, s{TC}, s3\ns_lshl_b32 s{TC}, s{TC}, 18\ns_add_u32 s{TC+2}, s{TC}, 1024")
    A(f"s_lshl_b32 s{TC+4}, s{TC+4}, 18\ns_lshl_b32 s3, s{wn}, 10\ns_add_u32 s{TC+4}, s{TC+4}, s3")
    A(f"s_and_b32 s3, s63, 64\ns_lshl_b32 s3, s3, 4\ns_lshr_b32 s{TC+6}, s63, 7\ns_lshl_b32 s{TC+6}, s{TC+6}, 18\ns_add_u32 s{TC+6}, s{TC+6}, s3")

G2_SLOT = 16384; G2_W = 28672; G2_A = G2_W + 4*G2_SLOT
def g2_unit(s):
    if s < 8: return 7*(s >> 1) + (5 if s & 1 else 1), True
    if s < 24: return 7*((s-8) >> 2) + 2*((s-8) & 3), True
    return 7*(s-24) + 3, False
def g2_producer(A):
    tile_ids(A, 2)
    A(f"s_lshl_b32 s3, s60, 3\ns_lshl_b32 s57, s64, 1\ns_add_u32 s3, s3, s57\ns_lshl_b32 s3, s3, 11\ns_add_u32 s3, s3, {WS_HF}")
    A(f"v_lshlrev_b32 v{PVA}, 4, v2\nv_add_u32 v{PVA}, s3, v{PVA}")
    t = 212
    unit_lane_off(A, t, 2048)
    A(f"s_lshl_b32 s3, s64, 15\nv_add_u32 v{t}, s3, v{t}")
    A(f"v_add_u32 v{PVW}, s62, v{t}\nv_add_u32 v{PVW+1}, {16384-1024}, v{PVW}\nv_add_u32 v{PVW+2}, s63, v{t}\nv_add_u32 v{PVW+3}, {16384-1024}, v{PVW+2}")
    A(f"s_mul_i32 s65, s61, {28*262144}\ns_mul_i32 s66, s61, {28*131072}")
    A(f"s_lshl_b32 s67, s64, 12\ns_add_u32 s67, s67, {G2_A}\ns_lshl_b32 s68, s64, 11\ns_add_u32 s68, s68, {G2_W}")
    sw = srd(A, SA_, "w2", 3584*2048)
    A("v_and_b32 v46, 15, v2\nv_lshlrev_b32 v46, 8, v46\nv_and_b32 v47, 31, v2\nv_lshlrev_b32 v47, 8, v47")
    A(f"s_lshr_b32 s3, s64, 1\ns_lshl_b32 s3, s3, 7\ns_lshl_b32 s49, s60, 13\ns_add_u32 s49, s49, s3\ns_lshl_b32 s3, s61, 12\ns_add_u32 s59, s49, s3")
    A(f"s_add_u32 s59, s59, {F_S4A}\ns_add_u32 s71, s49, {F_S4B}\ns_add_u32 s49, s49, {F_S4H}")
    A("s_lshr_b32 s3, s2, 5\ns_add_u32 s45, s60, s3\ns_and_b32 s45, s45, 3")
    def lead(s):
        lo_, n = (0, 8) if s < 8 else ((8, 16) if s < 24 else (24, 8))
        return lo_ + (s - lo_ + 4) % n
    def soff(d, base, s, scale):
        u, p1 = g2_unit(s); u2, _ = g2_unit(lead(s))
        if opt("rot2", 1):
            A(f"s_cmp_eq_u32 s45, {s & 3}\ns_cselect_b32 s{d}, {u2}, {u}\ns_lshl_b32 s{d}, s{d}, {scale}")
            if p1: A(f"s_add_u32 s{d}, s{d}, s{base}")
        else:
            A(f"s_add_u32 s{d}, s{base}, {u << scale}" if p1 else f"s_mov_b32 s{d}, {u << scale}")
    def iw(s):
        u, p1 = g2_unit(s)
        soff(69, 66, s, 17)
        for un in range(2 if p1 else 1):
            A(f"s_add_u32 m0, s68, {(s & 3)*G2_SLOT + un*8192}")
            for rgi in range(2):
                A(f"buffer_load_dwordx4 v{PVW+2*un+rgi}, {sw}, s69 offen offset:{rgi*1024} {wpol()} lds")
        return 4 if p1 else 2
    def ia(s):
        u, p1 = g2_unit(s)
        A(f"s_add_u32 m0, s67, {(s & 3)*G2_SLOT}")
        soff(70, 65, s, 18)
        for k in range(4): A(f"buffer_load_dwordx4 v{PVA}, {WS}, s70 offen offset:{k*1024} {asc()} lds")
        return 4
    A("s_waitcnt vmcnt(11)\ns_barrier")
    tail = opt("w2tail", 0) and not opt("nopf2")
    if tail: A(f"buffer_load_dword v51, v50, {sw}, s48 offen")
    x1_store(A); iw(0)
    A(f"s_waitcnt vmcnt({9 if tail else 8})\ns_barrier")
    iw(1); iw(2)
    A("s_barrier")
    stamp(A, 10)
    iw(3)
    l = A.newlabel("wef")
    A(f"v_mov_b32 v48, {L_CNT+12}")
    A(f"{l}:")
    A(f"s_sleep 1\nds_read_b32 v49, v48\ns_waitcnt lgkmcnt(0)\nv_readfirstlane_b32 s57, v49\ns_cmp_eq_u32 s57, 0\ns_cbranch_scc1 {l}")
    stamp(A, 11)
    poll(A, 46, "s59", 48)
    stamp(A, 12)
    q = []
    NP = 4 if opt("late", 0) else opt("np", 2)
    for s in range(NP): q.append([s, ia(s)])
    if opt("late", 0): A("s_barrier")
    def wait_for(key):
        n = sum(c for k, c in q if k > key)
        A(f"s_waitcnt vmcnt({n})")
    def check(soff, key):
        wait_for(key)
        d = A.newlabel("s4ok")
        A(f"v_cmp_ne_u32 vcc, s{sN}, v48\ns_nop 1\ns_cbranch_vccz {d}")
        poll(A, 47, soff, 48)
        A(f"{d}:")
    wait_for(0); A("s_barrier")
    for s in range(NP, 4): q.append([s, ia(s)])
    for s in range(32):
        if s + 1 < 32: wait_for(s + 1)
        A("s_barrier")
        n = s + 4
        if n == 7 and not opt("late", 0):
            A(f"buffer_load_dword v48, v47, {WS}, s71 offen sc1"); q.append([6.5, 1])
        if n == 8:
            if opt("late", 0): A(f"buffer_load_dword v48, v47, {WS}, s71 offen sc1"); q.append([7.5, 1])
            check("s71", 7.5 if opt("late", 0) else 6.5)
            xstamp(A, "s4c")
        xstamp(A, f"p{s}")
        if n == 22:
            A(f"buffer_load_dword v48, v47, {WS}, s49 offen sc1"); q.append([21.5, 1])
        if n == 24: check("s49", 21.5)
        if n < 32:
            c = iw(n) + ia(n); q.append([n, c])

def g2_consumer(A, st0):
    ACC, FA, FW, XR, PR, vPL = 20, [84, 100], [116, 132], 148, 164, 222
    GB = XI + 4
    tile_ids(A, 2)
    tr_base(A)
    vA, VT = 5, 10
    A(f"s_lshl_b32 s3, s64, 13\ns_add_u32 s3, s3, {G2_A}\nv_lshlrev_b32 v9, 4, v2\nv_add_u32 v5, s3, v9")
    A("s_lshl_b32 s3, s65, 6")
    for e in range(2):
        A(f"v_xor_b32 v{VT+e}, s3, v7\nv_xor_b32 v{VT+e}, {e*32}, v{VT+e}\nv_add_u32 v{VT+e}, {G2_W}, v{VT+e}")
    A(f"s_add_u32 s44, s62, s3")
    A(f"s_xor_b32 s3, s2, 1\ns_lshl_b32 s3, s3, 2\ns_add_u32 s3, s3, s{sWAVE}\ns_lshl_b32 s46, s3, 12\ns_add_u32 s46, s46, {WS_PART}\ns_lshl_b32 s47, s3, 7\ns_add_u32 s47, s47, {F_S5}")
    A(f"s_lshl_b32 s3, s2, 2\ns_add_u32 s3, s3, s{sWAVE}\ns_lshl_b32 s48, s3, 12\ns_add_u32 s48, s48, {WS_PART}\ns_lshl_b32 s49, s3, 7\ns_add_u32 s49, s49, {F_S5}")
    A(f"s_lshr_b32 s45, s44, 7\ns_lshl_b32 s45, s45, 18\ns_lshl_b32 s3, s65, 10\ns_add_u32 s45, s45, s3\ns_lshl_b32 s3, s60, 14\ns_add_u32 s45, s45, s3\ns_lshl_b32 s3, s64, 13\ns_add_u32 s45, s45, s3\ns_add_u32 s45, s45, {WS_X1}\ns_add_u32 s50, s45, 4096")
    A("v_mov_b32 v19, 0")
    for t in range(2):
        a = ACC + 4*t
        lo(A, a, XI+2*t); hi(A, a+1, XI+2*t); lo(A, a+2, XI+2*t+1); hi(A, a+3, XI+2*t+1)
    for i in range(4):
        for t in range(4):
            if i == 0 and t < 2: continue
            for r in range(4): A(f"v_mov_b32 v{ACC+4*(i*4+t)+r}, " + (f"v{ACC+4*t+r}" if t < 2 else "0"))
    for e in range(8): A(f"v_cvt_pk_bf16_f32 v{GB+e}, v{GB+e}, v{GB+e}\nv_lshlrev_b32 v{GB+e}, 16, v{GB+e}")
    def reads(ks, buf, nt):
        aa = [f"ds_read_b128 v[{FA[buf]+4*i}:{FA[buf]+4*i+3}], v{vA} offset:{(i*2+ks)*1024}" for i in range(4)]
        ww = []
        for t in range(nt):
            o0 = ks*4096 + (t >> 1)*8192
            ww.append(f"ds_read_b64_tr_b16 v[{FW[buf]+4*t}:{FW[buf]+4*t+1}], v{VT+(t&1)} offset:{o0}")
            ww.append(f"ds_read_b64_tr_b16 v[{FW[buf]+4*t+2}:{FW[buf]+4*t+3}], v{VT+(t&1)} offset:{o0+2048}")
        return aa + ww
    def stage_body(nt, hook=None):
        for ks in range(2):
            rd = reads(ks ^ 1, ks ^ 1, nt)
            mf = [f"v_mfma_f32_16x16x32_bf16 v[{ACC+4*(i*4+t)}:{ACC+4*(i*4+t)+3}], v[{FW[ks]+4*t}:{FW[ks]+4*t+3}], v[{FA[ks]+4*i}:{FA[ks]+4*i+3}], v[{ACC+4*(i*4+t)}:{ACC+4*(i*4+t)+3}]"
                  for i in range(4) for t in range(nt)]
            ad = [f"v_add_u32 v{vA}, s68, v{vA}", f"v_add_u32 v{VT}, s68, v{VT}", f"v_add_u32 v{VT+1}, s68, v{VT+1}", "s_nop 0"]
            sa = ["s_add_u32 s58, s58, 1", "s_and_b32 s58, s58, 3", "s_cselect_b32 s68, s66, s70", "s_sub_u32 s59, s59, 1"]
            ex = ad if ks == 0 else sa
            if nt == 4:
                sl = {0: rd[0:2], 1: rd[2:4], 2: rd[4:6], 3: rd[6:8], 4: rd[8:9], 5: rd[9:10], 6: rd[10:11], 7: rd[11:12], 8: ex[0:2], 9: ex[2:4]}
                sl[14] = ["s_waitcnt lgkmcnt(0)", "s_barrier" if ks == 0 else "s_nop 0"]
                if ks == 0 and hook: sl[11] = hook
            else:
                sl = {0: rd[0:3], 1: rd[3:6], 2: rd[6:8], 3: ex[0:2], 4: ex[2:4]}
                sl[7] = ["s_waitcnt lgkmcnt(0)", "s_barrier"] if ks == 0 else ["s_waitcnt lgkmcnt(0)"]
            sched(A, mf, sl)
    A(f"s_mov_b32 s59, 23\ns_mov_b32 s58, 1\ns_mov_b32 s66, {G2_SLOT}\ns_mov_b32 s68, s66\ns_mov_b32 s70, {-3*G2_SLOT & 0xffffffff}")
    A(f"s_mov_b32 s21, {23 - opt('s4bat', 2 if opt('late', 0) else 0)}")
    A(f"s_lshl_b32 s3, s60, 18\ns_lshl_b32 s57, s64, 17\ns_add_u32 s3, s3, s57\ns_add_u32 s3, s3, s44")
    A("v_lshlrev_b32 v17, 11, v4\nv_and_b32 v16, 1, v3\nv_lshl_add_u32 v17, v16, 5, v17\nv_lshrrev_b32 v16, 1, v3\nv_lshl_add_u32 v17, v16, 4, v17\nv_add_u32 v17, s3, v17")
    if opt("late", 0):
        A("s_barrier")
        for i in range(4):
            A(f"s_add_u32 s3, s69, {i*2048}")
            for pr in range(2): A(f"buffer_store_dwordx4 v[{LATE+16*pr+4*i}:{LATE+16*pr+4*i+3}], v220, {WS}, s3 offen offset:{pr*1024} sc1")
    xstamp(A, "lst")
    A("s_barrier")
    stamp(A, st0)
    for l in reads(0, 0, 4): A(l)
    A("s_waitcnt lgkmcnt(0)")
    align8(A)
    start = len(A.lines)
    lp = A.newlabel("c2a")
    A(f"{lp}:")
    stage_body(4, ["s_cmp_eq_u32 s59, s21", "s_cbranch_scc1 L_s4b", "L_s4br:"])
    A(f"s_cbranch_scc0 {lp}")
    check_loop(A.lines[start:])
    xstamp(A, "g2p1")
    for i in range(4):
        a = ACC + 4*(i*4+2)
        for e in range(4): A(f"v_cvt_pk_bf16_f32 v{PR+4*i+e}, v{a+2*e}, v{a+2*e+1}")
        A(f"buffer_store_dwordx4 v[{PR+4*i}:{PR+4*i+3}], v9, {WS}, s46 offen offset:{i*1024} sc1")
    for i in range(4): A(f"buffer_load_dwordx4 v[{XR+4*i}:{XR+4*i+3}], v9, {WS}, s{45 if i < 2 else 50} offen offset:{(i&1)*2048} sc1")
    xstamp(A, "g2st")
    A("s_mov_b32 s59, 7")
    start = len(A.lines)
    lp = A.newlabel("c2b"); l1 = A.newlabel("c2x"); l2 = A.newlabel("c2y"); l3 = A.newlabel("c2z")
    A(f"{lp}:")
    A(f"s_cmp_lg_u32 s59, {opt('p2a', 5)}\ns_cbranch_scc1 {l1}")
    A("s_waitcnt vmcnt(4)")
    flag_set(A, "s47", 12, 9)
    A(f"{l1}:")
    A(f"s_cmp_lg_u32 s59, {opt('p2b', 2)}\ns_cbranch_scc1 {l2}")
    A(f"buffer_load_dword v{vPL}, v19, {WS}, s49 offen sc1")
    A(f"{l2}:")
    A(f"s_cmp_lg_u32 s59, {opt('p2c', 0)}\ns_cbranch_scc1 {l3}")
    d = A.newlabel("s5ok")
    A(f"s_waitcnt vmcnt(0)\nv_cmp_ne_u32 vcc, s{sN}, v{vPL}\ns_nop 1\ns_cbranch_vccz {d}")
    poll(A, 19, "s49", vPL)
    A(f"{d}:")
    for j in range(4): A(f"buffer_load_dwordx4 v[{PR+4*j}:{PR+4*j+3}], v9, {WS}, s48 offen offset:{j*1024} sc1")
    A(f"{l3}:")
    stage_body(2)
    A(f"s_cbranch_scc0 {lp}")
    check_loop(A.lines[start:])
    stamp(A, st0 + 1)
    so = srd(A, SA_, "out", 4*MB)
    T = 84
    for i in range(4):
        for e in range(4): lo(A, T+8*i+2*e, XR+4*i+e); hi(A, T+8*i+2*e+1, XR+4*i+e)
        for e in range(8): A(f"v_fmac_f32 v{T+8*i+e}, v{ACC+16*i+e}, v{GB+e}")
    for i in range(4):
        A(f"s_waitcnt vmcnt({3-i+i})" if i else "s_waitcnt vmcnt(3)")
        U = 116
        for e in range(4): lo(A, U+2*e, PR+4*i+e); hi(A, U+2*e+1, PR+4*i+e)
        for e in range(8): A(f"v_fmac_f32 v{T+8*i+e}, v{U+e}, v{GB+e}")
        x = XR + 4*i
        for e in range(4): A(f"v_cvt_pk_bf16_f32 v{x+e}, v{T+8*i+2*e}, v{T+8*i+2*e+1}")
        A(f"v_permlane16_swap_b32 v{x}, v{x+2}\nv_permlane16_swap_b32 v{x+1}, v{x+3}")
        A(f"s_mov_b32 s3, {i*32768}")
        A(f"buffer_store_dwordx4 v[{x}:{x+3}], v17, {so}, s3 offen " + ["", "sc1", "nt", "sc0 sc1"][opt("outpol")])
def g2_hooks(A):
    A.flush_hist()
    A("L_s4b:")
    A("s_waitcnt vmcnt(0)")
    flag_set(A, "s67", 12, 9)
    A("s_cmp_lt_u32 s21, 16\ns_cbranch_scc1 L_s4br")
    xstamp(A, "s4b")
    for k, i in enumerate((0, 2)):
        A(f"s_add_u32 s3, s71, {i*2048}")
        A(f"buffer_store_dwordx4 v[{LATE+32+4*k}:{LATE+35+4*k}], v221, {WS}, s3 offen sc1")
    A("s_mov_b32 s21, 15\ns_mov_b32 s67, s51")
    A("s_branch L_s4br")

def kernel(A):
    kernel_begin(A, NAME)
    A("s_load_dwordx2 s[40:41], s[0:1], 8\ns_load_dwordx2 s[44:45], s[0:1], 16")
    A("s_load_dwordx16 s[4:19], s[0:1], 0\ns_load_dwordx16 s[20:35], s[0:1], 64")
    A("s_cmp_ge_u32 s2, 256\ns_cbranch_scc1 L_exit")
    stamp(A, 0)
    A("v_lshrrev_b32 v1, 6, v0\nv_and_b32 v2, 63, v0")
    if opt("map0"): A(f"s_and_b32 s{sTT}, s2, 15\ns_lshr_b32 s{sCT}, s2, 4")
    else: A(f"s_and_b32 s{sCT}, s2, 15\ns_lshr_b32 s{sTT}, s2, 4")
    A(f"v_readfirstlane_b32 s{sWAVE}, v1")
    A("v_lshrrev_b32 v3, 3, v2\nv_bfe_u32 v4, v2, 4, 1\nv_and_b32 v5, 7, v2\nv_xor_b32 v4, v4, v5\nv_lshlrev_b32 v4, 4, v4\nv_lshl_add_u32 v4, v3, 11, v4")
    A(f"s_lshl_b32 s3, s{sTT}, 18\ns_lshl_b32 s57, s{sCT}, 7\ns_add_u32 s3, s3, s57")
    A(f"s_lshl_b32 s57, s{sWAVE}, 15\ns_add_u32 s57, s57, s3")
    A(f"s_and_b32 s58, s{sWAVE}, 1\ns_lshl_b32 s58, s58, 6")
    A("v_xor_b32 v5, s58, v4\nv_add_u32 v5, s57, v5")
    A("v_xor_b32 v6, 32, v5")
    A("s_movk_i32 s58, 15360\nv_add_u32 v16, s58, v6")
    A("v_xor_b32 v17, 64, v5\nv_add_u32 v17, s58, v17")
    A(f"s_mov_b32 s42, {4*MB}\ns_mov_b32 s43, 0x20000\ns_mov_b32 s46, s42\ns_mov_b32 s47, s43")
    sk, sv = "s[40:43]", "s[44:47]"
    A(f"s_lshl_b32 s59, s{sWAVE}, 11\ns_add_u32 m0, s59, {L_KT+1024}")
    A("s_waitcnt lgkmcnt(0)")
    A(f"buffer_load_dwordx4 v6, {sk}, 0 offen nt lds\nbuffer_load_dwordx4 v17, {sk}, 0 offen offset:1024 nt lds")
    A(f"s_add_u32 m0, s59, {L_VT}")
    A(f"buffer_load_dwordx4 v5, {sv}, 0 offen nt lds\nbuffer_load_dwordx4 v16, {sv}, 0 offen offset:1024 nt lds")
    A(f"s_cmp_lg_u32 s{sWAVE}, 0\ns_cbranch_scc1 L_nohalo")
    A(f"s_sub_u32 s3, s3, 16384\ns_cmp_eq_u32 s{sTT}, 0\ns_cselect_b32 s3, 0x80000000, s3\nv_add_u32 v7, s3, v4")
    A(f"s_mov_b32 m0, {L_KT}")
    A(f"buffer_load_dwordx4 v7, {sk}, 0 offen nt lds")
    A("L_nohalo:")
    if opt("wsoff"): A(f"s_add_u32 s34, s34, {opt('wsoff')*MB}\ns_addc_u32 s35, s35, 0")
    if opt("dbgst"): A("s_mov_b32 s6, s32\ns_mov_b32 s7, s33")
    A("v_and_b32 v8, 15, v2\nv_lshrrev_b32 v9, 4, v2\nv_lshlrev_b32 v11, 4, v2")
    vL16 = 11
    A("v_and_b32 v10, 1, v9\nv_and_b32 v14, 3, v2\nv_lshl_add_u32 v10, v10, 2, v14\nv_lshlrev_b32 v10, 3, v10")
    ss = srd(A, SC_, "shift", 8192)
    A(f"s_lshl_b32 s3, s{sWAVE}, 6\ns_lshl_b32 s57, s{sCT}, 9\ns_add_u32 s3, s3, s57")
    A(f"buffer_load_dwordx2 v[12:13], v10, {ss}, s3 offen")
    tile_ids(A, 1)
    A(f"s_lshl_b32 s{sTB}, s60, 4\ns_add_u32 s{sTB}, s{sTB}, s61\ns_lshl_b32 s{sCG}, s{sCT}, 4\ns_add_u32 s{sCG}, s{sCG}, s{sTT}")
    if opt("tb0"): A(f"s_mov_b32 s{sTB}, s2")
    A(f"s_lshl_b32 s59, s{sCT}, 7")
    A(f"s_cmp_lt_u32 s{sWAVE}, 4\ns_movk_i32 s58, {F_GVC}\ns_cselect_b32 s58, {F_S2C}, s58\ns_add_u32 s59, s59, s58")
    A(f"s_lshl_b32 s60, s{sCG}, 2\ns_add_u32 s60, s60, s{sWAVE}\ns_and_b32 s60, s60, 1023")
    A("s_lshl_b32 s63, s60, 1\ns_and_b32 s63, s63, 0x7fc")
    A(f"s_load_dword s{sN}, s[34:35], {F_E}\ns_load_dword s{sC0}, s[34:35], s59\ns_load_dword s33, s[{P['ssmD']}:{P['ssmD']+1}], s63")
    A(f"v_lshlrev_b32 v14, 2, v2\nv_add_u32 v14, {L_ST}, v14\nv_mov_b32 v15, 0\nds_write_b32 v14, v15")
    A(f"s_mov_b32 s36, s34\ns_mov_b32 s37, s35\ns_mov_b32 s38, {64*MB}\ns_mov_b32 s39, 0x20000")
    A(f"s_mul_i32 s61, s{sWAVE}, {WSZ}\ns_lshl_b32 s62, s60, 12")
    sp = srd(A, SA_, "ssmk", 4*MB); sc = srd(A, SB_, "c", 2048)
    A("s_getpc_b64 s[64:65]")
    A("L_pc:")
    A(f"s_lshr_b32 s3, s2, 3\ns_and_b32 s3, s3, 31\ns_lshl_b32 s3, s3, 10\nv_and_b32 v14, 7, v2\nv_lshlrev_b32 v14, 7, v14\nv_add_u32 v14, s3, v14\nv_min_u32 v14, L_end-L_pc-4, v14")
    A(f"v_lshlrev_b32 v15, 2, v2\ns_and_b32 s3, s{sTT}, 7\ns_lshl_b32 s3, s3, 8")
    xstamp(A, "iss")
    SM = opt("ssm", 0)
    def ssm_issue():
        for i in range(4): A(f"buffer_load_dwordx4 v{vL16}, {sp}, s62 offen offset:{i*1024} nt lds")
    A("s_add_u32 m0, s61, 32")
    if SM == 0: A("s_barrier")
    A(f"s_cmp_ge_u32 s{sWAVE}, 4\ns_cbranch_scc1 L_b0")
    if opt("ssmsl", 12): A("s_sleep %d" % opt("ssmsl", 12))
    if SM == 0: ssm_issue()
    A("s_branch L_c0")
    A("L_b0:")
    A(f"buffer_load_dword v220, v15, {sc}, s3 offen")
    A("global_load_dword v221, v14, s[64:65]")
    A(f"s_lshr_b32 s3, s{sTT}, 1\ns_lshl_b32 s3, s3, 7\nv_and_b32 v223, 1, v9\nv_subrev_u32 v14, 1, v223\nv_and_b32 v14, s3, v14\nv_lshl_add_u32 v14, v8, 10, v14")
    A(f"s_lshl_b32 s3, s{sCT}, 14\ns_add_u32 s3, s3, {F_S1}")
    A(f"v_lshlrev_b32 v223, 14, v223\nv_lshl_add_u32 v223, v8, 7, v223\ns_movk_i32 s57, {F_S2R}")
    A(f"s_cmp_eq_u32 s{sWAVE}, 7\ns_cselect_b32 exec_lo, -1, 1\ns_mov_b32 exec_hi, 0")
    A(f"buffer_load_dword v221, v14, {WS}, s3 offen sc1")
    A(f"buffer_load_dword v221, v223, {WS}, s57 offen sc1")
    A("s_mov_b64 exec, -1")
    A("L_c0:")
    A.flush_hist()

    A("v_bfe_u32 v16, v2, 2, 2\nv_and_b32 v17, 3, v2\nv_lshrrev_b32 v18, 1, v16")
    A(f"v_xor_b32 v18, s{sWAVE}, v18")
    A("v_lshrrev_b32 v19, 1, v9\nv_lshl_add_u32 v20, v19, 3, v17\nv_lshlrev_b32 v20, 10, v20\nv_lshl_add_u32 v20, v16, 7, v20")
    A(f"v_and_b32 v21, 1, v9\nv_lshl_add_u32 v20, v21, 3, v20\nv_add_u32 v20, {L_KT}, v20")
    A("v_lshlrev_b32 v22, 1, v17\nv_xor_b32 v22, v22, v18\nv_lshl_add_u32 v22, v22, 4, v20")
    A("v_add_u32 v23, 1, v17\nv_and_b32 v23, 3, v23\nv_lshlrev_b32 v23, 1, v23\nv_xor_b32 v23, v23, v18\nv_lshl_add_u32 v23, v23, 4, v20")
    A("v_lshl_add_u32 v24, v19, 3, v16\nv_sub_u32 v24, 11, v24\nv_lshlrev_b32 v24, 6, v24\nv_lshl_add_u32 v24, v17, 4, v24\nv_lshl_add_u32 v24, v21, 14, v24")
    A(f"s_lshl_b32 s3, s{sCT}, 18\ns_lshl_b32 s57, s{sWAVE}, 15\ns_add_u32 s3, s3, s57\ns_lshl_b32 s57, s{sTT}, 10\ns_sub_u32 s3, s3, s57\ns_add_u32 s58, s3, {WS_KVR + 240*64}")
    WF = 26
    if SM: A(f"s_cmp_ge_u32 s{sWAVE}, 4\ns_cbranch_scc1 L_c1\ns_waitcnt vmcnt(0)\nL_c1:")
    A("s_waitcnt vmcnt(4)")
    xstamp(A, "kv")
    lo(A, WF, 12); hi(A, WF+1, 12); lo(A, WF+2, 13); hi(A, WF+3, 13)
    A("s_waitcnt lgkmcnt(0)")
    A(f"s_mul_i32 s{sN}, s{sN}, 0x9E3779B1\ns_add_u32 s{sN}, s{sN}, 0x7F4A7C15")
    A(f"s_lshl_b32 s59, s{sCG}, 3\ns_add_u32 s59, s59, s{sWAVE}\ns_lshl_b32 s59, s59, 7\ns_add_u32 s59, s59, {F_S1}")
    stamp(A, 1)
    A("s_barrier")
    KP, VP, KF, T, O = 32, 44, 52, 64, 72
    for e in range(2):
        A(f"ds_read_b64_tr_b16 v[{KP+6*e}:{KP+6*e+1}], v22 offset:{e*4096 + 512}")
        A(f"ds_read_b64_tr_b16 v[{KP+6*e+2}:{KP+6*e+3}], v23 offset:{e*4096 + 1024}")
        A(f"ds_read_b64_tr_b16 v[{KP+6*e+4}:{KP+6*e+5}], v23 offset:{e*4096 + 1536}")
        A(f"ds_read_b64_tr_b16 v[{VP+4*e}:{VP+4*e+1}], v22 offset:{17408 + e*4096}")
        A(f"ds_read_b64_tr_b16 v[{VP+4*e+2}:{VP+4*e+3}], v22 offset:{17408 + e*4096 + 512}")
    if SM == 1:
        A(f"s_cmp_ge_u32 s{sWAVE}, 4\ns_cbranch_scc1 L_nossm")
        ssm_issue()
        A("L_nossm:")
    for e in range(2):
        A(f"s_waitcnt lgkmcnt({7 - 5*e})")
        for j in range(11):
            (hi if j % 2 == 0 else lo)(A, KF+j, KP + 6*e + (j+1)//2)
        for i in range(8): A(f"v_mul_f32 v{T+i}, v{WF+3}, v{KF+i}")
        for j in (2, 1, 0):
            for i in range(8): A(f"v_fmac_f32 v{T+i}, v{WF+j}, v{KF+i+3-j}")
        A(f"s_waitcnt lgkmcnt({5 - 5*e})")
        for i in range(8): (lo if i % 2 == 0 else hi)(A, KF+i, VP + 4*e + i//2)
        for i in range(8): A(f"v_mul_f32 v{T+i}, v{T+i}, v{KF+i}")
        for x in range(4): A(f"v_cvt_pk_bf16_f32 v{O+4*e+x}, v{T+7-2*x}, v{T+6-2*x}")
        A(f"buffer_store_dwordx4 v[{O+4*e}:{O+4*e+3}], v24, {WS}, s58 offen offset:{256*(1-e)} sc1")
    xstamp(A, "kst")
    A(f"s_and_b32 s3, s{sTT}, 7\ns_or_b32 s3, s3, s{sWAVE}\ns_cmp_lg_u32 s3, 0\ns_cbranch_scc1 L_nozero")
    A(f"s_lshr_b32 s3, s{sCG}, 3\ns_mul_i32 s3, s3, 768\ns_add_u32 s3, s3, {F_MOD}")
    A("v_mov_b32 v48, 0\nv_mov_b32 v49, 0\nv_mov_b32 v50, 0\nv_mov_b32 v51, 0")
    A("s_mov_b32 exec_lo, -1\ns_mov_b32 exec_hi, 0xffff")
    A(f"buffer_store_dwordx4 v[48:51], v{vL16}, {WS}, s3 offen sc1")
    A("s_mov_b64 exec, -1")
    A("L_nozero:")
    A.flush_hist()
    if SM == 2:
        A("s_barrier")
        A(f"s_cmp_ge_u32 s{sWAVE}, 4\ns_cbranch_scc1 L_nossm")
        ssm_issue()
        A("s_waitcnt vmcnt(4)\ns_branch L_ssmd")
        A("L_nossm:")
    A("s_waitcnt vmcnt(0)")
    A("L_ssmd:")
    flag_set(A, "s59", 52, vL16)
    stamp(A, 2)
    A(f"s_cmp_ge_u32 s{sWAVE}, 4\ns_cbranch_scc1 L_b1")
    A("s_waitcnt vmcnt(1)")
    X, Y = 192, 208
    A(f"v_add_u32 v41, s61, v{vL16}")
    for i in range(4):
        A(f"ds_read_b128 v[{X+4*i}:{X+4*i+3}], v41 offset:{32+i*1024}")
        A(f"ds_read_b64 v[{Y+2*i}:{Y+2*i+1}], v41 offset:{48+i*1024}")
    A("v_add_u32 v42, v9, v8\nv_lshlrev_b32 v40, 1, v42\nv_add_u32 v40, s61, v40\nds_read_u16 v216, v40")
    A(f"v_cmp_lt_u32 vcc, 15, v42\nv_mul_u32_u24 v40, {PS}, v9\nv_lshl_add_u32 v40, v8, 1, v40\nv_add_u32 v40, s61, v40")
    A(f"v_mov_b32 v14, 0\nv_mov_b32 v15, 0\nv_lshlrev_b32 v13, 3, v0\nv_add_u32 v13, {L_Q+16384}, v13")
    for i in range(4):
        a = [X+4*i, X+4*i+1, X+4*i+2, X+4*i+3, Y+2*i, Y+2*i+1]
        c1 = 112 + 12*i; c2 = c1 + 4; c3 = c1 + 8
        if i == 0: A("s_waitcnt lgkmcnt(0)")
        for j in range(4): A(f"v_alignbit_b32 v{c1+j}, v{a[j+1]}, v{a[j]}, 16")
        A(f"ds_write_b128 v41, v[{c1}:{c1+3}] offset:{PS+32+i*1024}")
        for j in range(4): A(f"v_mov_b32 v{c2+j}, v{a[j+1]}")
        A(f"ds_write_b128 v41, v[{c2}:{c2+3}] offset:{2*PS+32+i*1024}")
        for j in range(4): A(f"v_alignbit_b32 v{c3+j}, v{a[j+2]}, v{a[j+1]}, 16")
        A(f"ds_write_b128 v41, v[{c3}:{c3+3}] offset:{3*PS+32+i*1024}")
    A("v_cndmask_b32 v216, 0, v216, vcc\nds_write_b16 v40, v216")
    A("ds_write_b64 v13, v[14:15]")
    A("s_and_b32 s3, s60, 1\ns_lshl_b32 s3, s3, 4\ns_lshr_b32 s33, s33, s3\ns_and_b32 s33, s33, 0xffff")
    A("v_lshl_add_u32 v48, v9, 3, v8\nv_sub_u32 v48, 15, v48\nv_and_b32 v49, 1, v48\nv_lshlrev_b32 v49, 4, v49\nv_lshlrev_b32 v49, v49, s33\nv_ashrrev_i32 v48, 1, v48")
    for e in range(4): A(f"v_cmp_eq_u32 vcc, {e}, v48\nv_cndmask_b32 v{64+e}, 0, v49, vcc")
    A(f"v_add_u32 v42, 1, v8\nv_and_b32 v43, 3, v42\nv_mul_u32_u24 v43, {PS}, v43\nv_lshrrev_b32 v42, 2, v42")
    A("v_lshl_add_u32 v43, v42, 3, v43\nv_lshl_add_u32 v43, v9, 4, v43\nv_add_u32 v43, s61, v43")
    vP, vQ, vE, vS = 43, [44, 45], 47, 46
    A("v_lshlrev_b32 v48, 1, v8\nv_sub_u32 v48, 30, v48\nv_add_u32 v48, v48, v9\nv_lshrrev_b32 v49, 2, v48")
    for rho in range(2):
        A(f"v_add_u32 v50, {rho}, v49\nv_and_b32 v50, 3, v50\nv_xor_b32 v50, s{sWAVE}, v50\nv_lshlrev_b32 v50, 4, v50\nv_lshl_add_u32 v50, v48, 6, v50\nv_add_u32 v{vQ[rho]}, {L_Q}, v50")
    A(f"s_lshr_b32 s3, s{sWAVE}, 1\nv_lshl_add_u32 v46, v9, 1, s3\nv_and_b32 v48, 7, v8\nv_xor_b32 v46, v46, v48\nv_lshlrev_b32 v46, 4, v46")
    A(f"v_lshl_add_u32 v46, v8, 7, v46\ns_and_b32 s3, s{sWAVE}, 1\ns_lshl_b32 s3, s3, 3\ns_add_u32 s3, s3, {L_YS}\nv_add_u32 v46, s3, v46")
    ACC = 80; FA = [112, 176]; FB = [144, 208]; KE = 64
    def reads(r, buf):
        La, Lb = [], []
        for i in range(8):
            Lb.append(f"ds_read_b128 v[{FB[buf]+4*i}:{FB[buf]+4*i+3}], v{vQ[r & 1]} offset:{256*r + 2048*(7-i)}")
            La.append(f"ds_read_b64 v[{FA[buf]+4*i}:{FA[buf]+4*i+1}], v{vP} offset:{512*i + 64*r}")
            La.append(f"ds_read_b64 v[{FA[buf]+4*i+2}:{FA[buf]+4*i+3}], v{vP} offset:{512*i + 64*r + 8}")
        return La, Lb
    La, Lb = reads(0, 0)
    A("s_waitcnt lgkmcnt(0)")
    for l in La: A(l)
    q_addr(A, 48)
    A("s_mov_b32 s59, 3")
    stamp(A, 3)
    A("s_waitcnt lgkmcnt(0)\ns_barrier")
    for l in Lb: A(l)
    q_issue(A, 48)
    stamp(A, 4)
    for q in range(8):
        A(f"s_waitcnt lgkmcnt({7-q if not STAMPS else 0})")
        A(f"v_mfma_f32_16x16x32_bf16 v[{ACC+4*q}:{ACC+4*q+3}], v[64:67], v[{FB[0]+4*q}:{FB[0]+4*q+3}], 0")
    align8(A)
    start = len(A.lines)
    A("L_conv:")
    for r in range(2):
        if r == 0:
            La, Lb = reads(1, 1)
            tail = [[f"v_xor_b32 v{vQ[0]}, 32, v{vQ[0]}", f"v_xor_b32 v{vQ[1]}, 32, v{vQ[1]}"],
                    [f"v_add_u32 v{vQ[0]}, 512, v{vQ[0]}"], [f"v_add_u32 v{vQ[1]}, 512, v{vQ[1]}"], [f"v_add_u32 v{vP}, 128, v{vP}"]]
        else:
            La, Lb = reads(0, 0)
            tail = [["s_sub_u32 s59, s59, 1", "s_nop 0"]]
        nxt = [[x] for x in Lb + La] + tail
        mf = [f"v_mfma_f32_16x16x32_bf16 v[{ACC+4*(i+j)}:{ACC+4*(i+j)+3}], v[{FA[r]+4*i}:{FA[r]+4*i+3}], v[{FB[r]+4*j}:{FB[r]+4*j+3}], v[{ACC+4*(i+j)}:{ACC+4*(i+j)+3}]"
              for i in range(8) for j in range(8 - i)]
        sl = {n: x for n, x in enumerate(nxt)}
        sl[34] = ["s_waitcnt lgkmcnt(0)", "s_nop 0"]
        sched(A, mf, sl)
    A("s_cbranch_scc0 L_conv")
    check_loop(A.lines[start:])
    stamp(A, 5)
    T = 48
    for q in range(8):
        e = KE + 2*q
        A(f"v_cvt_pk_bf16_f32 v{e}, v{ACC+4*q}, v{ACC+4*q+1}\nv_cvt_pk_bf16_f32 v{e+1}, v{ACC+4*q+2}, v{ACC+4*q+3}")
        A(f"ds_write_b64 v{vS}, v[{e}:{e+1}] offset:{q*2048}")
    A(f"v_mov_b32 v52, {L_CNT}\nv_mov_b32 v53, 1\ns_waitcnt lgkmcnt(0)\ns_mov_b64 exec, 1\nds_add_u32 v52, v53\ns_mov_b64 exec, -1")
    A(f"v_lshrrev_b32 v48, 3, v2\nv_and_b32 v49, 7, v2\nv_xor_b32 v50, v48, v49\nv_lshlrev_b32 v50, 4, v50\nv_lshl_add_u32 v50, v48, 7, v50")
    A(f"s_lshl_b32 s3, s{sWAVE}, 12\ns_add_u32 s3, s3, {L_YS}\nv_add_u32 v50, s3, v50")
    A("v_lshrrev_b32 v51, 2, v49\nv_lshl_add_u32 v51, v48, 1, v51\nv_lshlrev_b32 v51, 14, v51\nv_and_b32 v49, 3, v49\nv_lshl_add_u32 v51, v49, 4, v51")
    A(f"s_lshl_b32 s3, s{sWAVE}, 20\ns_lshl_b32 s57, s{sCG}, 6\ns_add_u32 s3, s3, s57\ns_add_u32 s3, s3, {WS_YB}")
    xstamp(A, "rv0")
    A("L_rv:")
    A("ds_read_b32 v53, v52\ns_waitcnt lgkmcnt(0)\nv_readfirstlane_b32 s57, v53\ns_cmp_lt_u32 s57, 4\ns_cbranch_scc1 L_rv")
    xstamp(A, "rv1")
    for i in range(4): A(f"ds_read_b128 v[{64+4*i}:{67+4*i}], v50 offset:{i*1024}")
    for i in range(4):
        A(f"s_waitcnt lgkmcnt({3-i})")
        A(f"buffer_store_dwordx4 v[{64+4*i}:{67+4*i}], v51, {WS}, s3 offen sc1")
        if i < 3: A(f"s_add_u32 s3, s3, {8*2*16384}")
    xstamp(A, "ys")
    A("s_waitcnt vmcnt(4)")
    ln0_part1(A)
    A("s_waitcnt vmcnt(0)")
    xstamp(A, "yd")
    arrive(A, F_S2C, F_S2R, L_CNT+4, 52, vL16)
    stamp(A, 6)
    ln_addr(A)
    A(f"s_cmp_lg_u32 s{sWAVE}, 0\ns_cbranch_scc1 L_ln")
    A(f"v_lshlrev_b32 v47, 7, v8\ns_movk_i32 s3, {F_S2R}")
    poll(A, 47, "s3", 48, opt("s2sl"))
    xstamp(A, "s2p")
    A("s_branch L_ln")
    A.flush_hist()
    A("L_b1:")
    A(f"s_cmp_lg_u32 s{sWAVE}, 7\ns_cbranch_scc1 L_b1g")
    A(f"s_lshr_b32 s3, s{sTT}, 1\ns_lshl_b32 s3, s3, 7\nv_and_b32 v47, 1, v9\nv_subrev_u32 v47, 1, v47\nv_and_b32 v47, s3, v47\nv_lshl_add_u32 v47, v8, 10, v47")
    A("v_and_b32 v46, 3, v2\nv_xor_b32 v46, v46, v9\nv_lshlrev_b32 v46, 4, v46\nv_lshrrev_b32 v45, 2, v2\nv_lshl_add_u32 v46, v45, 6, v46")
    A(f"s_lshl_b32 s3, s{sCT}, 14\ns_add_u32 s3, s3, {F_S1}\ns_lshl_b32 s58, s{sCG}, 14\ns_add_u32 s58, s58, {WS_KVR}")
    if opt("s1pre"): A(f"s_sleep {opt('s1pre')}")
    poll(A, 47, "s3", 48, opt("s1sl"))
    xstamp(A, "s1p")
    for w in range(4):
        A(f"s_mov_b32 m0, {L_Q + w*4096}")
        for i in range(4): A(f"buffer_load_dwordx4 v46, {WS}, s58 offen offset:{i*1024} sc1 lds")
        if w < 3: A("s_add_u32 s58, s58, 4096")
    tile_ids(A, 1)
    g1_prod_setup(A)
    q_addr(A, 48)
    A("s_lshr_b32 s58, s2, 3\ns_lshl_b32 s58, s58, 1\ns_and_b32 s57, s2, 1\ns_add_u32 s58, s58, s57\ns_mul_i32 s58, s58, 7168")
    A(f"s_bfe_u32 s57, s2, 0x20001\ns_mul_i32 s57, s57, 1792\ns_add_u32 s58, s58, s57\ns_add_u32 s{sPF}, s{P['w1']}, s58\ns_addc_u32 s{sPF+1}, s{P['w1']+1}, 0")
    A("s_waitcnt vmcnt(0)\ns_barrier")
    A("s_sleep 8")
    q_issue(A, 48)
    if not opt("notouch"):
        A(f"v_and_b32 v50, 3, v2\nv_lshlrev_b32 v50, 7, v50\nv_bfe_u32 v51, v2, 2, 2\nv_lshl_add_u32 v50, v51, 17, v50\ns_lshl_b32 s3, s{sTB}, 9\ns_add_u32 s3, s3, {F_S3}")
        A(f"buffer_load_dword v51, v50, {WS}, s3 offen sc1")
        A(f"v_and_b32 v50, 0x180, v50\ns_add_u32 s3, s3, {F_S4H - F_S3}")
        A(f"buffer_load_dword v51, v50, {WS}, s3 offen sc1")
        t = srd(A, SB_, "b1", 7168)
        A("s_mul_i32 s3, s61, 448")
        A(f"buffer_load_dword v51, v50, {t}, s3 offen offset:60")
        t = srd(A, SB_, "b2", 2048)
        A("s_lshr_b32 s3, s2, 5\ns_lshl_b32 s3, s3, 8\nv_and_b32 v50, 0x80, v50")
        A(f"buffer_load_dword v51, v50, {t}, s3 offen")
    if opt("pf0", 0):
        A(f"s_mov_b32 s59, {opt('pf0', 0)}")
        A("L_pf0:")
        sprefetch(A, 28, 64*7168)
        A("s_sub_u32 s59, s59, 1\ns_cmp_lg_u32 s59, 0\ns_cbranch_scc1 L_pf0")
    xstamp(A, "bp")
    A("s_waitcnt vmcnt(0)")
    ln0_part1(A)
    A("s_branch L_b1m")
    A.flush_hist()
    A("L_b1g:")
    tile_ids(A, 1)
    g1_prod_setup(A)
    A(f"s_mov_b32 s3, {f2u(-1.4426950408889634):#x}")
    lo(A, 16, 220); hi(A, 17, 220)
    for i in range(2): A(f"v_mul_f32 v{18+i}, s3, v{16+i}")
    for i in range(2): A(f"v_exp_f32 v{18+i}, v{18+i}")
    for i in range(2): A(f"v_add_f32 v{18+i}, 1.0, v{18+i}")
    for i in range(2): A(f"v_rcp_f32 v{18+i}, v{18+i}")
    for i in range(2): A(f"v_mul_f32 v{18+i}, v{18+i}, v{16+i}")
    A("v_cvt_pk_bf16_f32 v18, v18, v19")
    A(f"s_lshl_b32 s58, s64, 9\ns_add_u32 s58, s58, {L_GS}\nv_lshlrev_b32 v20, 2, v2\nv_add_u32 v21, s58, v20\nds_write_b32 v21, v18")
    A("v_lshlrev_b32 v22, 3, v9\nv_add_u32 v22, s58, v22")
    SF, GA, GW = 64, 80, 96
    for kb in range(4):
        A(f"ds_read_b64 v[{SF+4*kb}:{SF+4*kb+1}], v22 offset:{kb*64}\nds_read_b64 v[{SF+4*kb+2}:{SF+4*kb+3}], v22 offset:{kb*64+32}")
    unit_lane_off(A, 24, 12288)
    for k in range(1, 4): A(f"v_add_u32 v{24+k}, {k*(8*12288 - 1024)}, v24")
    A(f"s_and_b32 s3, s{sTT}, 7\ns_mul_i32 s3, s3, {128*12288}\ns_lshr_b32 s57, s{sCG}, 3\ns_mul_i32 s57, s57, 384\ns_add_u32 s3, s3, s57\ns_lshl_b32 s57, s64, 7\ns_add_u32 s48, s3, s57")
    A(f"s_lshl_b32 s49, s64, 14\ns_add_u32 s49, s49, {L_GW}")
    A("v_lshrrev_b32 v28, 2, v2\nv_and_b32 v28, 7, v28\nv_lshrrev_b32 v29, 1, v28\nv_lshlrev_b32 v29, 5, v29\nv_lshl_add_u32 v29, v28, 7, v29")
    A("v_and_b32 v28, 3, v2\nv_lshl_add_u32 v29, v28, 3, v29\nv_lshrrev_b32 v28, 5, v2\nv_lshl_add_u32 v29, v28, 10, v29\nv_add_u32 v29, s49, v29")
    for cb in range(4): A(f"v_xor_b32 v{56+cb}, {cb*32}, v29")
    A("v_lshlrev_b32 v23, 4, v9\nv_add_u32 v23, s58, v23")
    sw = srd(A, SB_, "wmod", 12*MB)
    A("s_mov_b32 s58, s48\ns_mov_b32 s59, s49")
    q_addr(A, 48)
    A("s_waitcnt lgkmcnt(0)\ns_barrier")
    A("s_sleep 2")
    for kb in range(4):
        A(f"s_add_u32 m0, s59, {kb*4096}")
        for k in range(4): A(f"buffer_load_dwordx4 v{24+k}, {sw}, s58 offen offset:{k*1024} nt lds")
        if kb < 3: A(f"s_add_u32 s58, s58, {32*12288}")
    q_issue(A, 48)
    xstamp(A, "bi")
    A("s_setprio 3")
    for kb in range(4):
        A(f"s_waitcnt vmcnt({16 - 4*kb})")
        for cb in range(4):
            A(f"ds_read_b64_tr_b16 v[{GW+4*cb}:{GW+4*cb+1}], v{56+cb} offset:{kb*4096}\nds_read_b64_tr_b16 v[{GW+4*cb+2}:{GW+4*cb+3}], v{56+cb} offset:{kb*4096+2048}")
        A("s_waitcnt lgkmcnt(0)")
        for cb in range(4):
            c = "0" if kb == 0 else f"v[{GA+4*cb}:{GA+4*cb+3}]"
            A(f"v_mfma_f32_16x16x32_bf16 v[{GA+4*cb}:{GA+4*cb+3}], v[{GW+4*cb}:{GW+4*cb+3}], v[{SF+4*kb}:{SF+4*kb+3}], {c}")
    xstamp(A, "bw")
    A("s_mov_b32 exec_lo, 0x00010001\ns_mov_b32 exec_hi, 0x00010001")
    for cb in range(4): A(f"ds_write_b128 v23, v[{GA+4*cb}:{GA+4*cb+3}] offset:{256 + cb*64}")
    A("s_mov_b64 exec, -1")
    A("ds_read_b32 v30, v21 offset:256")
    A(f"s_lshr_b32 s3, s{sCG}, 3\ns_mul_i32 s3, s3, 768\ns_lshl_b32 s57, s64, 8\ns_add_u32 s3, s3, s57\ns_add_u32 s3, s3, {F_MOD}")
    A("s_waitcnt lgkmcnt(0)")
    A(f"buffer_atomic_add_f32 v30, v20, {WS}, s3 offen sc1")
    xstamp(A, "ba")
    A("s_waitcnt vmcnt(0)")
    xstamp(A, "bd")
    arrive(A, F_GVC, F_GVR, L_CNT+8, 52, vL16, 3)
    A("s_setprio 0")
    ln0_part1(A)
    A("L_b1m:")
    A.flush_hist()
    stamp(A, 3)
    ln_addr(A)
    A(f"v_lshlrev_b32 v47, 7, v8\ns_movk_i32 s3, {F_GVR}")
    poll(A, 47, "s3", 48, opt("gvsl", 4))
    stamp(A, 4)
    A("v_and_b32 v48, 255, v0\nv_lshlrev_b32 v48, 4, v48")
    M = 64
    for j in range(5):
        A(f"s_mov_b32 s3, {F_MOD + j*4096}")
        A(f"buffer_load_dwordx4 v[{M+4*j}:{M+4*j+3}], v48, {WS}, s3 offen sc1")
    A(f"v_add_u32 v48, {L_MOD}, v48")
    A("s_waitcnt vmcnt(0)")
    for e in range(20): A(f"v_cvt_pk_bf16_f32 v{M+e}, v{M+e}, v{M+e}")
    for e in range(20): A(f"v_lshlrev_b32 v{M+e}, 16, v{M+e}")
    for j in (1, 4):
        for e in range(4): A(f"v_add_f32 v{M+4*j+e}, 1.0, v{M+4*j+e}")
        for e in range(4): A(f"v_cvt_pk_bf16_f32 v{M+4*j+e}, v{M+4*j+e}, v{M+4*j+e}")
        for e in range(4): A(f"v_lshlrev_b32 v{M+4*j+e}, 16, v{M+4*j+e}")
    for j in (0, 1):
        for e in range(4): A(f"v_mul_f32 v{M+4*j+e}, v{M+4*j+e}, v{M+8+e}")
    for n, j in enumerate((0, 1, 3, 4)): A(f"ds_write_b128 v48, v[{M+4*j}:{M+4*j+3}] offset:{n*4096}")
    R = opt("lnrows", 4)
    A(f"s_add_u32 s3, s64, {opt('pf0', 0)}\nv_min_u32 v222, {R-1}, v9\nv_lshl_add_u32 v222, v222, 2, s3\nv_lshlrev_b32 v222, 6, v222")
    A("s_lshr_b32 s3, s2, 3\ns_lshl_b32 s3, s3, 1\ns_and_b32 s57, s2, 1\ns_add_u32 s3, s3, s57\nv_add_u32 v222, s3, v222\ns_movk_i32 s3, 7168\nv_mul_lo_u32 v222, v222, s3")
    A("v_min_u32 v223, 13, v8\nv_lshl_add_u32 v222, v223, 7, v222\ns_bfe_u32 s57, s2, 0x20001\ns_mul_i32 s57, s57, 1792\nv_add_u32 v222, s57, v222")
    stamp(A, 6)
    A("L_ln:")
    A.flush_hist()
    A("s_waitcnt lgkmcnt(0)\ns_barrier")
    stamp(A, 7)
    YR, M, H, ST, TMP = 40, 48, 72, 88, 108
    for c in range(2): A(f"buffer_load_dwordx4 v[{YR+4*c}:{YR+4*c+3}], v12, {WS}, 0 offen offset:{16*c} sc1")
    for j in range(4): A(f"ds_read_b128 v[{M+4*j}:{M+4*j+3}], v13 offset:{j*4096}")
    red_part2(A, vSTR, 0, ST)
    normalize(A, H, LX, ST, M+4, M)
    xstamp(A, "ln_a")
    A("s_waitcnt vmcnt(0)")
    xstamp(A, "ln_b")
    if not opt("nopf1"):
        A(f"s_cmp_lt_u32 s{sWAVE}, 4\ns_cbranch_scc1 L_nopf1")
        A(f"buffer_load_dword v223, v222, s[{SA_}:{SA_+3}], 0 offen")
        A("L_nopf1:")
    for e in range(8): lo(A, TMP+2*e, YR+e); hi(A, TMP+2*e+1, YR+e)
    for e in range(8): A(f"v_pk_fma_f32 {P2(LX+2*e)}, {P2(H+2*e)}, {P2(TMP+2*e)}, {P2(LX+2*e)}")
    stats4(A, LX, LR)
    red_part1(A, LR, vSTW, 64)
    pack_rows(A, QR, LX)
    xstamp(A, "ln_c")
    A("s_waitcnt lgkmcnt(0)\ns_barrier")
    xstamp(A, "ln_d")
    red_part2(A, vSTR, 64, ST)
    normalize(A, H, LX, ST, M+12, M+8)
    stats4(A, H, LR)
    red_part1(A, LR, vSTW, 128)
    for i in range(4): A(f"ds_write_b64 v{100+i}, v[{QR+2*i}:{QR+2*i+1}]")
    xstamp(A, "ln_e")
    A("s_waitcnt lgkmcnt(4)\ns_barrier" if not STAMPS else "s_waitcnt lgkmcnt(0)\ns_barrier")
    xstamp(A, "ln_f")
    red_part2(A, vSTR, 128, ST)
    normalize(A, H, H, ST)
    pack_rows(A, YR, H)
    for i in range(4): A(f"ds_write_b64 v{100+i}, v[{YR+2*i}:{YR+2*i+1}] offset:{L_MOD-L_YS}")
    xstamp(A, "ln_g")
    A(f"s_cmp_ge_u32 s{sWAVE}, 4\ns_cbranch_scc1 L_b2")
    A(f"s_mov_b32 s3, {WS_Y2F}")
    A("s_waitcnt lgkmcnt(0)\ns_barrier")
    xstamp(A, "ln_h")
    for i in range(4): A(f"ds_read_b128 v[{64+4*i}:{67+4*i}], v14 offset:{L_MOD-L_YS+i*4096}")
    for i in range(4):
        A(f"s_waitcnt lgkmcnt({3-i})")
        A(f"buffer_store_dwordx4 v[{64+4*i}:{67+4*i}], v15, {WS}, s3 offen sc1")
        if i < 3: A("s_add_u32 s3, s3, 0x100000")
    A(f"s_lshl_b32 s3, s{sTB}, 2\ns_add_u32 s3, s3, s{sWAVE}\ns_lshl_b32 s3, s3, 7\ns_add_u32 s3, s3, {F_S3}")
    A("s_waitcnt vmcnt(0)")
    flag_set(A, "s3", 52, vL16)
    xstamp(A, "ln_i")
    A("s_barrier")
    stamp(A, 8)
    g1_consumer(A, 9)
    g2_consumer(A, 12)
    if STAMPS:
        A("s_waitcnt vmcnt(0)"); stamp(A, 14)
    stamp_flush(A)
    A("s_endpgm")
    g2_hooks(A)
    A.flush_hist()
    A("L_b2:")
    A("s_waitcnt lgkmcnt(0)\ns_barrier")
    for i in range(4): A(f"ds_read_b128 v[{XI+4*i}:{XI+4*i+3}], v14 offset:{i*4096}")
    A(f"v_add_u32 v248, {WS_X1}, v15")
    A("s_waitcnt lgkmcnt(0)")
    stamp(A, 8)
    A("s_barrier")
    for _ in range(2): g1_issue_w(A)
    A(f"v_and_b32 v47, 15, v2\nv_lshlrev_b32 v47, 7, v47\ns_lshl_b32 s3, s60, 13\ns_lshl_b32 s57, s64, 11\ns_add_u32 s3, s3, s57\ns_add_u32 s3, s3, {F_S3}")
    poll(A, 47, "s3", 48)
    stamp(A, 9)
    A(f"s_or_b32 s3, s2, s64\ns_cmp_lg_u32 s3, 0\ns_cbranch_scc1 L_noepoch")
    flag_set(A, "0", 52, vL16)
    A("s_waitcnt vmcnt(0)")
    A("L_noepoch:")
    g1_prod_main(A)
    g2_producer(A)
    stamp(A, 13)
    stamp_flush(A)
    A("L_exit:\ns_endpgm")
    A("L_end:")

def build():
    A = Asm()
    kernel(A)
    head = ["; generated by dev/gen14.py (single persistent kernel; see that generator for the design notes)",
            f"; @launch grid=(256,1,1) block=(512,1,1) lds={LDS_TOTAL}",
            '.amdgcn_target "amdgcn-amd-amdhsa--gfx950"', ".text"]
    tail = ['.section .rodata,"a"', ".p2align 6", descriptor(NAME, 256, 102)]
    return "\n".join(head) + "\n" + A.text() + "\n".join(tail)

if __name__ == "__main__":
    if "-stamps" in sys.argv: STAMPS = True
    for a in sys.argv:
        if a.startswith("-o="):
            for kv in a[3:].split(","):
                k, v = kv.split(":"); OPT[k] = int(v)
        if a.startswith("-xs="):
            STAMPS = True
            for n, nm in enumerate(a[4:].split(",")): XS[nm] = n + 1
    out = sys.argv[1] if len(sys.argv) > 1 and not sys.argv[1].startswith("-") else "adaLN_cond__ssm_conv_h3__mixer_channel_mlp__prompt.s"
    txt = build()
    if opt("nont"): txt = txt.replace(" nt lds", " lds").replace(" nt\n", "\n")
    open(out, "w").write(txt)
```
